```python
import torch

def _softmax(x, axis=-1):
    return torch.softmax(x, dim=axis)
def _gelu(x):
    return torch.nn.functional.gelu(x, approximate="tanh")
def _silu(x):
    return torch.nn.functional.silu(x)
def _sigmoid(x):
    return torch.sigmoid(x)
def _layernorm(x, axis=-1, eps=1e-5):
    m = x.mean(dim=axis, keepdim=True)
    v = x.var(dim=axis, keepdim=True, unbiased=False)
    return (x - m) / torch.sqrt(v + eps)
def _scatter_add(tgt, idx, src, axis=0):
    return tgt.clone().index_add_(axis, idx, src)
def _segment_sum(src, seg, n):
    out = torch.zeros((n,) + src.shape[1:], dtype=src.dtype)
    return out.index_add_(0, seg, src)
def _pad(x, pw):
    flat = tuple(v for pair in reversed(pw) for v in pair)
    return torch.nn.functional.pad(x, flat)

kernel_name = 'recurrent_scan__gqa_block_cached__mixer_token_mlp__decode'

def setup_inputs():

    _w = (lambda a: (lambda t: t.to(torch.bfloat16) if t.is_floating_point() else t)(torch.as_tensor(a)))
    def _A_setup():
        B, Sq, D = 1, 1, 512
        Hq, Hkv, Sk, Dh = 32, 8, 65536, 128
        assert Hq % Hkv == 0, (Hq, Hkv)
        return {
            "x": _w((lambda *s: torch.randn(*s, dtype=torch.bfloat16) * 0.4)(B, Sq, D)),
            "k_cache": _w((lambda *s: torch.randn(*s, dtype=torch.bfloat16) * 3.2)(B, Hkv, Sk, Dh)),
            "v_cache": _w((lambda *s: torch.randn(*s, dtype=torch.bfloat16) * 1.6)(B, Hkv, Sk, Dh)),
            "wq": _w((lambda *s: torch.randn(*s, dtype=torch.bfloat16) * 3.2)(D, Hq * Dh) * (D ** -0.5)),
            "wo": _w((lambda *s: torch.randn(*s, dtype=torch.bfloat16) * 1.6)(Hq * Dh, D) * ((Hq * Dh) ** -0.5)),
        }
    _A_in = _A_setup()

    def _B_setup():
        B, S, D, F = 1, 1, 512, 1792
        return {
            "x": _w((lambda *s: torch.randn(*s, dtype=torch.bfloat16) * 0.4)(B, S, D)),
            "w1": _w((lambda *s: torch.randn(*s, dtype=torch.bfloat16) * 1.6)(S, F) * (S ** -0.5)),
            "b1": _w((lambda *s: torch.randn(*s, dtype=torch.bfloat16) * 1.6)(F) * 0.02),
            "w2": _w((lambda *s: torch.randn(*s, dtype=torch.bfloat16) * 1.6)(F, S) * (F ** -0.5)),
            "b2": _w((lambda *s: torch.randn(*s, dtype=torch.bfloat16) * 1.6)(S) * 0.02),
        }
    _B_in = _B_setup()

    return {
        "A_x": _A_in["x"],
        "A_k_cache": _A_in["k_cache"],
        "A_v_cache": _A_in["v_cache"],
        "A_wq": _A_in["wq"],
        "A_wo": _A_in["wo"],
        "B_x": _B_in["x"],
        "B_w1": _B_in["w1"],
        "B_b1": _B_in["b1"],
        "B_w2": _B_in["w2"],
        "B_b2": _B_in["b2"],
    }

def reference(A_x, A_k_cache, A_v_cache, A_wq, A_wo, B_x, B_w1, B_b1, B_w2, B_b2):
    def _A_ref(x, k_cache, v_cache, wq, wo):
        B, Sq, D = x.shape
        Hq, Dh = 32, 128
        Hkv = k_cache.shape[1]
        rep = Hq // Hkv
        q = (lambda x, *d: x.permute(*d))((x @ wq).reshape(B, Sq, Hq, Dh), 0, 2, 1, 3)
        k = (lambda x, n, axis: torch.repeat_interleave(x, n, dim=axis))(k_cache, rep, axis=1)
        v = (lambda x, n, axis: torch.repeat_interleave(x, n, dim=axis))(v_cache, rep, axis=1)
        scores = torch.einsum("bhqd,bhkd->bhqk", q, k) * (Dh ** -0.5)
        p = _softmax(scores, axis=-1)
        o = torch.einsum("bhqk,bhkd->bhqd", p, v)
        return (lambda x, *d: x.permute(*d))(o, 0, 2, 1, 3).reshape(B, Sq, Hq * Dh) @ wo

    def _B_ref(x, w1, b1, w2, b2):
        B, S, D = x.shape
        h = _layernorm(x, axis=-1)
        u = torch.einsum("bsd,sf->bdf", h, w1) + b1
        u = _gelu(u)
        y = torch.einsum("bdf,fs->bds", u, w2) + b2
        return (lambda x, *d: x.permute(*d))(y, 0, 2, 1)

    x = A_x
    xn = _layernorm(x, axis=-1)
    s = _A_ref(xn, A_k_cache, A_v_cache, A_wq, A_wo)
    g = _silu(_B_ref(xn, B_w1, B_b1, B_w2, B_b2))
    return x + s * g
```

```python
import sys, struct

NAME = "recurrent_scan__gqa_block_cached__mixer_token_mlp__decode"

HEADER = """; Kernarg layout for this problem (104 bytes, ptrs only, base s[0:1]):
"""


def f32(x):
    return "0x%08x" % struct.unpack("<I", struct.pack("<f", x))[0]


LOG2E = 1.4426950408889634
SCALE = 128 ** -0.5

RING = 0
WQ = 131072
PART = 147456
XN = 155648
QS = 156672
ML = 157696
MLF = ML + 128
FIN = ML + 160
FINF = ML + 192
LDS_BYTES = 158208

WS_Q = 0
WS_ML = 8192
WS_O = 16384
WS_TS = 65536


class G:
    def __init__(self, **opt):
        self.L = []
        self.opt = opt
        self.uid = 0

    def A(self, s):
        self.L.append("  " + s)

    def lab(self, s):
        self.L.append(s + ":")

    def nop(self, n):
        while n > 0:
            k = min(n, 16)
            self.A(f"s_nop {k-1}")
            n -= k

    def ts(self, slot, sreg="s[60:61]", vt=("v250", "v251", "v252")):
        if not self.opt.get("ts"):
            return
        A = self.A
        A(f"s_memrealtime {sreg}")
        A("s_waitcnt lgkmcnt(0)")
        lo, hi = sreg[2:-1].split(":")
        A(f"v_mov_b32 {vt[0]}, s{lo}")
        A(f"v_mov_b32 {vt[1]}, s{hi}")
        A(f"v_mov_b32 {vt[2]}, s62")
        A("s_mov_b64 s[64:65], exec")
        A("s_mov_b64 exec, 1")
        n0 = int(vt[0][1:])
        A(f"global_store_dwordx2 {vt[2]}, v[{n0}:{n0+1}], s[40:41] offset:{slot*8}")
        A("s_mov_b64 exec, s[64:65]")

    def allreduce64(self, op, v, t):
        A = self.A
        for r in (1, 2, 4, 8):
            self.nop(2)
            A(f"v_{op}_f32_dpp {v}, {v}, {v} row_ror:{r} row_mask:0xf bank_mask:0xf")
        self.rows_reduce(op, v, t)

    def rows_reduce(self, op, v, t):
        A = self.A
        A(f"v_mov_b32 {t}, {v}")
        self.nop(2)
        A(f"v_permlane16_swap_b32 {v}, {t}")
        self.nop(2)
        A(f"v_{op}_f32 {v}, {v}, {t}")
        A(f"v_mov_b32 {t}, {v}")
        self.nop(2)
        A(f"v_permlane32_swap_b32 {v}, {t}")
        self.nop(2)
        A(f"v_{op}_f32 {v}, {v}, {t}")

    def bf16r(self, v):
        self.A(f"v_cvt_pk_bf16_f32 {v}, {v}, {v}")
        self.A(f"v_lshlrev_b32 {v}, 16, {v}")

    def layernorm(self, x0, t0, outp):
        A = self.A
        X = [f"v{x0+i}" for i in range(8)]
        T = [f"v{t0+i}" for i in range(6)]
        A(f"v_add_f32 {T[0]}, {X[0]}, {X[1]}")
        A(f"v_add_f32 {T[1]}, {X[2]}, {X[3]}")
        A(f"v_add_f32 {T[2]}, {X[4]}, {X[5]}")
        A(f"v_add_f32 {T[3]}, {X[6]}, {X[7]}")
        A(f"v_add_f32 {T[0]}, {T[0]}, {T[1]}")
        A(f"v_add_f32 {T[2]}, {T[2]}, {T[3]}")
        A(f"v_add_f32 {T[0]}, {T[0]}, {T[2]}")
        self.allreduce64("add", T[0], T[1])
        A(f"v_mul_f32 {T[0]}, {f32(1/512)}, {T[0]}")
        A(f"v_sub_f32 {T[2]}, {X[0]}, {T[0]}")
        A(f"v_mul_f32 {T[1]}, {T[2]}, {T[2]}")
        for i in range(1, 8):
            A(f"v_sub_f32 {T[2]}, {X[i]}, {T[0]}")
            A(f"v_fmac_f32 {T[1]}, {T[2]}, {T[2]}")
        self.allreduce64("add", T[1], T[2])
        A(f"v_mul_f32 {T[1]}, {f32(1/512)}, {T[1]}")
        self.bf16r(T[0])
        self.bf16r(T[1])
        A(f"v_add_f32 {T[1]}, {f32(1e-5)}, {T[1]}")
        self.bf16r(T[1])
        A(f"v_sqrt_f32 {T[2]}, {T[1]}")
        A(f"v_rsq_f32 {T[3]}, {T[1]}")
        self.nop(1)
        A(f"v_fma_f32 {T[4]}, -{T[2]}, {T[2]}, {T[1]}")
        A(f"v_mul_f32 {T[3]}, 0.5, {T[3]}")
        A(f"v_fmac_f32 {T[2]}, {T[4]}, {T[3]}")
        self.bf16r(T[2])
        A(f"v_rcp_f32 {T[3]}, {T[2]}")
        for i in range(8):
            A(f"v_sub_f32 {X[i]}, {X[i]}, {T[0]}")
        for i in range(8):
            self.bf16r(X[i])
        for i in range(8):
            A(f"v_mul_f32 {T[4]}, {X[i]}, {T[3]}")
            A(f"v_fma_f32 {T[5]}, -{T[4]}, {T[2]}, {X[i]}")
            A(f"v_fma_f32 {X[i]}, {T[5]}, {T[3]}, {T[4]}")
        for i in range(4):
            A(f"v_cvt_pk_bf16_f32 v{outp+i}, {X[2*i]}, {X[2*i+1]}")
        for i in range(4):
            A(f"v_lshlrev_b32 {X[2*i]}, 16, v{outp+i}")
            A(f"v_and_b32 {X[2*i+1]}, 0xffff0000, v{outp+i}")

    def poll_flags(self, name, voff, bits, wide):
        A = self.A
        m = bits * 0x01010101
        A(f"s_mov_b32 s50, {self.opt.get('spin', 200000)}")
        self.lab(f"L_poll_{name}")
        if wide:
            A(f"global_load_dwordx4 v[4:7], {voff}, s[38:39] sc1")
            A("s_waitcnt vmcnt(0)")
            A("v_and_b32 v4, v4, v5")
            A("v_and_b32 v6, v6, v7")
            A("v_and_b32 v4, v4, v6")
        else:
            A(f"global_load_dword v4, {voff}, s[38:39] sc1")
            A("s_waitcnt vmcnt(0)")
        A(f"v_and_b32 v4, 0x{m:08x}, v4")
        A(f"v_cmp_eq_u32 vcc, 0x{m:08x}, v4")
        A("s_nop 1")
        A("s_cmp_eq_u64 vcc, exec")
        A(f"s_cbranch_scc1 L_polld_{name}")
        A("s_sub_u32 s50, s50, 1")
        A("s_cmp_eq_u32 s50, 0")
        A(f"s_cbranch_scc1 L_polld_{name}")
        A(f"s_sleep {self.opt.get('sleep', 1)}")
        A(f"s_branch L_poll_{name}")
        self.lab(f"L_polld_{name}")

    def set_flag(self, val):
        A = self.A
        A(f"v_mov_b32 v4, {val}")
        A("v_mov_b32 v5, s47")
        A("s_mov_b64 exec, 1")
        A("global_store_byte v5, v4, s[38:39] sc1")
        A("s_mov_b64 exec, -1")

    def gen(self):
        A = self.A
        opt = self.opt
        NT = opt.get("nt", "nt")
        self.L.append(HEADER.rstrip("\n"))
        self.L.append(f"; @launch grid=(256,1,1) block=(320,1,1) lds={LDS_BYTES}")
        self.L.append('.amdgcn_target "amdgcn-amd-amdhsa--gfx950"')
        self.L.append(".text")
        self.L.append(f".globl {NAME}_kernel")
        self.L.append(".p2align 8")
        self.L.append(f".type {NAME}_kernel,@function")
        self.lab(f"{NAME}_kernel")
        A("s_cmp_ge_u32 s2, 256")
        A("s_cbranch_scc1 L_end")
        A("s_load_dwordx16 s[16:31], s[0:1], 0")
        A("s_load_dwordx8 s[32:39], s[0:1], 64")
        A("s_load_dwordx2 s[40:41], s[0:1], 96")
        A("v_lshrrev_b32 v1, 6, v0")
        A("s_and_b32 s42, s2, 7")
        A("v_readfirstlane_b32 s3, v1")
        A("s_lshr_b32 s43, s2, 3")
        A("v_and_b32 v1, 63, v0")
        A("s_lshl_b32 s47, s42, 5")
        A("s_add_u32 s47, s47, s43")
        if opt.get("ts"):
            A("s_mul_i32 s62, s2, 5")
            A("s_add_u32 s62, s62, s3")
            A("s_lshl_b32 s62, s62, 8")
            A(f"s_add_u32 s62, s62, {WS_TS}")
        A("s_cmp_eq_u32 s3, 0")
        A("s_cbranch_scc1 L_helper")
        self.stream(NT)
        self.lab("L_helper")
        self.helper()
        self.lab("L_end")
        A("s_endpgm")
        self.L.append('.section .rodata,"a"')
        self.L.append(".p2align 6")
        self.L.append(f".amdhsa_kernel {NAME}_kernel")
        for s in ("next_free_vgpr 256", "next_free_sgpr 80", "accum_offset 256", "group_segment_fixed_size 0",
                  "kernarg_size 104", "user_sgpr_count 2", "user_sgpr_kernarg_segment_ptr 1",
                  "system_sgpr_workgroup_id_x 1", "float_denorm_mode_32 3"):
            self.L.append("  .amdhsa_" + s)
        self.L.append(".end_amdhsa_kernel")
        return "\n".join(self.L) + "\n"

    def stream(self, NT):
        A = self.A
        VOFF = 2
        KRD = 6
        VRD = 10
        MSK = 18
        KST = 24
        VST = 56
        DA = 88
        SP = 96
        BT = 112
        BQ = 128
        OA = 192
        SC = 224
        A("s_sub_u32 s3, s3, 1")
        A("v_lshrrev_b32 v22, 4, v1")
        A("v_and_b32 v23, 15, v1")
        for q in range(4):
            c = 8 * (q & 1) + (q >> 1)
            A(f"v_lshl_or_b32 v{VOFF+q}, v22, 1, {c}")
            A(f"v_xor_b32 v{VOFF+q}, v{VOFF+q}, v23")
            A(f"v_lshlrev_b32 v{VOFF+q}, 4, v{VOFF+q}")
            A(f"v_lshl_or_b32 v{VOFF+q}, v22, 8, v{VOFF+q}")
        A("s_lshl_b32 s48, s3, 15")
        A("s_lshl_b32 s49, s43, 2")
        A("s_add_u32 s49, s49, s3")
        A("s_lshl_b32 s49, s49, 12")
        A("s_lshl_b32 s51, s42, 24")
        A("s_waitcnt lgkmcnt(0)")
        A("s_add_u32 s52, s18, s51")
        A("s_addc_u32 s53, s19, 0")
        A("s_and_b32 s53, s53, 0xffff")
        A("s_add_u32 s54, s20, s51")
        A("s_addc_u32 s55, s21, 0")
        A("s_and_b32 s55, s55, 0xffff")
        A("s_mov_b32 s44, s52")
        A("s_mov_b32 s45, s53")
        A(f"s_mov_b32 s46, {1 << 24}")
        A("s_mov_b32 s47, 0x20000")
        A("s_mov_b32 s56, s49")

        def refill(pp):
            A(f"s_add_u32 m0, s48, {pp*4096}")
            A("s_nop 0")
            for q in range(4):
                A(f"buffer_load_dwordx4 v{VOFF+q}, s[44:47], s56 offen offset:{q*1024} {NT} lds")
            A(f"s_add_u32 s56, s56, {512*1024}")

        for pp in range(8):
            refill(pp)
        self.ts(0)
        A("v_and_b32 v24, 7, v23")
        A("v_lshlrev_b32 v24, 1, v24")
        A("v_lshrrev_b32 v25, 3, v23")
        A("v_or_b32 v24, v24, v25")
        A("v_lshlrev_b32 v25, 8, v23")
        A("v_add_u32 v25, s48, v25")
        for u in range(4):
            A(f"v_lshl_or_b32 v26, v22, 2, {u}")
            A("v_xor_b32 v26, v26, v24")
            A(f"v_lshl_add_u32 v{KRD+u}, v26, 4, v25")
        A("v_lshrrev_b32 v26, 2, v1")
        A("v_and_b32 v24, 7, v26")
        A("v_lshlrev_b32 v24, 1, v24")
        A("v_lshrrev_b32 v25, 3, v26")
        A("v_or_b32 v24, v24, v25")
        A("v_bfe_u32 v27, v1, 1, 1")
        A("v_xor_b32 v24, v24, v27")
        A("v_and_b32 v27, 1, v1")
        A("v_lshlrev_b32 v27, 3, v27")
        A("v_lshl_add_u32 v25, v26, 8, v27")
        A("v_add_u32 v25, s48, v25")
        for e in range(8):
            A(f"v_xor_b32 v26, {2*e}, v24")
            A(f"v_lshl_add_u32 v{VRD+e}, v26, 4, v25")
        A("v_lshrrev_b32 v26, 2, v23")
        for t in range(4):
            A(f"v_cmp_eq_u32 vcc, {t}, v26")
            self.nop(2)
            A(f"v_cndmask_b32 v{MSK+t}, 0, -1, vcc")
        for i in range(32):
            A(f"v_mov_b32 v{OA+i}, 0")
        A("v_and_b32 v26, 3, v1")
        A("v_lshlrev_b32 v26, 8, v26")
        A("v_lshl_add_u32 v26, v22, 6, v26")
        A(f"v_add_u32 v26, {QS}, v26")
        A("s_barrier")
        self.ts(1)
        for u in range(4):
            A(f"ds_read_b128 v[{SC+4*u}:{SC+4*u+3}], v26 offset:{16*u}")
        A("s_waitcnt lgkmcnt(0)")
        for t in range(4):
            for k in range(16):
                A(f"v_and_b32 v{BQ+16*t+k}, v{SC+k}, v{MSK+t}")
        A("s_mov_b32 s57, 0")
        A(f"s_mov_b32 s58, {f32(SCALE)}")
        self.lab("L_kloop")
        A("s_cmp_eq_u32 s57, 3")
        A("s_cselect_b32 s44, s54, s52")
        A("s_cselect_b32 s45, s55, s53")
        A("s_cselect_b32 s56, s49, s56")
        for pp in range(8):
            t, hf = pp >> 1, pp & 1
            A("s_waitcnt vmcnt(28)")
            for u in range(4):
                A(f"ds_read_b128 v[{KST+4*u}:{KST+4*u+3}], v{KRD+u} offset:{pp*4096}")
            A("s_waitcnt lgkmcnt(0)")
            refill(pp)
            d = DA + 4 * hf
            for u in range(4):
                c = "0" if (t == 0 and u == 0) else f"v[{d}:{d+3}]"
                A(f"v_mfma_f32_16x16x32_bf16 v[{d}:{d+3}], v[{KST+4*u}:{KST+4*u+3}], v[{BQ+16*t+4*u}:{BQ+16*t+4*u+3}], {c}")
        for k in range(12):
            A(f"v_mov_b32 v{SP+k}, v{SP+k+4}")
        for k in range(4):
            A(f"v_cvt_pk_bf16_f32 v{SC+k}, v{DA+2*k}, v{DA+2*k+1}")
        for k in range(4):
            A(f"v_lshlrev_b32 v{SC+4+2*k}, 16, v{SC+k}")
            A(f"v_and_b32 v{SC+5+2*k}, 0xffff0000, v{SC+k}")
        for k in range(8):
            A(f"v_mul_f32 v{SC+4+k}, s58, v{SC+4+k}")
        for k in range(4):
            A(f"v_cvt_pk_bf16_f32 v{SP+12+k}, v{SC+4+2*k}, v{SC+5+2*k}")
        A("s_add_u32 s57, s57, 1")
        A("s_cmp_lt_u32 s57, 4")
        A("s_cbranch_scc1 L_kloop")
        self.ts(2, vt=("v24", "v25", "v26"))
        for k in range(16):
            A(f"v_lshlrev_b32 v{SC+2*k}, 16, v{SP+k}")
            A(f"v_and_b32 v{SC+2*k+1}, 0xffff0000, v{SP+k}")
        A(f"v_max3_f32 v24, v{SC}, v{SC+1}, v{SC+2}")
        A(f"v_max3_f32 v25, v{SC+3}, v{SC+4}, v{SC+5}")
        for k in range(6, 30, 4):
            A(f"v_max3_f32 v24, v24, v{SC+k}, v{SC+k+1}")
            A(f"v_max3_f32 v25, v25, v{SC+k+2}, v{SC+k+3}")
        A(f"v_max3_f32 v24, v24, v{SC+30}, v{SC+31}")
        A("v_max_f32 v24, v24, v25")
        for r in (4, 8):
            self.nop(2)
            A(f"v_max_f32_dpp v24, v24, v24 row_ror:{r} row_mask:0xf bank_mask:0xf")
        self.rows_reduce("max", "v24", "v25")
        A(f"s_mov_b32 s59, {f32(LOG2E)}")
        for k in range(32):
            A(f"v_sub_f32 v{SC+k}, v{SC+k}, v24")
        for k in range(32):
            A(f"v_mul_f32 v{SC+k}, s59, v{SC+k}")
        for k in range(32):
            A(f"v_exp_f32 v{SC+k}, v{SC+k}")
        self.nop(1)
        for k in range(16):
            A(f"v_cvt_pk_bf16_f32 v{SP+k}, v{SC+2*k}, v{SC+2*k+1}")
        st = 16
        while st >= 1:
            for k in range(st):
                A(f"v_add_f32 v{SC+k}, v{SC+k}, v{SC+k+st}")
            st >>= 1
        A(f"v_mov_b32 v25, v{SC}")
        for r in (4, 8):
            self.nop(2)
            A(f"v_add_f32_dpp v25, v25, v25 row_ror:{r} row_mask:0xf bank_mask:0xf")
        self.rows_reduce("add", "v25", "v26")
        A("v_mov_b32 v22, v24")
        A("s_lshl_b32 s57, s3, 5")
        A(f"s_add_u32 s57, s57, {ML}")
        A("v_lshl_add_u32 v26, v1, 2, s57")
        A("s_lshl_b32 s57, s3, 2")
        A(f"s_add_u32 s57, s57, {MLF}")
        A("v_mov_b32 v27, s57")
        A("v_mov_b32 v28, 1")
        A("s_mov_b64 exec, 15")
        A("ds_write_b32 v26, v24")
        A("ds_write_b32 v26, v25 offset:16")
        A("s_waitcnt lgkmcnt(0)")
        A("s_mov_b64 exec, 1")
        A("ds_write_b32 v27, v28")
        A("s_mov_b64 exec, -1")
        A("s_mov_b32 s57, 0")
        self.lab("L_vloop")
        for t in range(4):
            for k in range(4):
                A(f"v_and_b32 v{BT+4*t+k}, v{SP+k}, v{MSK+t}")
        for k in range(12):
            A(f"v_mov_b32 v{SP+k}, v{SP+k+4}")
        for pp in range(8):
            t, hf = pp >> 1, pp & 1
            A("s_waitcnt vmcnt(28)")
            for e in range(8):
                r = VST + 4 * e + 2 * hf
                A(f"ds_read_b64_tr_b16 v[{r}:{r+1}], v{VRD+e} offset:{pp*4096}")
            A("s_waitcnt lgkmcnt(0)")
            refill(pp)
            if hf == 1:
                for e in range(8):
                    o = OA + 4 * e
                    A(f"v_mfma_f32_16x16x32_bf16 v[{o}:{o+3}], v[{VST+4*e}:{VST+4*e+3}], v[{BT+4*t}:{BT+4*t+3}], v[{o}:{o+3}]")
        A("s_add_u32 s57, s57, 1")
        A("s_cmp_lt_u32 s57, 4")
        A("s_cbranch_scc1 L_vloop")
        self.ts(3, vt=("v24", "v25", "v26"))
        A(f"v_mov_b32 v27, {FINF}")
        A("v_and_b32 v26, 3, v1")
        A(f"v_lshlrev_b32 v26, 2, v26")
        A(f"v_add_u32 v26, {FIN}, v26")
        A(f"s_mov_b32 s50, {self.opt.get('spin', 200000)}")
        self.lab("L_finw")
        A("ds_read_b32 v28, v27")
        A("ds_read_b32 v24, v26")
        A("ds_read_b32 v25, v26 offset:16")
        A("s_waitcnt lgkmcnt(0)")
        A("v_readfirstlane_b32 s57, v28")
        A("s_nop 3")
        A("s_cmp_lg_u32 s57, 0")
        A("s_cbranch_scc1 L_find")
        A("s_sub_u32 s50, s50, 1")
        A("s_cmp_eq_u32 s50, 0")
        A("s_cbranch_scc1 L_find")
        A("s_sleep 1")
        A("s_branch L_finw")
        self.lab("L_find")
        A("v_sub_f32 v24, v22, v24")
        A("v_mul_f32 v24, s59, v24")
        A("v_exp_f32 v24, v24")
        self.nop(1)
        A("v_mul_f32 v24, v24, v25")
        for k in range(32):
            A(f"v_mul_f32 v{OA+k}, v24, v{OA+k}")
        for r in (4, 8):
            for k in range(32):
                A(f"v_add_f32_dpp v{OA+k}, v{OA+k}, v{OA+k} row_ror:{r} row_mask:0xf bank_mask:0xf")
        A("v_and_b32 v26, 3, v1")
        A("v_lshlrev_b32 v26, 9, v26")
        A("v_lshrrev_b32 v27, 4, v1")
        A("v_lshl_add_u32 v26, v27, 4, v26")
        A("s_lshl_b32 s57, s3, 11")
        A(f"s_add_u32 s57, s57, {PART}")
        A("v_add_u32 v26, s57, v26")
        A("s_mov_b32 exec_lo, 0x000f000f")
        A("s_mov_b32 exec_hi, 0x000f000f")
        for e in range(8):
            A(f"ds_write_b128 v26, v[{OA+4*e}:{OA+4*e+3}] offset:{64*e}")
        A("s_mov_b64 exec, -1")
        A("s_waitcnt lgkmcnt(0)")
        A("s_barrier")
        self.ts(4, vt=("v24", "v25", "v26"))
        A("s_waitcnt vmcnt(0)")
        A("s_endpgm")

    def helper(self):
        A = self.A
        X = 8
        T = 16
        XP = 24
        A("v_lshlrev_b32 v2, 4, v1")
        A("v_lshrrev_b32 v3, 1, v1")
        A("v_lshlrev_b32 v3, 13, v3")
        A("v_and_b32 v4, 1, v1")
        A("v_lshl_or_b32 v3, v4, 4, v3")
        A("s_lshl_b32 s48, s42, 10")
        A("s_lshl_b32 s49, s43, 5")
        A("s_add_u32 s48, s48, s49")
        A("v_add_u32 v3, s48, v3")
        A("s_waitcnt lgkmcnt(0)")
        A("global_load_dwordx4 v[24:27], v2, s[16:17]")
        A("s_mov_b32 s52, s22")
        A("s_and_b32 s53, s23, 0xffff")
        A(f"s_mov_b32 s54, {4 << 20}")
        A("s_mov_b32 s55, 0x20000")
        for k in range(16):
            A(f"s_mov_b32 m0, {WQ + 1024*k}")
            A(f"s_mov_b32 s56, {k * 262144}")
            A("buffer_load_dwordx4 v3, s[52:55], s56 offen lds")
        self.ts(0)
        A("s_lshl_b32 s49, s48, 1")
        A(f"s_add_u32 s49, s49, {WS_O}")
        A("v_add_u32 v28, s49, v2")
        for i in range(4):
            A(f"v_mov_b32 v{32+i}, 0")
        A("s_mov_b64 exec, 15")
        A("global_store_dwordx4 v28, v[32:35], s[40:41] sc1")
        A("s_mov_b64 exec, -1")
        A(f"v_lshl_add_u32 v28, v1, 2, {0}")
        A(f"v_add_u32 v28, {MLF}, v28")
        A("s_mov_b64 exec, 0xffff")
        A("ds_write_b32 v28, v32 offset:0")
        A("ds_write_b32 v28, v32 offset:32")
        A("s_mov_b64 exec, -1")
        n_after_x = 17 + (1 if self.opt.get("ts") else 0)
        A(f"s_waitcnt vmcnt({n_after_x})")
        for i in range(4):
            A(f"v_lshlrev_b32 v{X+2*i}, 16, v{XP+i}")
            A(f"v_and_b32 v{X+2*i+1}, 0xffff0000, v{XP+i}")
        self.layernorm(X, T, XP)
        A(f"v_add_u32 v28, {XN}, v2")
        A(f"ds_write_b128 v28, v[{XP}:{XP+3}]")
        A("v_lshrrev_b32 v29, 4, v1")
        A("v_lshlrev_b32 v30, 4, v29")
        A(f"v_add_u32 v30, {XN}, v30")
        A("v_bfe_u32 v31, v1, 2, 2")
        A("v_lshl_add_u32 v31, v29, 3, v31")
        A("v_lshlrev_b32 v31, 5, v31")
        A("v_and_b32 v29, 3, v1")
        A("v_lshl_add_u32 v31, v29, 3, v31")
        A(f"v_add_u32 v31, {WQ}, v31")
        A("s_waitcnt lgkmcnt(0)")
        XO = 64
        WO = 128
        for m in range(16):
            A(f"ds_read_b128 v[{XO+4*m}:{XO+4*m+3}], v30 offset:{64*m}")
        A("s_waitcnt vmcnt(0)")
        self.ts(1)
        for m in range(16):
            A(f"ds_read_b64_tr_b16 v[{WO+4*m}:{WO+4*m+1}], v31 offset:{1024*m}")
            A(f"ds_read_b64_tr_b16 v[{WO+4*m+2}:{WO+4*m+3}], v31 offset:{1024*m+128}")
            if m % 4 == 3:
                A("s_waitcnt lgkmcnt(0)")
                for mm in range(m - 3, m + 1):
                    c = "0" if mm == 0 else "v[32:35]"
                    A(f"v_mfma_f32_16x16x32_bf16 v[32:35], v[{WO+4*mm}:{WO+4*mm+3}], v[{XO+4*mm}:{XO+4*mm+3}], {c}")
        A("v_lshrrev_b32 v29, 4, v1")
        A("v_lshlrev_b32 v29, 3, v29")
        A("v_add_u32 v29, s48, v29")
        self.nop(8)
        A("v_cvt_pk_bf16_f32 v36, v32, v33")
        A("v_cvt_pk_bf16_f32 v37, v34, v35")
        A("s_mov_b32 exec_lo, 0x00010001")
        A("s_mov_b32 exec_hi, 0x00010001")
        A("global_store_dwordx2 v29, v[36:37], s[40:41] sc1")
        A("s_mov_b64 exec, -1")
        A("s_waitcnt vmcnt(0)")
        self.set_flag(1)
        self.ts(2)
        A("v_and_b32 v3, 1, v1")
        A("v_lshlrev_b32 v3, 4, v3")
        A("s_lshl_b32 s49, s42, 5")
        A("v_add_u32 v3, s49, v3")
        self.poll_flags("q", "v3", 1, True)
        self.ts(3)
        A("s_lshl_b32 s49, s42, 10")
        A("v_add_u32 v28, s49, v2")
        A("global_load_dwordx4 v[32:35], v28, s[40:41] sc1")
        A(f"v_add_u32 v28, {QS}, v2")
        A("s_waitcnt vmcnt(0)")
        A("ds_write_b128 v28, v[32:35]")
        A("s_waitcnt lgkmcnt(0)")
        A("s_barrier")
        self.ts(4)
        for a, (lo, base) in enumerate(((28, WQ), (30, WQ + 4096), (32, WQ + 8192))):
            A(f"s_mov_b32 s52, s{lo}")
            A(f"s_and_b32 s53, s{lo+1}, 0xffff")
            A("s_mov_b32 s54, 3584")
            A("s_mov_b32 s55, 0x20000")
            A(f"s_mov_b32 m0, {base}")
            A("s_nop 0")
            for q in range(4):
                A(f"buffer_load_dwordx4 v2, s[52:55], 0 offen offset:{1024*q} lds")
        A("s_lshl_b32 s51, s42, 7")
        A("s_lshl_b32 s49, s43, 2")
        A("s_add_u32 s51, s51, s49")
        A("v_mov_b32 v28, s51")
        A("global_load_dword v40, v28, s[16:17]")
        A("v_mov_b32 v29, 0")
        A("global_load_ushort v41, v29, s[34:35]")
        self.layernorm(X, T, XP)
        A(f"v_add_u32 v28, {XN}, v2")
        A(f"ds_write_b128 v28, v[{XP}:{XP+3}]")
        A(f"v_mov_b32 v28, s51")
        A(f"v_add_u32 v28, {XN}, v28")
        A("s_waitcnt lgkmcnt(0)")
        A("ds_read_b32 v42, v28")
        A("s_waitcnt vmcnt(0) lgkmcnt(0)")
        A("s_mov_b32 s52, s24")
        A("s_and_b32 s53, s25, 0xffff")
        A(f"s_mov_b32 s54, {4 << 20}")
        A("s_mov_b32 s55, 0x20000")
        A("v_lshlrev_b32 v28, 12, v1")
        A("v_add_u32 v28, s51, v28")
        WR = 64
        for i in range(16):
            A(f"s_mov_b32 s56, {i * 262144}")
            if i == 15:
                A("s_waitcnt vmcnt(32)")
            for c in range(4):
                A(f"buffer_load_dword v{WR+4*i+c}, v28, s[52:55], s56 offen offset:{1024*c}")
        A("v_lshlrev_b32 v44, 16, v42")
        A("v_and_b32 v45, 0xffff0000, v42")
        A("v_mov_b32 v46, 0")
        A("v_mov_b32 v47, 0")
        A(f"v_lshl_add_u32 v28, v1, 2, 0")
        A(f"v_add_u32 v28, {WQ}, v28")
        A("s_mov_b32 s57, 14")
        c1 = -2.0 * 0.7978845608028654 * LOG2E
        A(f"s_mov_b32 s58, {f32(c1)}")
        A(f"s_mov_b32 s59, {f32(c1 * 0.044715)}")
        self.lab("L_gate")
        A("ds_read_b32 v48, v28")
        A("ds_read_b32 v49, v28 offset:4096")
        A("ds_read_b32 v50, v28 offset:8192")
        A("v_add_u32 v28, 256, v28")
        A("s_waitcnt lgkmcnt(0)")
        A("v_lshlrev_b32 v51, 16, v48")
        A("v_and_b32 v52, 0xffff0000, v48")
        A("v_lshlrev_b32 v53, 16, v49")
        A("v_and_b32 v54, 0xffff0000, v49")
        A("v_lshlrev_b32 v55, 16, v50")
        A("v_and_b32 v56, 0xffff0000, v50")
        U = [8, 9, 10, 11]
        Z = [12, 13, 14, 15]
        combos = [(44, 51, 53, 55, 46), (44, 52, 54, 56, 46), (45, 51, 53, 55, 47), (45, 52, 54, 56, 47)]
        for k, (h, w1, b1, w2, acc) in enumerate(combos):
            A(f"v_mul_f32 v{U[k]}, v{h}, v{w1}")
        for k in range(4):
            self.bf16r(f"v{U[k]}")
        for k, (h, w1, b1, w2, acc) in enumerate(combos):
            A(f"v_add_f32 v{U[k]}, v{U[k]}, v{b1}")
        for k in range(4):
            self.bf16r(f"v{U[k]}")
        for k in range(4):
            A(f"v_mul_f32 v{Z[k]}, v{U[k]}, v{U[k]}")
        for k in range(4):
            A(f"v_mul_f32 v{Z[k]}, s59, v{Z[k]}")
        for k in range(4):
            A(f"v_add_f32 v{Z[k]}, s58, v{Z[k]}")
        for k in range(4):
            A(f"v_mul_f32 v{Z[k]}, v{Z[k]}, v{U[k]}")
        for k in range(4):
            A(f"v_exp_f32 v{Z[k]}, v{Z[k]}")
        self.nop(1)
        for k in range(4):
            A(f"v_add_f32 v{Z[k]}, 1.0, v{Z[k]}")
        for k in range(4):
            A(f"v_rcp_f32 v{Z[k]}, v{Z[k]}")
        self.nop(1)
        for k in range(4):
            A(f"v_mul_f32 v{U[k]}, v{U[k]}, v{Z[k]}")
        for k in range(4):
            self.bf16r(f"v{U[k]}")
        for k, (h, w1, b1, w2, acc) in enumerate(combos):
            A(f"v_fmac_f32 v{acc}, v{U[k]}, v{w2}")
        A("s_sub_u32 s57, s57, 1")
        A("s_cmp_lg_u32 s57, 0")
        A("s_cbranch_scc1 L_gate")
        self.allreduce64("add", "v46", "v16")
        self.allreduce64("add", "v47", "v16")
        A("v_lshlrev_b32 v41, 16, v41")
        A(f"s_mov_b32 s59, {f32(LOG2E)}")
        for a in (46, 47):
            self.bf16r(f"v{a}")
            A(f"v_add_f32 v{a}, v{a}, v41")
            self.bf16r(f"v{a}")
            A(f"v_mul_f32 v16, s59, v{a}")
            A("v_exp_f32 v16, -v16")
            self.nop(1)
            A("v_add_f32 v16, 1.0, v16")
            A("v_rcp_f32 v17, v16")
            self.nop(1)
            A(f"v_mul_f32 v18, v{a}, v17")
            A(f"v_fma_f32 v19, -v18, v16, v{a}")
            A("v_fma_f32 v19, v19, v17, v18")
            A("v_cmp_gt_f32 vcc, 0x7f000000, v16")
            self.nop(2)
            A(f"v_cndmask_b32 v{a}, v18, v19, vcc")
            self.bf16r(f"v{a}")
        WP = 128
        A("s_waitcnt vmcnt(0)")
        A("s_mov_b32 s56, 0x05040100")
        A("s_mov_b32 s57, 0x07060302")
        for i in range(16):
            for hh in range(2):
                r0, r1 = WR + 4 * i + 2 * hh, WR + 4 * i + 2 * hh + 1
                A(f"v_perm_b32 v{WP+4*i+2*hh}, v{r1}, v{r0}, s56")
                A(f"v_perm_b32 v{WP+4*i+2*hh+1}, v{r1}, v{r0}, s57")
        self.ts(5)
        A(f"v_mov_b32 v28, {MLF}")
        A("v_and_b32 v29, 3, v1")
        A("v_lshlrev_b32 v29, 2, v29")
        A(f"v_add_u32 v29, {ML}, v29")
        A(f"s_mov_b32 s50, {self.opt.get('spin', 200000)}")
        self.lab("L_mlw")
        A("ds_read_b128 v[4:7], v28")
        for w in range(4):
            A(f"ds_read_b32 v{8+w}, v29 offset:{32*w}")
            A(f"ds_read_b32 v{12+w}, v29 offset:{32*w+16}")
        A("s_waitcnt lgkmcnt(0)")
        A("v_and_b32 v4, v4, v5")
        A("v_and_b32 v6, v6, v7")
        A("v_and_b32 v4, v4, v6")
        A("s_nop 0")
        A("v_readfirstlane_b32 s57, v4")
        A("s_nop 3")
        A("s_cmp_lg_u32 s57, 0")
        A("s_cbranch_scc1 L_mld")
        A("s_sub_u32 s50, s50, 1")
        A("s_cmp_eq_u32 s50, 0")
        A("s_cbranch_scc1 L_mld")
        A("s_sleep 8")
        A("s_branch L_mlw")
        self.lab("L_mld")
        self.ts(6)
        A("v_max3_f32 v16, v8, v9, v10")
        A("v_max_f32 v16, v16, v11")
        for w in range(4):
            A(f"v_sub_f32 v{8+w}, v{8+w}, v16")
        for w in range(4):
            A(f"v_mul_f32 v{8+w}, s59, v{8+w}")
        for w in range(4):
            A(f"v_exp_f32 v{8+w}, v{8+w}")
        self.nop(1)
        A("v_mul_f32 v17, v8, v12")
        for w in range(1, 4):
            A(f"v_fmac_f32 v17, v{8+w}, v{12+w}")
        A("s_lshl_b32 s49, s47, 5")
        A(f"s_add_u32 s49, s49, {WS_ML}")
        A("v_lshlrev_b32 v28, 3, v1")
        A("v_add_u32 v28, s49, v28")
        A("s_mov_b64 exec, 15")
        A("global_store_dwordx2 v28, v[16:17], s[40:41] sc1")
        A("s_mov_b64 exec, -1")
        A("s_waitcnt vmcnt(0)")
        self.set_flag(3)
        self.poll_flags("ml", "v3", 2, True)
        self.ts(7)
        A("s_lshl_b32 s49, s42, 10")
        A(f"s_add_u32 s49, s49, {WS_ML}")
        A("v_lshlrev_b32 v28, 3, v1")
        A("v_add_u32 v28, s49, v28")
        A("global_load_dwordx2 v[8:9], v28, s[40:41] sc1")
        A("global_load_dwordx2 v[10:11], v28, s[40:41] offset:512 sc1")
        A("s_waitcnt vmcnt(0)")
        A("v_max_f32 v16, v8, v10")
        for r in (4, 8):
            self.nop(2)
            A(f"v_max_f32_dpp v16, v16, v16 row_ror:{r} row_mask:0xf bank_mask:0xf")
        self.rows_reduce("max", "v16", "v17")
        A("v_sub_f32 v8, v8, v16")
        A("v_sub_f32 v10, v10, v16")
        A("v_mul_f32 v8, s59, v8")
        A("v_mul_f32 v10, s59, v10")
        A("v_exp_f32 v8, v8")
        A("v_exp_f32 v10, v10")
        self.nop(1)
        A("v_mul_f32 v17, v8, v9")
        A("v_fmac_f32 v17, v10, v11")
        for r in (4, 8):
            self.nop(2)
            A(f"v_add_f32_dpp v17, v17, v17 row_ror:{r} row_mask:0xf bank_mask:0xf")
        self.rows_reduce("add", "v17", "v18")
        A("v_rcp_f32 v18, v17")
        self.nop(1)
        A("v_fma_f32 v19, -v17, v18, 1.0")
        A("v_fmac_f32 v18, v19, v18")
        A("v_lshlrev_b32 v28, 2, v1")
        A(f"v_add_u32 v28, {FIN}, v28")
        A(f"v_mov_b32 v29, {FINF}")
        A("v_mov_b32 v30, 1")
        A("s_mov_b64 exec, 15")
        A("ds_write_b32 v28, v16")
        A("ds_write_b32 v28, v18 offset:16")
        A("s_waitcnt lgkmcnt(0)")
        A("s_mov_b64 exec, 1")
        A("ds_write_b32 v29, v30")
        A("s_mov_b64 exec, -1")
        A("v_lshlrev_b32 v28, 2, v1")
        A(f"v_add_u32 v29, {PART}, v28")
        A("s_lshl_b32 s49, s42, 11")
        A(f"s_add_u32 s49, s49, {WS_O}")
        A("v_add_u32 v30, s49, v28")
        A(f"v_add_u32 v31, {WS_O}, v2")
        A("s_waitcnt lgkmcnt(0)")
        self.ts(8)
        A("s_barrier")
        self.ts(9)
        PR = 64
        for k in range(8):
            for w in range(4):
                A(f"ds_read_b32 v{PR+4*k+w}, v29 offset:{2048*w + 256*k}")
        for k in range(8):
            A(f"s_waitcnt lgkmcnt({min(15, 4*(7-k))})")
            A(f"v_add_f32 v{PR+4*k}, v{PR+4*k}, v{PR+4*k+1}")
            A(f"v_add_f32 v{PR+4*k+2}, v{PR+4*k+2}, v{PR+4*k+3}")
            A(f"v_add_f32 v{PR+4*k}, v{PR+4*k}, v{PR+4*k+2}")
            A(f"global_atomic_add_f32 v30, v{PR+4*k}, s[40:41] offset:{256*k} sc1")
        A("s_waitcnt vmcnt(0)")
        self.set_flag(7)
        self.ts(10)
        self.poll_flags("fin", "v28", 4, False)
        self.ts(11)
        OR = 64
        for i in range(16):
            off = 1024 * i
            if i and i % 4 == 0:
                A("v_add_u32 v31, 4096, v31")
            A(f"global_load_dwordx4 v[{OR+4*i}:{OR+4*i+3}], v31, s[40:41] offset:{off % 4096} sc1")
        A("v_mov_b32 v8, 0")
        A("v_mov_b32 v9, 0")
        A("v_mov_b32 v10, 0")
        A("v_mov_b32 v11, 0")
        for i in range(16):
            A(f"s_waitcnt vmcnt({15-i})")
            A(f"v_cvt_pk_bf16_f32 v12, v{OR+4*i}, v{OR+4*i+1}")
            A(f"v_cvt_pk_bf16_f32 v13, v{OR+4*i+2}, v{OR+4*i+3}")
            A(f"v_dot2c_f32_bf16 v8, v12, v{WP+4*i}")
            A(f"v_dot2c_f32_bf16 v9, v12, v{WP+4*i+1}")
            A(f"v_dot2c_f32_bf16 v10, v13, v{WP+4*i+2}")
            A(f"v_dot2c_f32_bf16 v11, v13, v{WP+4*i+3}")
        self.nop(3)
        A("v_add_f32 v8, v8, v10")
        A("v_add_f32 v9, v9, v11")
        self.allreduce64("add", "v8", "v16")
        self.allreduce64("add", "v9", "v16")
        self.bf16r("v8")
        self.bf16r("v9")
        A("v_mul_f32 v8, v8, v46")
        A("v_mul_f32 v9, v9, v47")
        self.bf16r("v8")
        self.bf16r("v9")
        A("v_lshlrev_b32 v10, 16, v40")
        A("v_and_b32 v11, 0xffff0000, v40")
        A("v_add_f32 v8, v8, v10")
        A("v_add_f32 v9, v9, v11")
        A("v_cvt_pk_bf16_f32 v8, v8, v9")
        A("v_mov_b32 v28, s51")
        A("s_mov_b64 exec, 1")
        A("global_store_dword v28, v8, s[36:37]")
        A("s_mov_b64 exec, -1")
        self.ts(12)


if __name__ == "__main__":
    out = sys.argv[1]
    opt = {}
    for a in sys.argv[2:]:
        k, _, v = a.partition("=")
        opt[k] = (int(v) if v.lstrip("-").isdigit() else v) if v else True
    open(out, "w").write(G(**opt).gen())
```

```python
import sys, struct
from gen import G, NAME, HEADER, f32, LOG2E, SCALE

RING = 0
WQ = 131072
PART = WQ
WST = 147456
XN = 159744
FP = XN
QS = 160768
ML = 161792
MLF = ML + 128
FIN = ML + 160
FINF = ML + 192
GS = ML + 256
LDS_BYTES = 162304

WS_Q = 0
WS_ML = 8192
WS_O = 16384
WS_SYNC = 32768
WS_GFIN = 32768 + 4096
WS_TS = 65536


class G2(G):
    def gen(self):
        A = self.A
        opt = self.opt
        NT = opt.get("nt", "nt")
        self.L.append(HEADER.rstrip("\n"))
        self.L.append(f"; @launch grid=(256,1,1) block=(512,1,1) lds={LDS_BYTES}")
        self.L.append('.amdgcn_target "amdgcn-amd-amdhsa--gfx950"')
        self.L.append(".text")
        self.L.append(f".globl {NAME}_kernel")
        self.L.append(".p2align 8")
        self.L.append(f".type {NAME}_kernel,@function")
        self.lab(f"{NAME}_kernel")
        A("s_cmp_ge_u32 s2, 256")
        A("s_cbranch_scc1 L_end")
        if opt.get("ts"):
            A("s_memrealtime s[66:67]")
        A("s_load_dwordx16 s[16:31], s[0:1], 0")
        A("s_load_dwordx8 s[32:39], s[0:1], 64")
        A("s_load_dwordx2 s[40:41], s[0:1], 96")
        A("v_lshrrev_b32 v1, 6, v0")
        A("s_and_b32 s42, s2, 7")
        A("v_readfirstlane_b32 s3, v1")
        A("s_lshr_b32 s43, s2, 3")
        A("v_and_b32 v1, 63, v0")
        A("s_lshl_b32 s47, s42, 5")
        A("s_add_u32 s47, s47, s43")
        if opt.get("ts"):
            A("s_lshl_b32 s62, s2, 3")
            A("s_add_u32 s62, s62, s3")
            A("s_lshl_b32 s62, s62, 8")
            A(f"s_add_u32 s62, s62, {WS_TS}")
        A("s_cmp_lt_u32 s3, 4")
        A("s_cbranch_scc1 L_helper")
        self.stream(NT)
        self.lab("L_helper")
        self.helper()
        self.lab("L_end")
        A("s_endpgm")
        self.L.append('.section .rodata,"a"')
        self.L.append(".p2align 6")
        self.L.append(f".amdhsa_kernel {NAME}_kernel")
        for s in ("next_free_vgpr 256", "next_free_sgpr 80", "accum_offset 256", "group_segment_fixed_size 0",
                  "kernarg_size 104", "user_sgpr_count 2", "user_sgpr_kernarg_segment_ptr 1",
                  "system_sgpr_workgroup_id_x 1", "float_denorm_mode_32 3"):
            self.L.append("  .amdhsa_" + s)
        self.L.append(".end_amdhsa_kernel")
        return "\n".join(self.L) + "\n"

    def ts_entry(self, vt=("v250", "v251", "v252")):
        if not self.opt.get("ts"):
            return
        A = self.A
        A(f"v_mov_b32 {vt[0]}, s66")
        A(f"v_mov_b32 {vt[1]}, s67")
        A(f"v_mov_b32 {vt[2]}, s62")
        A("s_mov_b64 s[64:65], exec")
        A("s_mov_b64 exec, 1")
        n0 = int(vt[0][1:])
        A(f"global_store_dwordx2 {vt[2]}, v[{n0}:{n0+1}], s[40:41] offset:{15*8}")
        A("s_mov_b64 exec, s[64:65]")

    def spin_init(self):
        self.A(f"s_mov_b32 s50, {self.opt.get('spin', 200000)}")

    def spin_tail(self, again, done, sleep):
        A = self.A
        A("s_sub_u32 s50, s50, 1")
        A("s_cmp_eq_u32 s50, 0")
        A(f"s_cbranch_scc1 {done}")
        A(f"s_sleep {sleep}")
        A(f"s_branch {again}")

    def stream(self, NT):
        A = self.A
        opt = self.opt
        VOFF = 2; KRD = 6; VRD = 10; MSK = 18
        KST = 24; VST = 56; DA = 88; SP = 96; BT = 112; BQ = 128; OA = 192; SC = 224
        BUF = [24, 40, 56, 72, 112, 192, 208, 224]
        QT = 240
        A("s_sub_u32 s3, s3, 4")
        A("v_lshrrev_b32 v22, 4, v1")
        A("v_and_b32 v23, 15, v1")
        for q in range(4):
            c = 8 * (q & 1) + (q >> 1)
            A(f"v_lshl_or_b32 v{VOFF+q}, v22, 1, {c}")
            A(f"v_xor_b32 v{VOFF+q}, v{VOFF+q}, v23")
            A(f"v_lshlrev_b32 v{VOFF+q}, 4, v{VOFF+q}")
            A(f"v_lshl_or_b32 v{VOFF+q}, v22, 8, v{VOFF+q}")
        A("s_lshl_b32 s48, s3, 15")
        A("s_lshl_b32 s49, s43, 2")
        A("s_add_u32 s49, s49, s3")
        A("s_lshl_b32 s49, s49, 12")
        A("s_lshl_b32 s51, s42, 24")
        A("s_waitcnt lgkmcnt(0)")
        A("s_add_u32 s52, s18, s51")
        A("s_addc_u32 s53, s19, 0")
        A("s_and_b32 s53, s53, 0xffff")
        A("s_add_u32 s54, s20, s51")
        A("s_addc_u32 s55, s21, 0")
        A("s_and_b32 s55, s55, 0xffff")
        A("s_mov_b32 s44, s52")
        A("s_mov_b32 s45, s53")
        A(f"s_mov_b32 s46, {1 << 24}")
        A("s_mov_b32 s47, 0x20000")
        A("s_mov_b32 s56, s49")
        if opt.get("hfirst"):
            A("s_barrier")

        def refill(pp):
            A(f"s_add_u32 m0, s48, {pp*4096}")
            A("s_nop 0")
            for q in range(4):
                A(f"buffer_load_dwordx4 v{VOFF+q}, s[44:47], s56 offen offset:{q*1024} {NT} lds")
            A(f"s_add_u32 s56, s56, {512*1024}")

        for pp in range(8):
            refill(pp)
        self.ts_entry()
        self.ts(0)
        A("v_and_b32 v24, 7, v23")
        A("v_lshlrev_b32 v24, 1, v24")
        A("v_lshrrev_b32 v25, 3, v23")
        A("v_or_b32 v24, v24, v25")
        A("v_lshlrev_b32 v25, 8, v23")
        A("v_add_u32 v25, s48, v25")
        for u in range(4):
            A(f"v_lshl_or_b32 v26, v22, 2, {u}")
            A("v_xor_b32 v26, v26, v24")
            A(f"v_lshl_add_u32 v{KRD+u}, v26, 4, v25")
        A("v_lshrrev_b32 v26, 2, v1")
        A("v_and_b32 v24, 7, v26")
        A("v_lshlrev_b32 v24, 1, v24")
        A("v_lshrrev_b32 v25, 3, v26")
        A("v_or_b32 v24, v24, v25")
        A("v_bfe_u32 v27, v1, 1, 1")
        A("v_xor_b32 v24, v24, v27")
        A("v_and_b32 v27, 1, v1")
        A("v_lshlrev_b32 v27, 3, v27")
        A("v_lshl_add_u32 v25, v26, 8, v27")
        A("v_add_u32 v25, s48, v25")
        for e in range(8):
            A(f"v_xor_b32 v26, {2*e}, v24")
            A(f"v_lshl_add_u32 v{VRD+e}, v26, 4, v25")
        A("v_lshrrev_b32 v26, 2, v23")
        for t in range(4):
            A(f"v_cmp_eq_u32 vcc, {t}, v26")
            self.nop(2)
            A(f"v_cndmask_b32 v{MSK+t}, 0, -1, vcc")
        A("v_and_b32 v26, 3, v1")
        A("v_lshlrev_b32 v26, 8, v26")
        A("v_lshl_add_u32 v26, v22, 6, v26")
        A(f"v_add_u32 v23, {QS}, v26")
        A(f"s_mov_b32 s58, {f32(SCALE)}")
        A("s_mov_b32 s57, 0")
        for pp in range(8):
            A("s_waitcnt vmcnt(28)")
            for u in range(4):
                r = BUF[pp] + 4 * u
                A(f"ds_read_b128 v[{r}:{r+3}], v{KRD+u} offset:{pp*4096}")
            A("s_waitcnt lgkmcnt(0)")
            refill(pp)
        self.ts(5)
        A("s_barrier")
        self.ts(1)
        for u in range(4):
            A(f"ds_read_b128 v[{QT+4*u}:{QT+4*u+3}], v23 offset:{16*u}")
        A("s_waitcnt lgkmcnt(0)")
        for t in range(4):
            for k in range(16):
                A(f"v_and_b32 v{BQ+16*t+k}, v{QT+k}, v{MSK+t}")
        self.nop(2)
        for pp in range(8):
            t, hf = pp >> 1, pp & 1
            d = DA + 4 * hf
            for u in range(4):
                c = "0" if (t == 0 and u == 0) else f"v[{d}:{d+3}]"
                r = BUF[pp] + 4 * u
                A(f"v_mfma_f32_16x16x32_bf16 v[{d}:{d+3}], v[{r}:{r+3}], v[{BQ+16*t+4*u}:{BQ+16*t+4*u+3}], {c}")
        A("s_branch L_kpost")
        self.lab("L_kloop")
        A("s_cmp_eq_u32 s57, 3")
        A("s_cselect_b32 s44, s54, s52")
        A("s_cselect_b32 s45, s55, s53")
        A("s_cselect_b32 s56, s49, s56")
        for pp in range(8):
            t, hf = pp >> 1, pp & 1
            A("s_waitcnt vmcnt(28)")
            for u in range(4):
                A(f"ds_read_b128 v[{KST+4*u}:{KST+4*u+3}], v{KRD+u} offset:{pp*4096}")
            A("s_waitcnt lgkmcnt(0)")
            refill(pp)
            d = DA + 4 * hf
            for u in range(4):
                c = "0" if (t == 0 and u == 0) else f"v[{d}:{d+3}]"
                A(f"v_mfma_f32_16x16x32_bf16 v[{d}:{d+3}], v[{KST+4*u}:{KST+4*u+3}], v[{BQ+16*t+4*u}:{BQ+16*t+4*u+3}], {c}")
        self.lab("L_kpost")
        for k in range(12):
            A(f"v_mov_b32 v{SP+k}, v{SP+k+4}")
        for k in range(4):
            A(f"v_cvt_pk_bf16_f32 v{QT+k}, v{DA+2*k}, v{DA+2*k+1}")
        for k in range(4):
            A(f"v_lshlrev_b32 v{QT+4+2*k}, 16, v{QT+k}")
            A(f"v_and_b32 v{QT+5+2*k}, 0xffff0000, v{QT+k}")
        for k in range(8):
            A(f"v_mul_f32 v{QT+4+k}, s58, v{QT+4+k}")
        for k in range(4):
            A(f"v_cvt_pk_bf16_f32 v{SP+12+k}, v{QT+4+2*k}, v{QT+5+2*k}")
        A("s_add_u32 s57, s57, 1")
        A("s_cmp_lt_u32 s57, 4")
        A("s_cbranch_scc1 L_kloop")
        self.ts(2, vt=("v24", "v25", "v26"))
        for k in range(16):
            A(f"v_lshlrev_b32 v{SC+2*k}, 16, v{SP+k}")
            A(f"v_and_b32 v{SC+2*k+1}, 0xffff0000, v{SP+k}")
        A(f"v_max3_f32 v24, v{SC}, v{SC+1}, v{SC+2}")
        A(f"v_max3_f32 v25, v{SC+3}, v{SC+4}, v{SC+5}")
        for k in range(6, 30, 4):
            A(f"v_max3_f32 v24, v24, v{SC+k}, v{SC+k+1}")
            A(f"v_max3_f32 v25, v25, v{SC+k+2}, v{SC+k+3}")
        A(f"v_max3_f32 v24, v24, v{SC+30}, v{SC+31}")
        A("v_max_f32 v24, v24, v25")
        for r in (4, 8):
            self.nop(2)
            A(f"v_max_f32_dpp v24, v24, v24 row_ror:{r} row_mask:0xf bank_mask:0xf")
        self.rows_reduce("max", "v24", "v25")
        A(f"s_mov_b32 s59, {f32(LOG2E)}")
        for k in range(32):
            A(f"v_sub_f32 v{SC+k}, v{SC+k}, v24")
        for k in range(32):
            A(f"v_mul_f32 v{SC+k}, s59, v{SC+k}")
        for k in range(32):
            A(f"v_exp_f32 v{SC+k}, v{SC+k}")
        self.nop(1)
        for k in range(16):
            A(f"v_cvt_pk_bf16_f32 v{SP+k}, v{SC+2*k}, v{SC+2*k+1}")
        st = 16
        while st >= 1:
            for k in range(st):
                A(f"v_add_f32 v{SC+k}, v{SC+k}, v{SC+k+st}")
            st >>= 1
        A(f"v_mov_b32 v25, v{SC}")
        for r in (4, 8):
            self.nop(2)
            A(f"v_add_f32_dpp v25, v25, v25 row_ror:{r} row_mask:0xf bank_mask:0xf")
        self.rows_reduce("add", "v25", "v26")
        A("v_mov_b32 v22, v24")
        A("s_lshl_b32 s57, s3, 5")
        A(f"s_add_u32 s57, s57, {ML}")
        A("v_lshl_add_u32 v26, v1, 2, s57")
        A("s_lshl_b32 s57, s3, 2")
        A(f"s_add_u32 s57, s57, {MLF}")
        A("v_mov_b32 v27, s57")
        A("v_mov_b32 v28, 1")
        A("s_mov_b64 exec, 15")
        A("ds_write_b32 v26, v24")
        A("ds_write_b32 v26, v25 offset:16")
        A("s_waitcnt lgkmcnt(0)")
        A("s_mov_b64 exec, 1")
        A("ds_write_b32 v27, v28")
        A("s_mov_b64 exec, -1")
        for i in range(32):
            A(f"v_mov_b32 v{OA+i}, 0")
        A("s_mov_b32 s57, 0")
        self.lab("L_vloop")
        for t in range(4):
            for k in range(4):
                A(f"v_and_b32 v{BT+4*t+k}, v{SP+k}, v{MSK+t}")
        for k in range(12):
            A(f"v_mov_b32 v{SP+k}, v{SP+k+4}")
        for pp in range(8):
            t, hf = pp >> 1, pp & 1
            A("s_waitcnt vmcnt(28)")
            for e in range(8):
                r = VST + 4 * e + 2 * hf
                A(f"ds_read_b64_tr_b16 v[{r}:{r+1}], v{VRD+e} offset:{pp*4096}")
            A("s_waitcnt lgkmcnt(0)")
            refill(pp)
            if hf == 1:
                for e in range(8):
                    o = OA + 4 * e
                    A(f"v_mfma_f32_16x16x32_bf16 v[{o}:{o+3}], v[{VST+4*e}:{VST+4*e+3}], v[{BT+4*t}:{BT+4*t+3}], v[{o}:{o+3}]")
        A("s_add_u32 s57, s57, 1")
        A("s_cmp_lt_u32 s57, 4")
        A("s_cbranch_scc1 L_vloop")
        self.ts(3, vt=("v24", "v25", "v26"))
        A(f"v_mov_b32 v27, {FINF}")
        A("v_and_b32 v26, 3, v1")
        A(f"v_lshlrev_b32 v26, 2, v26")
        A(f"v_add_u32 v26, {FIN}, v26")
        self.spin_init()
        self.lab("L_finw")
        A("ds_read_b32 v28, v27")
        A("ds_read_b32 v24, v26")
        A("ds_read_b32 v25, v26 offset:16")
        A("s_waitcnt lgkmcnt(0)")
        A("v_readfirstlane_b32 s57, v28")
        A("s_nop 3")
        A("s_cmp_lg_u32 s57, 0")
        A("s_cbranch_scc1 L_find")
        self.spin_tail("L_finw", "L_find", 1)
        self.lab("L_find")
        A("v_sub_f32 v24, v22, v24")
        A("v_mul_f32 v24, s59, v24")
        A("v_exp_f32 v24, v24")
        self.nop(1)
        A("v_mul_f32 v24, v24, v25")
        for k in range(32):
            A(f"v_mul_f32 v{OA+k}, v24, v{OA+k}")
        for r in (4, 8):
            for k in range(32):
                A(f"v_add_f32_dpp v{OA+k}, v{OA+k}, v{OA+k} row_ror:{r} row_mask:0xf bank_mask:0xf")
        A("v_and_b32 v26, 3, v1")
        A("v_lshlrev_b32 v26, 9, v26")
        A("v_lshrrev_b32 v27, 4, v1")
        A("v_lshl_add_u32 v26, v27, 4, v26")
        A("s_lshl_b32 s57, s3, 11")
        A(f"s_add_u32 s57, s57, {PART}")
        A("v_add_u32 v26, s57, v26")
        A("s_mov_b32 exec_lo, 0x000f000f")
        A("s_mov_b32 exec_hi, 0x000f000f")
        for e in range(8):
            A(f"ds_write_b128 v26, v[{OA+4*e}:{OA+4*e+3}] offset:{64*e}")
        A("s_mov_b64 exec, -1")
        A("s_waitcnt lgkmcnt(0)")
        A("s_barrier")
        self.ts(4, vt=("v24", "v25", "v26"))
        A("s_waitcnt vmcnt(0)")
        A("s_endpgm")

    def helper(self):
        A = self.A
        opt = self.opt
        X = 8; T = 16; XP = 24
        tsn = 1 if opt.get("ts") else 0
        A("s_and_b32 s63, s43, 3")
        A("v_lshlrev_b32 v2, 4, v1")
        A("s_lshl_b32 s51, s42, 7")
        A("s_lshl_b32 s49, s43, 2")
        A("s_add_u32 s51, s51, s49")
        A("s_cmp_eq_u32 s3, 0")
        A("s_cbranch_scc1 L_h0")
        A("s_cmp_lg_u32 s63, 0")
        A("s_cbranch_scc1 L_end")
        A("s_waitcnt lgkmcnt(0)")
        if opt.get("hfirst"):
            A("s_barrier")
        A("global_load_dwordx4 v[24:27], v2, s[16:17]")
        A("s_cmp_lg_u32 s3, 1")
        A("s_cbranch_scc1 L_h_now")
        for a, (lo, base) in enumerate(((28, WST), (30, WST + 4096), (32, WST + 8192))):
            A(f"s_mov_b32 s52, s{lo}")
            A(f"s_and_b32 s53, s{lo+1}, 0xffff")
            A("s_mov_b32 s54, 3584")
            A("s_mov_b32 s55, 0x20000")
            A(f"s_mov_b32 m0, {base}")
            A("s_nop 0")
            for q in range(4):
                A(f"buffer_load_dwordx4 v2, s[52:55], 0 offen offset:{1024*q} lds")
        self.lab("L_h_now")
        A("s_waitcnt vmcnt(0)")
        for i in range(4):
            A(f"v_lshlrev_b32 v{X+2*i}, 16, v{XP+i}")
            A(f"v_and_b32 v{X+2*i+1}, 0xffff0000, v{XP+i}")
        A("s_branch L_ln1")
        self.lab("L_h0")
        A("v_lshrrev_b32 v3, 1, v1")
        A("v_lshlrev_b32 v3, 13, v3")
        A("v_and_b32 v4, 1, v1")
        A("v_lshl_or_b32 v3, v4, 4, v3")
        A("s_lshl_b32 s48, s42, 10")
        A("s_lshl_b32 s49, s43, 5")
        A("s_add_u32 s48, s48, s49")
        A("v_add_u32 v3, s48, v3")
        A("s_waitcnt lgkmcnt(0)")
        A("global_load_dwordx4 v[24:27], v2, s[16:17]")
        A("s_mov_b32 s52, s22")
        A("s_and_b32 s53, s23, 0xffff")
        A(f"s_mov_b32 s54, {4 << 20}")
        A("s_mov_b32 s55, 0x20000")
        for k in range(16):
            A(f"s_mov_b32 m0, {WQ + 1024*k}")
            A(f"s_mov_b32 s56, {k * 262144}")
            A(f"buffer_load_dwordx4 v3, s[52:55], s56 offen {opt.get('wqnt', '')} lds")
        if opt.get("hfirst"):
            A("s_barrier")
        self.ts_entry()
        self.ts(0)
        A("s_lshl_b32 s49, s48, 1")
        A(f"s_add_u32 s49, s49, {WS_O}")
        A("v_add_u32 v28, s49, v2")
        for i in range(4):
            A(f"v_mov_b32 v{32+i}, 0")
        A("s_mov_b64 exec, 15")
        A("global_store_dwordx4 v28, v[32:35], s[40:41] sc1")
        A("s_mov_b64 exec, -1")
        A("s_lshl_b32 s49, s42, 9")
        A(f"s_add_u32 s49, s49, {WS_SYNC}")
        A("v_lshlrev_b32 v28, 8, v1")
        A("v_add_u32 v28, s49, v28")
        A("s_lshl_b32 s56, s42, 2")
        A(f"s_add_u32 s56, s56, {WS_GFIN}")
        A("v_mov_b32 v29, s56")
        A("v_cmp_eq_u32 vcc, 2, v1")
        self.nop(2)
        A("v_cndmask_b32 v28, v28, v29, vcc")
        A("s_cmp_eq_u32 s43, 0")
        A("s_cbranch_scc0 L_nozero")
        A("s_mov_b64 exec, 7")
        A("global_store_dword v28, v32, s[40:41] sc1")
        self.lab("L_nozero")
        A("s_mov_b64 exec, -1")
        A(f"v_lshlrev_b32 v28, 2, v1")
        A(f"v_add_u32 v28, {MLF}, v28")
        A("s_mov_b64 exec, 0xffff")
        A("ds_write_b32 v28, v32 offset:0")
        A("ds_write_b32 v28, v32 offset:32")
        A("s_mov_b64 exec, -1")
        A(f"s_waitcnt vmcnt({17 + 2*tsn})")
        self.ts(13)
        for i in range(4):
            A(f"v_lshlrev_b32 v{X+2*i}, 16, v{XP+i}")
            A(f"v_and_b32 v{X+2*i+1}, 0xffff0000, v{XP+i}")
        self.lab("L_ln1")
        self.layernorm(X, T, XP)
        A("s_cmp_lg_u32 s3, 0")
        A("s_cbranch_scc1 L_bar1")
        A(f"v_add_u32 v28, {XN}, v2")
        A(f"ds_write_b128 v28, v[{XP}:{XP+3}]")
        A("v_lshrrev_b32 v29, 4, v1")
        A("v_lshlrev_b32 v30, 4, v29")
        A(f"v_add_u32 v30, {XN}, v30")
        A("v_bfe_u32 v31, v1, 2, 2")
        A("v_lshl_add_u32 v31, v29, 3, v31")
        A("v_lshlrev_b32 v31, 5, v31")
        A("v_and_b32 v29, 3, v1")
        A("v_lshl_add_u32 v31, v29, 3, v31")
        A(f"v_add_u32 v31, {WQ}, v31")
        A("s_waitcnt lgkmcnt(0)")
        XO = 64; WO = 128
        for m in range(16):
            A(f"ds_read_b128 v[{XO+4*m}:{XO+4*m+3}], v30 offset:{64*m}")
        A("s_waitcnt vmcnt(0)")
        self.ts(1)
        for m in range(16):
            A(f"ds_read_b64_tr_b16 v[{WO+4*m}:{WO+4*m+1}], v31 offset:{1024*m}")
            A(f"ds_read_b64_tr_b16 v[{WO+4*m+2}:{WO+4*m+3}], v31 offset:{1024*m+128}")
            if m % 4 == 3:
                A("s_waitcnt lgkmcnt(0)")
                for mm in range(m - 3, m + 1):
                    c = "0" if mm == 0 else "v[32:35]"
                    A(f"v_mfma_f32_16x16x32_bf16 v[32:35], v[{WO+4*mm}:{WO+4*mm+3}], v[{XO+4*mm}:{XO+4*mm+3}], {c}")
        A("v_lshrrev_b32 v29, 4, v1")
        A("v_lshlrev_b32 v29, 3, v29")
        A("v_add_u32 v29, s48, v29")
        self.nop(8)
        A("v_cvt_pk_bf16_f32 v36, v32, v33")
        A("v_cvt_pk_bf16_f32 v37, v34, v35")
        A("s_mov_b32 exec_lo, 0x00010001")
        A("s_mov_b32 exec_hi, 0x00010001")
        A("global_store_dwordx2 v29, v[36:37], s[40:41] sc1")
        A("s_mov_b64 exec, -1")
        A("s_waitcnt vmcnt(0)")
        self.set_flag(1)
        self.ts(2)
        A("v_and_b32 v3, 1, v1")
        A("v_lshlrev_b32 v3, 4, v3")
        A("s_lshl_b32 s49, s42, 5")
        A("v_add_u32 v3, s49, v3")
        sv = opt.get("sleep", 1)
        opt["sleep"] = opt.get("qsleep", 4)
        self.poll_flags("q", "v3", 1, True)
        opt["sleep"] = sv
        self.ts(3)
        A("s_lshl_b32 s49, s42, 10")
        A("v_add_u32 v28, s49, v2")
        A("global_load_dwordx4 v[32:35], v28, s[40:41] sc1")
        A(f"v_add_u32 v28, {QS}, v2")
        A("s_waitcnt vmcnt(0)")
        A("ds_write_b128 v28, v[32:35]")
        A("s_waitcnt lgkmcnt(0)")
        self.lab("L_bar1")
        A("s_barrier")
        self.ts(4)
        A(f"s_mov_b32 s59, {f32(LOG2E)}")
        A("s_lshl_b32 s56, s3, 12")
        A(f"s_add_u32 s56, s56, {WS_O}")
        A("v_add_u32 v31, s56, v2")
        A("s_cmp_lg_u32 s63, 0")
        A("s_cbranch_scc1 L_mid")
        WR = 64; WP = 128
        A("s_mov_b32 s52, s24")
        A("s_and_b32 s53, s25, 0xffff")
        A(f"s_mov_b32 s54, {4 << 20}")
        A("s_mov_b32 s55, 0x20000")
        A("v_lshlrev_b32 v28, 12, v1")
        A("v_add_u32 v28, s51, v28")
        A("s_lshl_b32 s56, s3, 20")
        for i in range(4):
            for c in range(4):
                r = WR + 16 * i + 4 * c
                A(f"buffer_load_dwordx4 v[{r}:{r+3}], v28, s[52:55], s56 offen offset:{1024*c}")
            A("s_add_u32 s56, s56, 262144")
            if opt.get("pace"):
                A("s_waitcnt vmcnt(0)")
        A("v_and_b32 v29, 7, v1")
        A("v_lshlrev_b32 v29, 1, v29")
        A("v_add_u32 v29, s51, v29")
        A("global_load_ushort v40, v29, s[16:17]")
        A("v_mov_b32 v30, 0")
        A("global_load_ushort v41, v30, s[34:35]")
        self.layernorm(X, T, XP)
        A("s_lshr_b32 s56, s51, 4")
        self.nop(4)
        for k in range(4):
            A(f"v_readlane_b32 s{68+k}, v{XP+k}, s56")
        self.nop(4)
        A("s_cmp_eq_u32 s3, 1")
        A("s_cselect_b32 s68, s69, s68")
        A("s_cmp_eq_u32 s3, 2")
        A("s_cselect_b32 s68, s70, s68")
        A("s_cmp_eq_u32 s3, 3")
        A("s_cselect_b32 s68, s71, s68")
        A("v_mov_b32 v42, s68")
        A("v_lshlrev_b32 v44, 16, v42")
        A("v_and_b32 v45, 0xffff0000, v42")
        A("v_mov_b32 v46, 0")
        A("v_mov_b32 v47, 0")
        A(f"v_lshlrev_b32 v28, 2, v1")
        A(f"v_add_u32 v28, {WST}, v28")
        A("s_mov_b32 s57, 14")
        c1 = -2.0 * 0.7978845608028654 * LOG2E
        A(f"s_mov_b32 s58, {f32(c1)}")
        A(f"s_mov_b32 s60, {f32(c1 * 0.044715)}")
        self.lab("L_gate")
        A("ds_read_b32 v48, v28")
        A("ds_read_b32 v49, v28 offset:4096")
        A("ds_read_b32 v50, v28 offset:8192")
        A("v_add_u32 v28, 256, v28")
        A("s_waitcnt lgkmcnt(0)")
        A("v_lshlrev_b32 v51, 16, v48")
        A("v_and_b32 v52, 0xffff0000, v48")
        A("v_lshlrev_b32 v53, 16, v49")
        A("v_and_b32 v54, 0xffff0000, v49")
        A("v_lshlrev_b32 v55, 16, v50")
        A("v_and_b32 v56, 0xffff0000, v50")
        U = [8, 9, 10, 11]; Z = [12, 13, 14, 15]
        combos = [(44, 51, 53, 55, 46), (44, 52, 54, 56, 46), (45, 51, 53, 55, 47), (45, 52, 54, 56, 47)]
        for k, (h, w1, b1, w2, acc) in enumerate(combos):
            A(f"v_mul_f32 v{U[k]}, v{h}, v{w1}")
        for k in range(4):
            self.bf16r(f"v{U[k]}")
        for k, (h, w1, b1, w2, acc) in enumerate(combos):
            A(f"v_add_f32 v{U[k]}, v{U[k]}, v{b1}")
        for k in range(4):
            self.bf16r(f"v{U[k]}")
        for k in range(4):
            A(f"v_mul_f32 v{Z[k]}, v{U[k]}, v{U[k]}")
        for k in range(4):
            A(f"v_mul_f32 v{Z[k]}, s60, v{Z[k]}")
        for k in range(4):
            A(f"v_add_f32 v{Z[k]}, s58, v{Z[k]}")
        for k in range(4):
            A(f"v_mul_f32 v{Z[k]}, v{Z[k]}, v{U[k]}")
        for k in range(4):
            A(f"v_exp_f32 v{Z[k]}, v{Z[k]}")
        self.nop(1)
        for k in range(4):
            A(f"v_add_f32 v{Z[k]}, 1.0, v{Z[k]}")
        for k in range(4):
            A(f"v_rcp_f32 v{Z[k]}, v{Z[k]}")
        self.nop(1)
        for k in range(4):
            A(f"v_mul_f32 v{U[k]}, v{U[k]}, v{Z[k]}")
        for k in range(4):
            self.bf16r(f"v{U[k]}")
        for k, (h, w1, b1, w2, acc) in enumerate(combos):
            A(f"v_fmac_f32 v{acc}, v{U[k]}, v{w2}")
        A("s_sub_u32 s57, s57, 1")
        A("s_cmp_lg_u32 s57, 0")
        A("s_cbranch_scc1 L_gate")
        self.allreduce64("add", "v46", "v16")
        self.allreduce64("add", "v47", "v16")
        A("s_waitcnt vmcnt(0)")
        A("v_lshlrev_b32 v41, 16, v41")
        for a in (46, 47):
            self.bf16r(f"v{a}")
            A(f"v_add_f32 v{a}, v{a}, v41")
            self.bf16r(f"v{a}")
            A(f"v_mul_f32 v16, s59, v{a}")
            A("v_exp_f32 v16, -v16")
            self.nop(1)
            A("v_add_f32 v16, 1.0, v16")
            A("v_rcp_f32 v17, v16")
            self.nop(1)
            A(f"v_mul_f32 v18, v{a}, v17")
            A(f"v_fma_f32 v19, -v18, v16, v{a}")
            A("v_fma_f32 v19, v19, v17, v18")
            A("v_cmp_gt_f32 vcc, 0x7f000000, v16")
            self.nop(2)
            A(f"v_cndmask_b32 v{a}, v18, v19, vcc")
            self.bf16r(f"v{a}")
        A("s_lshl_b32 s56, s3, 3")
        A(f"s_add_u32 s56, s56, {GS}")
        A("v_mov_b32 v28, s56")
        A("s_mov_b64 exec, 1")
        A("ds_write_b64 v28, v[46:47]")
        A("s_mov_b64 exec, -1")
        A("s_mov_b32 s56, 0x05040100")
        A("s_mov_b32 s57, 0x07060302")
        for i in range(4):
            for hh in range(2):
                for k in range(4):
                    r0 = WR + 16 * i + 8 * hh + k
                    r1 = r0 + 4
                    A(f"v_perm_b32 v{WP+16*i+8*hh+2*k}, v{r1}, v{r0}, s56")
                    A(f"v_perm_b32 v{WP+16*i+8*hh+2*k+1}, v{r1}, v{r0}, s57")
        self.ts(5)
        A("s_cmp_eq_u32 s3, 0")
        A("s_cbranch_scc1 L_h0b")
        A("s_waitcnt lgkmcnt(0)")
        A("s_barrier")
        A("s_branch L_bar3")
        self.lab("L_h0b")
        A("v_lshlrev_b32 v28, 2, v1")
        sv = opt.get("sleep", 1)
        opt["sleep"] = 32
        self.poll_flags("all", "v28", 1, False)
        opt["sleep"] = sv
        self.lab("L_mid")
        A(f"v_mov_b32 v28, {MLF}")
        A("v_and_b32 v29, 3, v1")
        A("v_lshlrev_b32 v29, 2, v29")
        A(f"v_add_u32 v29, {ML}, v29")
        self.spin_init()
        self.lab("L_mlw")
        A("ds_read_b128 v[4:7], v28")
        for w in range(4):
            A(f"ds_read_b32 v{8+w}, v29 offset:{32*w}")
            A(f"ds_read_b32 v{12+w}, v29 offset:{32*w+16}")
        A("s_waitcnt lgkmcnt(0)")
        A("v_and_b32 v4, v4, v5")
        A("v_and_b32 v6, v6, v7")
        A("v_and_b32 v4, v4, v6")
        A("s_nop 0")
        A("v_readfirstlane_b32 s57, v4")
        A("s_nop 3")
        A("s_cmp_lg_u32 s57, 0")
        A("s_cbranch_scc1 L_mld")
        self.spin_tail("L_mlw", "L_mld", 8)
        self.lab("L_mld")
        self.ts(6)
        A("v_max3_f32 v16, v8, v9, v10")
        A("v_max_f32 v16, v16, v11")
        for w in range(4):
            A(f"v_sub_f32 v{8+w}, v{8+w}, v16")
        for w in range(4):
            A(f"v_mul_f32 v{8+w}, s59, v{8+w}")
        for w in range(4):
            A(f"v_exp_f32 v{8+w}, v{8+w}")
        self.nop(1)
        A("v_mul_f32 v17, v8, v12")
        for w in range(1, 4):
            A(f"v_fmac_f32 v17, v{8+w}, v{12+w}")
        A("s_lshl_b32 s49, s47, 5")
        A(f"s_add_u32 s49, s49, {WS_ML}")
        A("v_lshlrev_b32 v28, 3, v1")
        A("v_add_u32 v28, s49, v28")
        A("s_lshl_b32 s49, s42, 9")
        A(f"s_add_u32 s49, s49, {WS_SYNC}")
        A("v_mov_b32 v3, s49")
        A("v_mov_b32 v30, 1")
        A("s_mov_b64 exec, 15")
        A("global_store_dwordx2 v28, v[16:17], s[40:41] sc1")
        A("s_waitcnt vmcnt(0)")
        A("s_mov_b64 exec, 1")
        A("global_atomic_add v3, v30, s[40:41] sc1")
        A("s_mov_b64 exec, -1")
        self.spin_init()
        self.lab("L_cmlw")
        A("global_load_dword v4, v3, s[40:41] sc1")
        A("s_waitcnt vmcnt(0)")
        A("v_readfirstlane_b32 s57, v4")
        A("s_nop 3")
        A("s_cmp_ge_u32 s57, 32")
        A("s_cbranch_scc1 L_cmld")
        self.spin_tail("L_cmlw", "L_cmld", 32)
        self.lab("L_cmld")
        self.ts(7)
        A("s_lshl_b32 s49, s42, 10")
        A(f"s_add_u32 s49, s49, {WS_ML}")
        A("v_lshlrev_b32 v28, 3, v1")
        A("v_add_u32 v28, s49, v28")
        A("global_load_dwordx2 v[8:9], v28, s[40:41] sc1")
        A("global_load_dwordx2 v[10:11], v28, s[40:41] offset:512 sc1")
        A("s_waitcnt vmcnt(0)")
        A("v_max_f32 v16, v8, v10")
        for r in (4, 8):
            self.nop(2)
            A(f"v_max_f32_dpp v16, v16, v16 row_ror:{r} row_mask:0xf bank_mask:0xf")
        self.rows_reduce("max", "v16", "v17")
        A("v_sub_f32 v8, v8, v16")
        A("v_sub_f32 v10, v10, v16")
        A("v_mul_f32 v8, s59, v8")
        A("v_mul_f32 v10, s59, v10")
        A("v_exp_f32 v8, v8")
        A("v_exp_f32 v10, v10")
        self.nop(1)
        A("v_mul_f32 v17, v8, v9")
        A("v_fmac_f32 v17, v10, v11")
        for r in (4, 8):
            self.nop(2)
            A(f"v_add_f32_dpp v17, v17, v17 row_ror:{r} row_mask:0xf bank_mask:0xf")
        self.rows_reduce("add", "v17", "v18")
        A("v_rcp_f32 v18, v17")
        self.nop(1)
        A("v_fma_f32 v19, -v17, v18, 1.0")
        A("v_fmac_f32 v18, v19, v18")
        A("v_lshlrev_b32 v28, 2, v1")
        A(f"v_add_u32 v28, {FIN}, v28")
        A(f"v_mov_b32 v29, {FINF}")
        A("s_mov_b64 exec, 15")
        A("ds_write_b32 v28, v16")
        A("ds_write_b32 v28, v18 offset:16")
        A("s_waitcnt lgkmcnt(0)")
        A("s_mov_b64 exec, 1")
        A("ds_write_b32 v29, v30")
        A("s_mov_b64 exec, -1")
        A("v_lshlrev_b32 v28, 2, v1")
        A(f"v_add_u32 v29, {PART}, v28")
        A("s_lshl_b32 s49, s42, 11")
        A(f"s_add_u32 s49, s49, {WS_O}")
        A("v_add_u32 v32, s49, v28")
        A("s_lshl_b32 s49, s42, 2")
        A(f"s_add_u32 s49, s49, {WS_GFIN}")
        A("v_mov_b32 v33, s49")
        if opt.get("fin", "go") == "go":
            A("v_and_b32 v34, 7, v1")
            A("v_lshlrev_b32 v34, 2, v34")
            A(f"v_add_u32 v34, {WS_GFIN}, v34")
        else:
            A("v_and_b32 v34, 7, v1")
            A("v_lshlrev_b32 v34, 9, v34")
            A(f"v_add_u32 v34, {WS_SYNC + 256}, v34")
        self.ts(8)
        A("s_waitcnt lgkmcnt(0)")
        A("s_barrier")
        self.ts(9)
        PR = 192
        for k in range(8):
            for w in range(4):
                A(f"ds_read_b32 v{PR+4*k+w}, v29 offset:{2048*w + 256*k}")
        for k in range(8):
            A(f"s_waitcnt lgkmcnt({min(15, 4*(7-k))})")
            A(f"v_add_f32 v{PR+4*k}, v{PR+4*k}, v{PR+4*k+1}")
            A(f"v_add_f32 v{PR+4*k+2}, v{PR+4*k+2}, v{PR+4*k+3}")
            A(f"v_add_f32 v{PR+4*k}, v{PR+4*k}, v{PR+4*k+2}")
            A(f"global_atomic_add_f32 v32, v{PR+4*k}, s[40:41] offset:{256*k} sc1")
        A("s_waitcnt vmcnt(0)")
        self.ts(10)
        A("s_mov_b64 exec, 1")
        if opt.get("fin", "go") == "go":
            A("global_atomic_add v4, v3, v30, s[40:41] offset:256 sc0 sc1")
            A("s_waitcnt vmcnt(0)")
            A("v_readfirstlane_b32 s57, v4")
            A("s_nop 3")
            A("s_cmp_lg_u32 s57, 31")
            A("s_cbranch_scc1 L_notlast")
            A("global_store_dword v33, v30, s[40:41] sc1")
            self.lab("L_notlast")
            target = 1
        else:
            A("global_atomic_add v3, v30, s[40:41] offset:256 sc1")
            target = 32
        A("s_mov_b64 exec, -1")
        self.ts(14)
        A("s_cmp_lg_u32 s63, 0")
        A("s_cbranch_scc1 L_end")
        self.spin_init()
        self.lab("L_gow")
        A("global_load_dword v4, v34, s[40:41] sc1")
        A("s_waitcnt vmcnt(0)")
        A(f"v_cmp_eq_u32 vcc, {target}, v4")
        A("s_nop 1")
        A("s_cmp_eq_u64 vcc, exec")
        A("s_cbranch_scc1 L_god")
        self.spin_tail("L_gow", "L_god", opt.get("fsleep", 2))
        self.lab("L_god")
        self.ts(11)
        self.lab("L_bar3")
        A("s_barrier")
        OR = 64
        for i in range(4):
            A(f"global_load_dwordx4 v[{OR+4*i}:{OR+4*i+3}], v31, s[40:41] offset:{1024*i} sc1")
        for c in range(8):
            A(f"v_mov_b32 v{8+c}, 0")
        for i in range(4):
            A(f"s_waitcnt vmcnt({3-i})")
            A(f"v_cvt_pk_bf16_f32 v16, v{OR+4*i}, v{OR+4*i+1}")
            A(f"v_cvt_pk_bf16_f32 v17, v{OR+4*i+2}, v{OR+4*i+3}")
            for hh in range(2):
                for c in range(8):
                    A(f"v_dot2c_f32_bf16 v{8+c}, v{16+hh}, v{WP+16*i+8*hh+c}")
        self.nop(3)
        for r in (1, 2, 4, 8):
            for c in range(8):
                A(f"v_add_f32_dpp v{8+c}, v{8+c}, v{8+c} row_ror:{r} row_mask:0xf bank_mask:0xf")
        A("v_lshlrev_b32 v28, 1, v1")
        A("s_lshl_b32 s56, s3, 7")
        A(f"s_add_u32 s56, s56, {FP}")
        A("v_add_u32 v28, s56, v28")
        A("s_mov_b32 exec_lo, 0x00010001")
        A("s_mov_b32 exec_hi, 0x00010001")
        A("ds_write_b128 v28, v[8:11]")
        A("ds_write_b128 v28, v[12:15] offset:16")
        A("s_mov_b64 exec, -1")
        A("s_waitcnt lgkmcnt(0)")
        A("s_barrier")
        A("s_cmp_lg_u32 s3, 0")
        A("s_cbranch_scc1 L_end")
        A("v_lshlrev_b32 v28, 2, v1")
        A(f"v_add_u32 v28, {FP}, v28")
        A("v_and_b32 v29, 7, v1")
        A("v_lshlrev_b32 v29, 2, v29")
        A(f"v_add_u32 v29, {GS}, v29")
        A("ds_read_b32 v8, v28")
        A("ds_read_b32 v9, v28 offset:256")
        A("ds_read_b32 v10, v29")
        A("s_waitcnt lgkmcnt(0)")
        A("v_add_f32 v8, v8, v9")
        self.nop(2)
        A("v_add_f32_dpp v8, v8, v8 row_ror:8 row_mask:0xf bank_mask:0xf")
        self.rows_reduce("add", "v8", "v9")
        self.bf16r("v8")
        A("v_mul_f32 v8, v8, v10")
        self.bf16r("v8")
        A("v_lshlrev_b32 v10, 16, v40")
        A("v_add_f32 v8, v8, v10")
        A("v_cvt_pk_bf16_f32 v8, v8, v8")
        A("v_lshlrev_b32 v28, 1, v1")
        A("v_add_u32 v28, s51, v28")
        A("s_mov_b64 exec, 0xff")
        A("global_store_short v28, v8, s[36:37]")
        A("s_mov_b64 exec, -1")
        self.ts(12)


if __name__ == "__main__":
    out = sys.argv[1]
    opt = {}
    for a in sys.argv[2:]:
        k, _, v = a.partition("=")
        opt[k] = (int(v) if v.lstrip("-").isdigit() else v) if v else True
    open(out, "w").write(G2(**opt).gen())
```

```python
import sys, struct
from gen import G, NAME, HEADER, f32, LOG2E, SCALE
from gen2 import G2

RING = 0
WQ = 131072
PART = WQ
WST = 147456
XN = 159744
QS = 160768
ML = 161792
MLF = ML + 128
FIN = ML + 160
FINF = ML + 192
LDS_BYTES = 162304

WS_Q = 0
WS_ML = 8192
WS_O = 16384
WS_SYNC = 32768
WS_GFIN = 32768 + 4096
WS_TS = 65536
WS_WT = 1 << 20
WS_QP = 786432


class G3(G2):
    def gen(self):
        A = self.A
        opt = self.opt
        NT = opt.get("nt", "nt")
        self.L.append(HEADER.rstrip("\n"))
        self.L.append(f"; @launch grid=(256,1,1) block=(320,1,1) lds={LDS_BYTES}")
        self.L.append('.amdgcn_target "amdgcn-amd-amdhsa--gfx950"')
        self.L.append(".text")
        self.L.append(f".globl {NAME}_kernel")
        self.L.append(".p2align 8")
        self.L.append(f".type {NAME}_kernel,@function")
        self.lab(f"{NAME}_kernel")
        A("s_cmp_ge_u32 s2, 256")
        A("s_cbranch_scc1 L_end")
        if opt.get("ts"):
            A("s_memrealtime s[66:67]")
        A("s_load_dwordx16 s[16:31], s[0:1], 0")
        A("s_load_dwordx8 s[32:39], s[0:1], 64")
        A("s_load_dwordx2 s[40:41], s[0:1], 96")
        A("v_lshrrev_b32 v1, 6, v0")
        A("s_and_b32 s42, s2, 7")
        A("v_readfirstlane_b32 s3, v1")
        A("s_lshr_b32 s43, s2, 3")
        A("v_and_b32 v1, 63, v0")
        A("s_lshl_b32 s47, s42, 5")
        A("s_add_u32 s47, s47, s43")
        if opt.get("ts"):
            A("s_lshl_b32 s62, s2, 3")
            A("s_add_u32 s62, s62, s3")
            A("s_cmp_eq_u32 s3, 0")
            A("s_cselect_b32 s63, 0, 3")
            A("s_add_u32 s62, s62, s63")
            A("s_lshl_b32 s62, s62, 8")
            A(f"s_add_u32 s62, s62, {WS_TS}")
        A("s_cmp_eq_u32 s3, 0")
        A("s_cbranch_scc1 L_helper")
        self.stream(NT)
        self.lab("L_helper")
        self.helper()
        self.lab("L_end")
        A("s_endpgm")
        self.L.append('.section .rodata,"a"')
        self.L.append(".p2align 6")
        self.L.append(f".amdhsa_kernel {NAME}_kernel")
        for s in ("next_free_vgpr 256", "next_free_sgpr 80", "accum_offset 256", "group_segment_fixed_size 0",
                  "kernarg_size 104", "user_sgpr_count 2", "user_sgpr_kernarg_segment_ptr 1",
                  "system_sgpr_workgroup_id_x 1", "float_denorm_mode_32 3"):
            self.L.append("  .amdhsa_" + s)
        self.L.append(".end_amdhsa_kernel")
        return "\n".join(self.L) + "\n"

    def sts(self, k):
        if not self.opt.get("ts"):
            return
        self.A(f"s_memrealtime s[{68+2*k}:{69+2*k}]")

    def sts_flush(self, n):
        if not self.opt.get("ts"):
            return
        A = self.A
        A("s_waitcnt lgkmcnt(0)")
        A("v_mov_b32 v26, s62")
        A("s_mov_b64 exec, 1")
        for k in range(n):
            A(f"v_mov_b32 v24, s{68+2*k}")
            A(f"v_mov_b32 v25, s{69+2*k}")
            A(f"global_store_dwordx2 v26, v[24:25], s[40:41] offset:{8*k}")
            A("s_nop 1")
        A("v_mov_b32 v24, s66")
        A("v_mov_b32 v25, s67")
        A(f"global_store_dwordx2 v26, v[24:25], s[40:41] offset:{8*15}")
        A("s_mov_b64 exec, -1")

    def stream(self, NT):
        A = self.A
        opt = self.opt
        D = opt.get("depth", 8)
        VOFF = 2; KRD = 6; VRD = 10; MSK = 18
        KST = 24; VST = 56; DA = 88; SP = 96; BT = 112; BQ = 128; OA = 192; SC = 224
        BUF = [24, 40, 56, 72, 112, 192, 208, 224]
        QT = 240
        A("s_sub_u32 s3, s3, 1")
        A("v_lshrrev_b32 v22, 4, v1")
        A("v_and_b32 v23, 15, v1")
        for q in range(4):
            c = 8 * (q & 1) + (q >> 1)
            A(f"v_lshl_or_b32 v{VOFF+q}, v22, 1, {c}")
            A(f"v_xor_b32 v{VOFF+q}, v{VOFF+q}, v23")
            A(f"v_lshlrev_b32 v{VOFF+q}, 4, v{VOFF+q}")
            A(f"v_lshl_or_b32 v{VOFF+q}, v22, 8, v{VOFF+q}")
        A("s_lshl_b32 s48, s3, 15")
        A("s_lshl_b32 s49, s43, 2")
        A("s_add_u32 s49, s49, s3")
        A("s_lshl_b32 s49, s49, 12")
        A("s_lshl_b32 s51, s42, 24")
        A("s_waitcnt lgkmcnt(0)")
        A("s_add_u32 s52, s18, s51")
        A("s_addc_u32 s53, s19, 0")
        A("s_and_b32 s53, s53, 0xffff")
        A("s_add_u32 s54, s20, s51")
        A("s_addc_u32 s55, s21, 0")
        A("s_and_b32 s55, s55, 0xffff")
        A("s_mov_b32 s44, s52")
        A("s_mov_b32 s45, s53")
        A(f"s_mov_b32 s46, {1 << 24}")
        A("s_mov_b32 s47, 0x20000")
        A("s_mov_b32 s56, s49")
        if opt.get("hfirst"):
            A("s_barrier")

        def refill(pp, wait=True):
            A(f"s_add_u32 m0, s48, {pp*4096}")
            if wait:
                A(f"s_waitcnt vmcnt({D-4})")
            else:
                A("s_nop 0")
            for q in range(4):
                A(f"buffer_load_dwordx4 v{VOFF+q}, s[44:47], s56 offen offset:{q*1024} {NT} lds")
            A(f"s_add_u32 s56, s56, {512*1024}")

        n0 = D // 4
        for pp in range(n0):
            refill(pp, wait=False)
        self.sts(0)
        A("v_and_b32 v24, 7, v23")
        A("v_lshlrev_b32 v24, 1, v24")
        A("v_lshrrev_b32 v25, 3, v23")
        A("v_or_b32 v24, v24, v25")
        A("v_lshlrev_b32 v25, 8, v23")
        A("v_add_u32 v25, s48, v25")
        for u in range(4):
            A(f"v_lshl_or_b32 v26, v22, 2, {u}")
            A("v_xor_b32 v26, v26, v24")
            A(f"v_lshl_add_u32 v{KRD+u}, v26, 4, v25")
        A("v_lshrrev_b32 v26, 2, v1")
        A("v_and_b32 v24, 7, v26")
        A("v_lshlrev_b32 v24, 1, v24")
        A("v_lshrrev_b32 v25, 3, v26")
        A("v_or_b32 v24, v24, v25")
        A("v_bfe_u32 v27, v1, 1, 1")
        A("v_xor_b32 v24, v24, v27")
        A("v_and_b32 v27, 1, v1")
        A("v_lshlrev_b32 v27, 3, v27")
        A("v_lshl_add_u32 v25, v26, 8, v27")
        A("v_add_u32 v25, s48, v25")
        for e in range(8):
            A(f"v_xor_b32 v26, {2*e}, v24")
            A(f"v_lshl_add_u32 v{VRD+e}, v26, 4, v25")
        A("v_lshrrev_b32 v26, 2, v23")
        for t in range(4):
            A(f"v_cmp_eq_u32 vcc, {t}, v26")
            self.nop(2)
            A(f"v_cndmask_b32 v{MSK+t}, 0, -1, vcc")
        A("v_and_b32 v26, 3, v1")
        A("v_lshlrev_b32 v26, 8, v26")
        A("v_lshl_add_u32 v26, v22, 6, v26")
        A(f"v_add_u32 v23, {QS}, v26")
        A(f"s_mov_b32 s58, {f32(SCALE)}")
        A("s_mov_b32 s57, 0")
        for pp in range(n0, 8):
            refill(pp)
        for pp in range(8):
            for u in range(4):
                r = BUF[pp] + 4 * u
                A(f"ds_read_b128 v[{r}:{r+3}], v{KRD+u} offset:{pp*4096}")
            A("s_waitcnt lgkmcnt(0)")
            refill(pp)
        self.sts(5)
        A("s_barrier")
        self.sts(1)
        for u in range(4):
            A(f"ds_read_b128 v[{QT+4*u}:{QT+4*u+3}], v23 offset:{16*u}")
        A("s_waitcnt lgkmcnt(0)")
        for t in range(4):
            for k in range(16):
                A(f"v_and_b32 v{BQ+16*t+k}, v{QT+k}, v{MSK+t}")
        self.nop(2)
        for pp in range(8):
            t, hf = pp >> 1, pp & 1
            d = DA + 4 * hf
            for u in range(4):
                c = "0" if (t == 0 and u == 0) else f"v[{d}:{d+3}]"
                r = BUF[pp] + 4 * u
                A(f"v_mfma_f32_16x16x32_bf16 v[{d}:{d+3}], v[{r}:{r+3}], v[{BQ+16*t+4*u}:{BQ+16*t+4*u+3}], {c}")
        A("s_branch L_kpost")
        self.lab("L_kloop")
        A("s_cmp_eq_u32 s57, 3")
        A("s_cselect_b32 s44, s54, s52")
        A("s_cselect_b32 s45, s55, s53")
        A("s_cselect_b32 s56, s49, s56")
        for pp in range(8):
            t, hf = pp >> 1, pp & 1
            for u in range(4):
                A(f"ds_read_b128 v[{KST+4*u}:{KST+4*u+3}], v{KRD+u} offset:{pp*4096}")
            A("s_waitcnt lgkmcnt(0)")
            d = DA + 4 * hf
            for u in range(4):
                c = "0" if (t == 0 and u == 0) else f"v[{d}:{d+3}]"
                A(f"v_mfma_f32_16x16x32_bf16 v[{d}:{d+3}], v[{KST+4*u}:{KST+4*u+3}], v[{BQ+16*t+4*u}:{BQ+16*t+4*u+3}], {c}")
            refill(pp)
        self.lab("L_kpost")
        for k in range(12):
            A(f"v_mov_b32 v{SP+k}, v{SP+k+4}")
        for k in range(4):
            A(f"v_cvt_pk_bf16_f32 v{QT+k}, v{DA+2*k}, v{DA+2*k+1}")
        for k in range(4):
            A(f"v_lshlrev_b32 v{QT+4+2*k}, 16, v{QT+k}")
            A(f"v_and_b32 v{QT+5+2*k}, 0xffff0000, v{QT+k}")
        for k in range(8):
            A(f"v_mul_f32 v{QT+4+k}, s58, v{QT+4+k}")
        for k in range(4):
            A(f"v_cvt_pk_bf16_f32 v{SP+12+k}, v{QT+4+2*k}, v{QT+5+2*k}")
        A("s_add_u32 s57, s57, 1")
        A("s_cmp_lt_u32 s57, 4")
        A("s_cbranch_scc1 L_kloop")
        self.sts(2)
        for k in range(16):
            A(f"v_lshlrev_b32 v{SC+2*k}, 16, v{SP+k}")
            A(f"v_and_b32 v{SC+2*k+1}, 0xffff0000, v{SP+k}")
        A(f"v_max3_f32 v24, v{SC}, v{SC+1}, v{SC+2}")
        A(f"v_max3_f32 v25, v{SC+3}, v{SC+4}, v{SC+5}")
        for k in range(6, 30, 4):
            A(f"v_max3_f32 v24, v24, v{SC+k}, v{SC+k+1}")
            A(f"v_max3_f32 v25, v25, v{SC+k+2}, v{SC+k+3}")
        A(f"v_max3_f32 v24, v24, v{SC+30}, v{SC+31}")
        A("v_max_f32 v24, v24, v25")
        for r in (4, 8):
            self.nop(2)
            A(f"v_max_f32_dpp v24, v24, v24 row_ror:{r} row_mask:0xf bank_mask:0xf")
        self.rows_reduce("max", "v24", "v25")
        A(f"s_mov_b32 s59, {f32(LOG2E)}")
        for k in range(32):
            A(f"v_sub_f32 v{SC+k}, v{SC+k}, v24")
        for k in range(32):
            A(f"v_mul_f32 v{SC+k}, s59, v{SC+k}")
        for k in range(32):
            A(f"v_exp_f32 v{SC+k}, v{SC+k}")
        self.nop(1)
        for k in range(16):
            A(f"v_cvt_pk_bf16_f32 v{SP+k}, v{SC+2*k}, v{SC+2*k+1}")
        st = 16
        while st >= 1:
            for k in range(st):
                A(f"v_add_f32 v{SC+k}, v{SC+k}, v{SC+k+st}")
            st >>= 1
        A(f"v_mov_b32 v25, v{SC}")
        for r in (4, 8):
            self.nop(2)
            A(f"v_add_f32_dpp v25, v25, v25 row_ror:{r} row_mask:0xf bank_mask:0xf")
        self.rows_reduce("add", "v25", "v26")
        A("v_mov_b32 v22, v24")
        A("s_lshl_b32 s57, s3, 5")
        A(f"s_add_u32 s57, s57, {ML}")
        A("v_lshl_add_u32 v26, v1, 2, s57")
        A("s_lshl_b32 s57, s3, 2")
        A(f"s_add_u32 s57, s57, {MLF}")
        A("v_mov_b32 v27, s57")
        A("v_mov_b32 v28, 1")
        A("s_mov_b64 exec, 15")
        A("ds_write_b32 v26, v24")
        A("ds_write_b32 v26, v25 offset:16")
        A("s_waitcnt lgkmcnt(0)")
        A("s_mov_b64 exec, 1")
        A("ds_write_b32 v27, v28")
        A("s_mov_b64 exec, -1")
        for i in range(32):
            A(f"v_mov_b32 v{OA+i}, 0")
        A("s_mov_b32 s57, 0")

        def viter(last):
            for t in range(4):
                for k in range(4):
                    A(f"v_and_b32 v{BT+4*t+k}, v{SP+k}, v{MSK+t}")
            if not last:
                for k in range(12):
                    A(f"v_mov_b32 v{SP+k}, v{SP+k+4}")
            for pp in range(8):
                t, hf = pp >> 1, pp & 1
                if last and (7 - pp) * 4 < D:
                    if pp == 7:
                        self.fin_wait()
                    A(f"s_waitcnt vmcnt({(7-pp)*4})")
                for e in range(8):
                    r = VST + 4 * e + 2 * hf
                    A(f"ds_read_b64_tr_b16 v[{r}:{r+1}], v{VRD+e} offset:{pp*4096}")
                A("s_waitcnt lgkmcnt(0)")
                if hf == 1:
                    for e in range(8):
                        o = OA + 4 * e
                        A(f"v_mfma_f32_16x16x32_bf16 v[{o}:{o+3}], v[{VST+4*e}:{VST+4*e+3}], v[{BT+4*t}:{BT+4*t+3}], v[{o}:{o+3}]")
                if not last:
                    refill(pp)
        self.lab("L_vloop")
        viter(False)
        A("s_add_u32 s57, s57, 1")
        A("s_cmp_lt_u32 s57, 3")
        A("s_cbranch_scc1 L_vloop")
        viter(True)
        self.sts(3)
        self.nop(4)
        for k in range(32):
            A(f"v_mul_f32 v{OA+k}, v24, v{OA+k}")
        for r in (4, 8):
            for k in range(32):
                A(f"v_add_f32_dpp v{OA+k}, v{OA+k}, v{OA+k} row_ror:{r} row_mask:0xf bank_mask:0xf")
        A("s_mov_b32 exec_lo, 0x000f000f")
        A("s_mov_b32 exec_hi, 0x000f000f")
        for e in range(8):
            A(f"ds_write_b128 v26, v[{OA+4*e}:{OA+4*e+3}] offset:{64*e}")
        A("s_mov_b64 exec, -1")
        A("s_waitcnt lgkmcnt(0)")
        A("s_barrier")
        self.sts(4)
        self.sts_flush(6)
        A("s_endpgm")

    def fin_wait(self):
        A = self.A
        A(f"v_mov_b32 v27, {FINF}")
        A("v_and_b32 v26, 3, v1")
        A(f"v_lshlrev_b32 v26, 2, v26")
        A(f"v_add_u32 v26, {FIN}, v26")
        self.spin_init()
        self.lab("L_finw")
        A("ds_read_b32 v28, v27")
        A("ds_read_b32 v24, v26")
        A("ds_read_b32 v25, v26 offset:16")
        A("s_waitcnt lgkmcnt(0)")
        A("v_readfirstlane_b32 s57, v28")
        A("s_nop 3")
        A("s_cmp_lg_u32 s57, 0")
        A("s_cbranch_scc1 L_find")
        self.spin_tail("L_finw", "L_find", 1)
        self.lab("L_find")
        A("v_sub_f32 v24, v22, v24")
        A("v_mul_f32 v24, s59, v24")
        A("v_exp_f32 v24, v24")
        self.nop(1)
        A("v_mul_f32 v24, v24, v25")
        A("v_and_b32 v26, 3, v1")
        A("v_lshlrev_b32 v26, 9, v26")
        A("v_lshrrev_b32 v27, 4, v1")
        A("v_lshl_add_u32 v26, v27, 4, v26")
        A("s_lshl_b32 s57, s3, 11")
        A(f"s_add_u32 s57, s57, {PART}")
        A("v_add_u32 v26, s57, v26")

    def helper(self):
        A = self.A
        opt = self.opt
        X = 8; T = 16; XP = 24
        tsn = 1 if opt.get("ts") else 0
        A("v_lshlrev_b32 v2, 4, v1")
        A("s_lshl_b32 s51, s47, 2")
        A("v_lshrrev_b32 v3, 3, v1")
        A("v_lshlrev_b32 v3, 13, v3")
        A("v_and_b32 v4, 7, v1")
        A("v_lshl_or_b32 v3, v4, 4, v3")
        A("s_lshl_b32 s48, s42, 10")
        A("s_lshl_b32 s49, s43, 5")
        A("s_add_u32 s48, s48, s49")
        A("s_and_b32 s44, s43, 7")
        A("s_lshr_b32 s45, s43, 3")
        A("s_lshl_b32 s56, s45, 20")
        A("s_lshl_b32 s49, s42, 10")
        A("s_add_u32 s56, s56, s49")
        A("s_lshl_b32 s49, s44, 7")
        A("s_add_u32 s56, s56, s49")
        A("s_waitcnt lgkmcnt(0)")
        A("global_load_dwordx4 v[24:27], v2, s[16:17]")
        A("s_mov_b32 s52, s22")
        A("s_and_b32 s53, s23, 0xffff")
        A(f"s_mov_b32 s54, {4 << 20}")
        A("s_mov_b32 s55, 0x20000")
        for k in range(16):
            A(f"s_mov_b32 m0, {WQ + 1024*k}")
            A("s_nop 0")
            A(f"buffer_load_dwordx4 v3, s[52:55], s56 offen nt lds")
            A("s_add_u32 s56, s56, 65536")
        if opt.get("hfirst"):
            A("s_barrier")
        self.ts_entry()
        self.ts(0)
        A("s_lshl_b32 s49, s48, 1")
        A(f"s_add_u32 s49, s49, {WS_O}")
        A("v_add_u32 v28, s49, v2")
        for i in range(4):
            A(f"v_mov_b32 v{32+i}, 0")
        A("s_mov_b64 exec, 15")
        A("global_store_dwordx4 v28, v[32:35], s[40:41] sc1")
        A("s_mov_b64 exec, -1")
        A("s_lshl_b32 s49, s42, 9")
        A(f"s_add_u32 s49, s49, {WS_SYNC}")
        A("v_lshlrev_b32 v28, 8, v1")
        A("v_add_u32 v28, s49, v28")
        A("s_lshl_b32 s56, s42, 2")
        A(f"s_add_u32 s56, s56, {WS_GFIN}")
        A("v_mov_b32 v29, s56")
        A("v_cmp_eq_u32 vcc, 2, v1")
        self.nop(2)
        A("v_cndmask_b32 v28, v28, v29, vcc")
        A("s_cmp_eq_u32 s43, 0")
        A("s_cbranch_scc0 L_nozero")
        A("s_mov_b64 exec, 7")
        A("global_store_dword v28, v32, s[40:41] sc1")
        self.lab("L_nozero")
        A("s_mov_b64 exec, -1")
        A(f"v_lshlrev_b32 v28, 2, v1")
        A(f"v_add_u32 v28, {MLF}, v28")
        A("s_mov_b64 exec, 0xffff")
        A("ds_write_b32 v28, v32 offset:0")
        A("ds_write_b32 v28, v32 offset:32")
        A("s_mov_b64 exec, -1")
        A(f"s_waitcnt vmcnt({17 + 2*tsn})")
        self.ts(13)
        for i in range(4):
            A(f"v_lshlrev_b32 v{X+2*i}, 16, v{XP+i}")
            A(f"v_and_b32 v{X+2*i+1}, 0xffff0000, v{XP+i}")
        self.layernorm(X, T, XP)
        A(f"v_add_u32 v28, {XN}, v2")
        A(f"ds_write_b128 v28, v[{XP}:{XP+3}]")
        A("v_lshrrev_b32 v29, 4, v1")
        A("v_lshlrev_b32 v30, 4, v29")
        A("s_lshl_b32 s49, s45, 8")
        A(f"s_add_u32 s49, s49, {XN}")
        A("v_add_u32 v30, s49, v30")
        A("v_bfe_u32 v31, v1, 2, 2")
        A("v_lshl_add_u32 v31, v29, 3, v31")
        A("v_lshlrev_b32 v31, 7, v31")
        A("v_and_b32 v28, 3, v1")
        A("v_lshl_add_u32 v31, v28, 3, v31")
        A(f"v_add_u32 v31, {WQ}, v31")
        A("v_and_b32 v28, 15, v1")
        A("v_lshlrev_b32 v28, 6, v28")
        A("v_lshl_add_u32 v29, v29, 4, v28")
        A("s_lshl_b32 s49, s42, 13")
        A("s_lshl_b32 s56, s45, 11")
        A("s_add_u32 s49, s49, s56")
        A("s_lshl_b32 s56, s44, 8")
        A("s_add_u32 s49, s49, s56")
        A(f"s_add_u32 s49, s49, {WS_QP}")
        A("v_add_u32 v29, s49, v29")
        A("v_and_b32 v28, 15, v1")
        A("s_waitcnt lgkmcnt(0)")
        XO = 64; WO = 128; QD = 32
        for ks in range(4):
            A(f"ds_read_b128 v[{XO+4*ks}:{XO+4*ks+3}], v30 offset:{64*ks}")
        A("s_waitcnt vmcnt(0)")
        self.ts(1)
        for ks in range(4):
            for ct in range(4):
                r = WO + 16 * ks + 4 * ct
                A(f"ds_read_b64_tr_b16 v[{r}:{r+1}], v31 offset:{4096*ks + 32*ct}")
                A(f"ds_read_b64_tr_b16 v[{r+2}:{r+3}], v31 offset:{4096*ks + 32*ct + 512}")
            A("s_waitcnt lgkmcnt(0)")
            for ct in range(4):
                r = WO + 16 * ks + 4 * ct
                d = QD + 4 * ct
                c = "0" if ks == 0 else f"v[{d}:{d+3}]"
                A(f"v_mfma_f32_16x16x32_bf16 v[{d}:{d+3}], v[{r}:{r+3}], v[{XO+4*ks}:{XO+4*ks+3}], {c}")
        A("v_cmp_eq_u32 s[52:53], 1, v28")
        A("v_cmp_eq_u32 s[54:55], 2, v28")
        A("v_cmp_eq_u32 vcc, 3, v28")
        self.nop(6)
        for r in range(4):
            A(f"v_cndmask_b32 v{QD+r}, v{QD+r}, v{QD+4+r}, s[52:53]")
        for r in range(4):
            A(f"v_cndmask_b32 v{QD+r}, v{QD+r}, v{QD+8+r}, s[54:55]")
        for r in range(4):
            A(f"v_cndmask_b32 v{QD+r}, v{QD+r}, v{QD+12+r}, vcc")
        A("s_mov_b32 exec_lo, 0x000f000f")
        A("s_mov_b32 exec_hi, 0x000f000f")
        A(f"global_store_dwordx4 v29, v[{QD}:{QD+3}], s[40:41] sc1")
        A("s_mov_b64 exec, -1")
        A("s_waitcnt vmcnt(0)")
        A("s_lshl_b32 s49, s42, 5")
        A("v_mov_b32 v3, s49")
        A("v_mov_b32 v30, 1")
        A("s_mov_b64 exec, 1")
        A("global_atomic_add v3, v30, s[38:39] sc1")
        self.ts(2)
        self.spin_init()
        self.lab("L_qw")
        A("global_load_dword v4, v3, s[38:39] sc1")
        A("s_waitcnt vmcnt(0)")
        A("v_readfirstlane_b32 s57, v4")
        A("s_nop 3")
        A(f"s_cmp_ge_u32 s57, {0 if opt.get('noqpoll') else 32}")
        A("s_cbranch_scc1 L_qd")
        self.spin_tail("L_qw", "L_qd", opt.get("qsleep", 4))
        self.lab("L_qd")
        if opt.get("ts"):
            A("v_mov_b32 v250, s50")
            A("v_mov_b32 v251, 0")
            A("v_mov_b32 v252, s62")
            A("global_store_dwordx2 v252, v[250:251], s[40:41] offset:128")
        A("s_mov_b64 exec, -1")
        self.ts(3)
        A("s_lshl_b32 s49, s42, 13")
        A(f"s_add_u32 s49, s49, {WS_QP}")
        A("v_lshlrev_b32 v28, 5, v1")
        A("v_add_u32 v28, s49, v28")
        A("v_add_u32 v29, 4096, v28")
        for rb in range(4):
            for hh in range(2):
                r = 64 + 8 * rb + 4 * hh
                A(f"global_load_dwordx4 v[{r}:{r+3}], v{28 + rb // 2}, s[40:41] offset:{2048*(rb%2) + 16*hh} sc1")
        A(f"v_add_u32 v28, {QS}, v2")
        A("s_waitcnt vmcnt(0)")
        for k in range(8):
            A(f"v_add_f32 v{64+k}, v{64+k}, v{72+k}")
            A(f"v_add_f32 v{80+k}, v{80+k}, v{88+k}")
        for k in range(8):
            A(f"v_add_f32 v{64+k}, v{64+k}, v{80+k}")
        for k in range(4):
            A(f"v_cvt_pk_bf16_f32 v{32+k}, v{64+2*k}, v{65+2*k}")
        A("ds_write_b128 v28, v[32:35]")
        A("s_waitcnt lgkmcnt(0)")
        A("s_barrier")
        self.ts(4)
        A(f"s_mov_b32 s59, {f32(LOG2E)}")
        A("s_mov_b32 s52, s24")
        A("s_and_b32 s53, s25, 0xffff")
        A(f"s_mov_b32 s54, {4 << 20}")
        A("s_mov_b32 s55, 0x20000")
        A("v_lshrrev_b32 v28, 3, v1")
        A("v_lshlrev_b32 v28, 10, v28")
        A("v_and_b32 v29, 7, v1")
        A("v_lshl_or_b32 v28, v29, 4, v28")
        A("s_lshl_b32 s56, s43, 17")
        A("s_lshl_b32 s49, s42, 7")
        A("s_add_u32 s56, s56, s49")
        for k in range(16):
            A(f"s_mov_b32 m0, {WQ + 1024*k}")
            A("s_nop 0")
            A(f"buffer_load_dwordx4 v28, s[52:55], s56 offen nt lds")
            A("s_add_u32 s56, s56, 8192")
        for a, (lo, base) in enumerate(((28, WST), (30, WST + 4096), (32, WST + 8192))):
            A(f"s_mov_b32 s52, s{lo}")
            A(f"s_and_b32 s53, s{lo+1}, 0xffff")
            A("s_mov_b32 s54, 3584")
            A("s_mov_b32 s55, 0x20000")
            A(f"s_mov_b32 m0, {base}")
            A("s_nop 0")
            for q in range(4):
                A(f"buffer_load_dwordx4 v2, s[52:55], 0 offen offset:{1024*q} lds")
        A("v_mov_b32 v28, s51")
        A("global_load_dword v40, v28, s[16:17]")
        A("v_mov_b32 v29, 0")
        A("global_load_ushort v41, v29, s[34:35]")
        self.layernorm(X, T, XP)
        A(f"v_add_u32 v28, {XN}, v2")
        A(f"ds_write_b128 v28, v[{XP}:{XP+3}]")
        A(f"v_mov_b32 v28, s51")
        A(f"v_add_u32 v28, {XN}, v28")
        A("s_waitcnt lgkmcnt(0)")
        A("ds_read_b32 v42, v28")
        A("v_and_b32 v29, 7, v1")
        A("v_lshrrev_b32 v30, 3, v1")
        A("v_lshlrev_b32 v28, 9, v29")
        A("v_lshl_add_u32 v28, v30, 4, v28")
        A(f"v_add_u32 v28, {WQ}, v28")
        A("v_lshlrev_b32 v31, 16, v30")
        A("v_lshl_add_u32 v31, v29, 4, v31")
        A("s_lshl_b32 s56, s42, 19")
        A("s_lshl_b32 s49, s43, 9")
        A("s_add_u32 s56, s56, s49")
        A(f"s_add_u32 s56, s56, {WS_WT}")
        A("v_add_u32 v31, s56, v31")
        A("s_waitcnt vmcnt(0) lgkmcnt(0)")
        WR = 64; WP = 128
        for a in range(4):
            for c in range(4):
                r = WR + 16 * a + 4 * c
                A(f"ds_read_b128 v[{r}:{r+3}], v28 offset:{4096*a + 128*c}")
        A("s_mov_b32 s56, 0x05040100")
        A("s_mov_b32 s57, 0x07060302")
        A("s_waitcnt lgkmcnt(0)")
        for a in range(4):
            for k in range(4):
                b = WR + 16 * a + k
                o = WP + 16 * a + 4 * k
                A(f"v_perm_b32 v{o}, v{b+4}, v{b}, s56")
                A(f"v_perm_b32 v{o+1}, v{b+4}, v{b}, s57")
                A(f"v_perm_b32 v{o+2}, v{b+12}, v{b+8}, s56")
                A(f"v_perm_b32 v{o+3}, v{b+12}, v{b+8}, s57")
        for k in range(4):
            for a in range(4):
                o = WP + 16 * a + 4 * k
                if not opt.get("nowt"):
                    A(f"global_store_dwordx4 v31, v[{o}:{o+3}], s[40:41] offset:{128*a} sc1")
            if k < 3:
                A("v_add_u32 v31, 16384, v31")
        A("v_lshlrev_b32 v44, 16, v42")
        A("v_and_b32 v45, 0xffff0000, v42")
        A("v_mov_b32 v46, 0")
        A("v_mov_b32 v47, 0")
        A(f"v_lshlrev_b32 v28, 2, v1")
        A(f"v_add_u32 v28, {WST}, v28")
        A("s_mov_b32 s57, 14")
        c1 = -2.0 * 0.7978845608028654 * LOG2E
        A(f"s_mov_b32 s58, {f32(c1)}")
        A(f"s_mov_b32 s56, {f32(c1 * 0.044715)}")
        self.lab("L_gate")
        A("ds_read_b32 v48, v28")
        A("ds_read_b32 v49, v28 offset:4096")
        A("ds_read_b32 v50, v28 offset:8192")
        A("v_add_u32 v28, 256, v28")
        A("s_waitcnt lgkmcnt(0)")
        A("v_lshlrev_b32 v51, 16, v48")
        A("v_and_b32 v52, 0xffff0000, v48")
        A("v_lshlrev_b32 v53, 16, v49")
        A("v_and_b32 v54, 0xffff0000, v49")
        A("v_lshlrev_b32 v55, 16, v50")
        A("v_and_b32 v56, 0xffff0000, v50")
        U = [8, 9, 10, 11]; Z = [12, 13, 14, 15]
        combos = [(44, 51, 53, 55, 46), (44, 52, 54, 56, 46), (45, 51, 53, 55, 47), (45, 52, 54, 56, 47)]
        for k, (h, w1, b1, w2, acc) in enumerate(combos):
            A(f"v_mul_f32 v{U[k]}, v{h}, v{w1}")
        for k in range(4):
            self.bf16r(f"v{U[k]}")
        for k, (h, w1, b1, w2, acc) in enumerate(combos):
            A(f"v_add_f32 v{U[k]}, v{U[k]}, v{b1}")
        for k in range(4):
            self.bf16r(f"v{U[k]}")
        for k in range(4):
            A(f"v_mul_f32 v{Z[k]}, v{U[k]}, v{U[k]}")
        for k in range(4):
            A(f"v_mul_f32 v{Z[k]}, s56, v{Z[k]}")
        for k in range(4):
            A(f"v_add_f32 v{Z[k]}, s58, v{Z[k]}")
        for k in range(4):
            A(f"v_mul_f32 v{Z[k]}, v{Z[k]}, v{U[k]}")
        for k in range(4):
            A(f"v_exp_f32 v{Z[k]}, v{Z[k]}")
        self.nop(1)
        for k in range(4):
            A(f"v_add_f32 v{Z[k]}, 1.0, v{Z[k]}")
        for k in range(4):
            A(f"v_rcp_f32 v{Z[k]}, v{Z[k]}")
        self.nop(1)
        for k in range(4):
            A(f"v_mul_f32 v{U[k]}, v{U[k]}, v{Z[k]}")
        for k in range(4):
            self.bf16r(f"v{U[k]}")
        for k, (h, w1, b1, w2, acc) in enumerate(combos):
            A(f"v_fmac_f32 v{acc}, v{U[k]}, v{w2}")
        A("s_sub_u32 s57, s57, 1")
        A("s_cmp_lg_u32 s57, 0")
        A("s_cbranch_scc1 L_gate")
        A("s_waitcnt vmcnt(0)")
        A("v_mov_b32 v30, 1")
        A("s_mov_b64 exec, 1")
        A("global_atomic_add v3, v30, s[38:39] offset:4 sc1")
        A("s_mov_b64 exec, -1")
        self.allreduce64("add", "v46", "v16")
        self.allreduce64("add", "v47", "v16")
        A("v_lshlrev_b32 v41, 16, v41")
        for a in (46, 47):
            self.bf16r(f"v{a}")
            A(f"v_add_f32 v{a}, v{a}, v41")
            self.bf16r(f"v{a}")
            A(f"v_mul_f32 v16, s59, v{a}")
            A("v_exp_f32 v16, -v16")
            self.nop(1)
            A("v_add_f32 v16, 1.0, v16")
            A("v_rcp_f32 v17, v16")
            self.nop(1)
            A(f"v_mul_f32 v18, v{a}, v17")
            A(f"v_fma_f32 v19, -v18, v16, v{a}")
            A("v_fma_f32 v19, v19, v17, v18")
            A("v_cmp_gt_f32 vcc, 0x7f000000, v16")
            self.nop(2)
            A(f"v_cndmask_b32 v{a}, v18, v19, vcc")
            self.bf16r(f"v{a}")
        self.ts(5)
        A(f"v_mov_b32 v28, {MLF}")
        A("v_and_b32 v29, 3, v1")
        A("v_lshlrev_b32 v29, 2, v29")
        A(f"v_add_u32 v29, {ML}, v29")
        self.spin_init()
        self.lab("L_mlw")
        A("ds_read_b128 v[4:7], v28")
        for w in range(4):
            A(f"ds_read_b32 v{8+w}, v29 offset:{32*w}")
            A(f"ds_read_b32 v{12+w}, v29 offset:{32*w+16}")
        A("s_waitcnt lgkmcnt(0)")
        A("v_and_b32 v4, v4, v5")
        A("v_and_b32 v6, v6, v7")
        A("v_and_b32 v4, v4, v6")
        A("s_nop 0")
        A("v_readfirstlane_b32 s57, v4")
        A("s_nop 3")
        A("s_cmp_lg_u32 s57, 0")
        A("s_cbranch_scc1 L_mld")
        self.spin_tail("L_mlw", "L_mld", 8)
        self.lab("L_mld")
        self.ts(6)
        A("v_max3_f32 v16, v8, v9, v10")
        A("v_max_f32 v16, v16, v11")
        for w in range(4):
            A(f"v_sub_f32 v{8+w}, v{8+w}, v16")
        for w in range(4):
            A(f"v_mul_f32 v{8+w}, s59, v{8+w}")
        for w in range(4):
            A(f"v_exp_f32 v{8+w}, v{8+w}")
        self.nop(1)
        A("v_mul_f32 v17, v8, v12")
        for w in range(1, 4):
            A(f"v_fmac_f32 v17, v{8+w}, v{12+w}")
        A("s_lshl_b32 s49, s47, 5")
        A(f"s_add_u32 s49, s49, {WS_ML}")
        A("v_lshlrev_b32 v28, 3, v1")
        A("v_add_u32 v28, s49, v28")
        A("s_lshl_b32 s49, s42, 9")
        A(f"s_add_u32 s49, s49, {WS_SYNC}")
        A("v_mov_b32 v3, s49")
        A("v_mov_b32 v30, 1")
        A("s_mov_b64 exec, 15")
        A("global_store_dwordx2 v28, v[16:17], s[40:41] sc1")
        A("s_waitcnt vmcnt(0)")
        A("s_mov_b64 exec, 1")
        A("global_atomic_add v3, v30, s[40:41] sc1")
        A("s_mov_b64 exec, -1")
        A("v_lshlrev_b32 v28, 5, v1")
        self.spin_init()
        A("s_mov_b64 exec, 0xff")
        self.lab("L_allw")
        A("global_load_dword v4, v28, s[38:39] offset:4 sc1")
        A("s_waitcnt vmcnt(0)")
        A(f"v_cmp_le_u32 vcc, {0 if opt.get('noallpoll') else 32}, v4")
        A("s_nop 1")
        A("s_cmp_eq_u64 vcc, exec")
        A("s_cbranch_scc1 L_alld")
        self.spin_tail("L_allw", "L_alld", 32)
        self.lab("L_alld")
        A("s_mov_b64 exec, -1")
        A("s_lshl_b32 s49, s47, 14")
        A(f"s_add_u32 s49, s49, {WS_WT}")
        A("v_add_u32 v31, s49, v2")
        for i in range(16):
            if i and i % 4 == 0:
                A("v_add_u32 v31, 4096, v31")
            if not opt.get("nowt"):
                A(f"global_load_dwordx4 v[{WP+4*i}:{WP+4*i+3}], v31, s[40:41] offset:{1024*(i%4)} sc1")
        self.spin_init()
        A("s_mov_b64 exec, 1")
        self.lab("L_cmlw")
        A("global_load_dword v4, v3, s[40:41] sc1")
        A("s_waitcnt vmcnt(0)")
        A("v_readfirstlane_b32 s57, v4")
        A("s_nop 3")
        A(f"s_cmp_ge_u32 s57, {0 if opt.get('nomlpoll') else 32}")
        A("s_cbranch_scc1 L_cmld")
        self.spin_tail("L_cmlw", "L_cmld", opt.get("mlsleep", 16))
        self.lab("L_cmld")
        A("s_mov_b64 exec, -1")
        self.ts(7)
        A("s_lshl_b32 s49, s42, 10")
        A(f"s_add_u32 s49, s49, {WS_ML}")
        A("v_lshlrev_b32 v28, 3, v1")
        A("v_add_u32 v28, s49, v28")
        A("global_load_dwordx2 v[8:9], v28, s[40:41] sc1")
        A("global_load_dwordx2 v[10:11], v28, s[40:41] offset:512 sc1")
        A("s_waitcnt vmcnt(0)")
        A("v_max_f32 v16, v8, v10")
        for r in (4, 8):
            self.nop(2)
            A(f"v_max_f32_dpp v16, v16, v16 row_ror:{r} row_mask:0xf bank_mask:0xf")
        self.rows_reduce("max", "v16", "v17")
        A("v_sub_f32 v8, v8, v16")
        A("v_sub_f32 v10, v10, v16")
        A("v_mul_f32 v8, s59, v8")
        A("v_mul_f32 v10, s59, v10")
        A("v_exp_f32 v8, v8")
        A("v_exp_f32 v10, v10")
        self.nop(1)
        A("v_mul_f32 v17, v8, v9")
        A("v_fmac_f32 v17, v10, v11")
        for r in (4, 8):
            self.nop(2)
            A(f"v_add_f32_dpp v17, v17, v17 row_ror:{r} row_mask:0xf bank_mask:0xf")
        self.rows_reduce("add", "v17", "v18")
        A("v_rcp_f32 v18, v17")
        self.nop(1)
        A("v_fma_f32 v19, -v17, v18, 1.0")
        A("v_fmac_f32 v18, v19, v18")
        A("v_lshlrev_b32 v28, 2, v1")
        A(f"v_add_u32 v28, {FIN}, v28")
        A(f"v_mov_b32 v29, {FINF}")
        A("s_mov_b64 exec, 15")
        A("ds_write_b32 v28, v16")
        A("ds_write_b32 v28, v18 offset:16")
        A("s_waitcnt lgkmcnt(0)")
        A("s_mov_b64 exec, 1")
        A("ds_write_b32 v29, v30")
        A("s_mov_b64 exec, -1")
        A("v_lshlrev_b32 v28, 2, v1")
        A(f"v_add_u32 v29, {PART}, v28")
        A("s_lshl_b32 s49, s42, 11")
        A(f"s_add_u32 s49, s49, {WS_O}")
        A("v_add_u32 v32, s49, v28")
        A("s_lshl_b32 s49, s42, 2")
        A(f"s_add_u32 s49, s49, {WS_GFIN}")
        A("v_mov_b32 v33, s49")
        if opt.get("fin", "go") == "go":
            A("v_and_b32 v34, 7, v1")
            A("v_lshlrev_b32 v34, 2, v34")
            A(f"v_add_u32 v34, {WS_GFIN}, v34")
        else:
            A("v_and_b32 v34, 7, v1")
            A("v_lshlrev_b32 v34, 9, v34")
            A(f"v_add_u32 v34, {WS_SYNC + 256}, v34")
        A(f"v_add_u32 v31, {WS_O}, v2")
        A(f"v_add_u32 v35, 4096, v31")
        A(f"v_add_u32 v36, 8192, v31")
        A(f"v_add_u32 v37, 12288, v31")
        self.ts(8)
        A("s_waitcnt lgkmcnt(0)")
        A("s_barrier")
        self.ts(9)
        PR = 192
        for k in range(8):
            for w in range(4):
                A(f"ds_read_b32 v{PR+4*k+w}, v29 offset:{2048*w + 256*k}")
        for k in range(8):
            A(f"s_waitcnt lgkmcnt({min(15, 4*(7-k))})")
            A(f"v_add_f32 v{PR+4*k}, v{PR+4*k}, v{PR+4*k+1}")
            A(f"v_add_f32 v{PR+4*k+2}, v{PR+4*k+2}, v{PR+4*k+3}")
            A(f"v_add_f32 v{PR+4*k}, v{PR+4*k}, v{PR+4*k+2}")
            A(f"global_atomic_add_f32 v32, v{PR+4*k}, s[40:41] offset:{256*k} sc1")
        A("s_waitcnt vmcnt(0)")
        self.ts(10)
        A("s_mov_b64 exec, 1")
        if opt.get("fin", "go") == "go":
            A("global_atomic_add v4, v3, v30, s[40:41] offset:256 sc0 sc1")
            A("s_waitcnt vmcnt(0)")
            A("v_readfirstlane_b32 s57, v4")
            A("s_nop 3")
            A("s_cmp_lg_u32 s57, 31")
            A("s_cbranch_scc1 L_notlast")
            A("global_store_dword v33, v30, s[40:41] sc1")
            self.lab("L_notlast")
            target = 1
        else:
            A("global_atomic_add v3, v30, s[40:41] offset:256 sc1")
            target = 32
        A("s_mov_b64 exec, -1")
        self.ts(14)
        self.spin_init()
        A("s_mov_b64 exec, 0xff")
        self.lab("L_gow")
        A("global_load_dword v4, v34, s[40:41] sc1")
        A("s_waitcnt vmcnt(0)")
        A(f"v_cmp_eq_u32 vcc, {target}, v4")
        A("s_nop 1")
        A("s_cmp_eq_u64 vcc, exec")
        A("s_cbranch_scc1 L_god")
        self.spin_tail("L_gow", "L_god", opt.get("fsleep", 2))
        self.lab("L_god")
        A("s_mov_b64 exec, -1")
        self.ts(11)
        OR = 64
        for i in range(16):
            va = (31, 35, 36, 37)[i // 4]
            A(f"global_load_dwordx4 v[{OR+4*i}:{OR+4*i+3}], v{va}, s[40:41] offset:{1024*(i%4)} sc1")
        for c in range(4):
            A(f"v_mov_b32 v{8+c}, 0")
        for i in range(16):
            A(f"s_waitcnt vmcnt({15-i})")
            A(f"v_cvt_pk_bf16_f32 v12, v{OR+4*i}, v{OR+4*i+1}")
            A(f"v_cvt_pk_bf16_f32 v13, v{OR+4*i+2}, v{OR+4*i+3}")
            A(f"v_dot2c_f32_bf16 v8, v12, v{WP+4*i}")
            A(f"v_dot2c_f32_bf16 v9, v12, v{WP+4*i+1}")
            A(f"v_dot2c_f32_bf16 v10, v13, v{WP+4*i+2}")
            A(f"v_dot2c_f32_bf16 v11, v13, v{WP+4*i+3}")
        self.nop(3)
        A("v_add_f32 v8, v8, v10")
        A("v_add_f32 v9, v9, v11")
        for r in (1, 2, 4, 8):
            self.nop(1)
            A(f"v_add_f32_dpp v8, v8, v8 row_ror:{r} row_mask:0xf bank_mask:0xf")
            A(f"v_add_f32_dpp v9, v9, v9 row_ror:{r} row_mask:0xf bank_mask:0xf")
        for sw in ("16", "32"):
            A("v_mov_b32 v10, v8")
            A("v_mov_b32 v11, v9")
            self.nop(1)
            A(f"v_permlane{sw}_swap_b32 v8, v10")
            A(f"v_permlane{sw}_swap_b32 v9, v11")
            self.nop(1)
            A("v_add_f32 v8, v8, v10")
            A("v_add_f32 v9, v9, v11")
        self.bf16r("v8")
        self.bf16r("v9")
        A("v_mul_f32 v8, v8, v46")
        A("v_mul_f32 v9, v9, v47")
        self.bf16r("v8")
        self.bf16r("v9")
        A("v_lshlrev_b32 v10, 16, v40")
        A("v_and_b32 v11, 0xffff0000, v40")
        A("v_add_f32 v8, v8, v10")
        A("v_add_f32 v9, v9, v11")
        A("v_cvt_pk_bf16_f32 v8, v8, v9")
        A("v_mov_b32 v28, s51")
        A("s_mov_b64 exec, 1")
        A("global_store_dword v28, v8, s[36:37]")
        A("s_mov_b64 exec, -1")
        self.ts(12)


if __name__ == "__main__":
    out = sys.argv[1]
    opt = {}
    for a in sys.argv[2:]:
        k, _, v = a.partition("=")
        opt[k] = (int(v) if v.lstrip("-").isdigit() else v) if v else True
    open(out, "w").write(G3(**opt).gen())
```

```python
import sys, struct
from gen import G, NAME, HEADER, f32, LOG2E, SCALE
from gen2 import G2

RING = 0
WQ = 131072
PART = WQ
WST = 147456
XN = 159744
QS = 160768
ML = 161792
MLF = ML + 128
FIN = ML + 160
FINF = ML + 192
LDS_BYTES = 162304

WS_Q = 0
WS_ML = 8192
WS_O = 16384
WS_SYNC = 32768
WS_GFIN = 32768 + 4096
WS_TS = 65536
WS_WT = 1 << 20
WS_QP = 786432


WS_MB = 851968


class G3(G2):
    def gen(self):
        A = self.A
        opt = self.opt
        NT = opt.get("nt", "nt")
        self.L.append(HEADER.rstrip("\n"))
        self.L.append(f"; @launch grid=(256,1,1) block=(320,1,1) lds={LDS_BYTES}")
        self.L.append('.amdgcn_target "amdgcn-amd-amdhsa--gfx950"')
        self.L.append(".text")
        self.L.append(f".globl {NAME}_kernel")
        self.L.append(".p2align 8")
        self.L.append(f".type {NAME}_kernel,@function")
        self.lab(f"{NAME}_kernel")
        A("s_cmp_ge_u32 s2, 256")
        A("s_cbranch_scc1 L_end")
        if opt.get("ts"):
            A("s_memrealtime s[66:67]")
        A("s_load_dwordx16 s[16:31], s[0:1], 0")
        A("s_load_dwordx8 s[32:39], s[0:1], 64")
        A("s_load_dwordx2 s[40:41], s[0:1], 96")
        A("v_lshrrev_b32 v1, 6, v0")
        A("s_and_b32 s42, s2, 7")
        A("v_readfirstlane_b32 s3, v1")
        A("s_lshr_b32 s43, s2, 3")
        A("v_and_b32 v1, 63, v0")
        A("s_lshl_b32 s47, s42, 5")
        A("s_add_u32 s47, s47, s43")
        if opt.get("ts"):
            A("s_lshl_b32 s62, s2, 3")
            A("s_add_u32 s62, s62, s3")
            A("s_cmp_eq_u32 s3, 0")
            A("s_cselect_b32 s63, 0, 3")
            A("s_add_u32 s62, s62, s63")
            A("s_lshl_b32 s62, s62, 8")
            A(f"s_add_u32 s62, s62, {WS_TS}")
        A("s_cmp_eq_u32 s3, 0")
        A("s_cbranch_scc1 L_helper")
        self.stream(NT)
        self.lab("L_helper")
        self.helper()
        self.lab("L_end")
        A("s_endpgm")
        self.L.append('.section .rodata,"a"')
        self.L.append(".p2align 6")
        self.L.append(f".amdhsa_kernel {NAME}_kernel")
        for s in ("next_free_vgpr 256", "next_free_sgpr 80", "accum_offset 256", "group_segment_fixed_size 0",
                  "kernarg_size 104", "user_sgpr_count 2", "user_sgpr_kernarg_segment_ptr 1",
                  "system_sgpr_workgroup_id_x 1", "float_denorm_mode_32 3"):
            self.L.append("  .amdhsa_" + s)
        self.L.append(".end_amdhsa_kernel")
        return "\n".join(self.L) + "\n"

    def sts(self, k):
        if not self.opt.get("ts"):
            return
        self.A(f"s_memrealtime s[{68+2*k}:{69+2*k}]")

    def sts_flush(self, n):
        if not self.opt.get("ts"):
            return
        A = self.A
        A("s_waitcnt lgkmcnt(0)")
        A("v_mov_b32 v26, s62")
        A("s_mov_b64 exec, 1")
        for k in range(n):
            A(f"v_mov_b32 v24, s{68+2*k}")
            A(f"v_mov_b32 v25, s{69+2*k}")
            A(f"global_store_dwordx2 v26, v[24:25], s[40:41] offset:{8*k}")
            A("s_nop 1")
        A("v_mov_b32 v24, s66")
        A("v_mov_b32 v25, s67")
        A(f"global_store_dwordx2 v26, v[24:25], s[40:41] offset:{8*15}")
        A("s_mov_b64 exec, -1")

    def stream(self, NT):
        A = self.A
        opt = self.opt
        D = opt.get("depth", 8)
        VOFF = 2; KRD = 6; VRD = 10; MSK = 18
        KST = 24; VST = 56; DA = 88; SP = 96; BT = 112; BQ = 128; OA = 192; SC = 224
        BUF = [24, 40, 56, 72, 112, 192, 208, 224]
        QT = 240
        A("s_sub_u32 s3, s3, 1")
        A("v_lshrrev_b32 v22, 4, v1")
        A("v_and_b32 v23, 15, v1")
        for q in range(4):
            c = 8 * (q & 1) + (q >> 1)
            A(f"v_lshl_or_b32 v{VOFF+q}, v22, 1, {c}")
            A(f"v_xor_b32 v{VOFF+q}, v{VOFF+q}, v23")
            A(f"v_lshlrev_b32 v{VOFF+q}, 4, v{VOFF+q}")
            A(f"v_lshl_or_b32 v{VOFF+q}, v22, 8, v{VOFF+q}")
        A("s_lshl_b32 s48, s3, 15")
        A("s_lshl_b32 s49, s43, 2")
        A("s_add_u32 s49, s49, s3")
        A("s_lshl_b32 s49, s49, 12")
        A("s_lshl_b32 s51, s42, 24")
        A("s_waitcnt lgkmcnt(0)")
        A("s_add_u32 s52, s18, s51")
        A("s_addc_u32 s53, s19, 0")
        A("s_and_b32 s53, s53, 0xffff")
        A("s_add_u32 s54, s20, s51")
        A("s_addc_u32 s55, s21, 0")
        A("s_and_b32 s55, s55, 0xffff")
        A("s_mov_b32 s44, s52")
        A("s_mov_b32 s45, s53")
        A(f"s_mov_b32 s46, {1 << 24}")
        A("s_mov_b32 s47, 0x20000")
        A("s_mov_b32 s56, s49")
        if opt.get("hfirst"):
            A("s_barrier")

        def refill(pp, wait=True):
            A(f"s_add_u32 m0, s48, {pp*4096}")
            if wait:
                A(f"s_waitcnt vmcnt({D-4})")
            else:
                A("s_nop 0")
            for q in range(4):
                A(f"buffer_load_dwordx4 v{VOFF+q}, s[44:47], s56 offen offset:{q*1024} {NT} lds")
            A(f"s_add_u32 s56, s56, {512*1024}")

        n0 = D // 4
        for pp in range(n0):
            refill(pp, wait=False)
        self.sts(0)
        A("v_and_b32 v24, 7, v23")
        A("v_lshlrev_b32 v24, 1, v24")
        A("v_lshrrev_b32 v25, 3, v23")
        A("v_or_b32 v24, v24, v25")
        A("v_lshlrev_b32 v25, 8, v23")
        A("v_add_u32 v25, s48, v25")
        for u in range(4):
            A(f"v_lshl_or_b32 v26, v22, 2, {u}")
            A("v_xor_b32 v26, v26, v24")
            A(f"v_lshl_add_u32 v{KRD+u}, v26, 4, v25")
        A("v_lshrrev_b32 v26, 2, v1")
        A("v_and_b32 v24, 7, v26")
        A("v_lshlrev_b32 v24, 1, v24")
        A("v_lshrrev_b32 v25, 3, v26")
        A("v_or_b32 v24, v24, v25")
        A("v_bfe_u32 v27, v1, 1, 1")
        A("v_xor_b32 v24, v24, v27")
        A("v_and_b32 v27, 1, v1")
        A("v_lshlrev_b32 v27, 3, v27")
        A("v_lshl_add_u32 v25, v26, 8, v27")
        A("v_add_u32 v25, s48, v25")
        for e in range(8):
            A(f"v_xor_b32 v26, {2*e}, v24")
            A(f"v_lshl_add_u32 v{VRD+e}, v26, 4, v25")
        A("v_lshrrev_b32 v26, 2, v23")
        for t in range(4):
            A(f"v_cmp_eq_u32 vcc, {t}, v26")
            self.nop(2)
            A(f"v_cndmask_b32 v{MSK+t}, 0, -1, vcc")
        A("v_and_b32 v26, 3, v1")
        A("v_lshlrev_b32 v26, 8, v26")
        A("v_lshl_add_u32 v26, v22, 6, v26")
        A(f"v_add_u32 v23, {QS}, v26")
        A(f"s_mov_b32 s58, {f32(SCALE)}")
        A("s_mov_b32 s57, 0")
        for pp in range(n0, 8):
            refill(pp)
        for pp in range(8):
            for u in range(4):
                r = BUF[pp] + 4 * u
                A(f"ds_read_b128 v[{r}:{r+3}], v{KRD+u} offset:{pp*4096}")
            A("s_waitcnt lgkmcnt(0)")
            refill(pp)
        self.sts(5)
        A("s_barrier")
        self.sts(1)
        for u in range(4):
            A(f"ds_read_b128 v[{QT+4*u}:{QT+4*u+3}], v23 offset:{16*u}")
        A("s_waitcnt lgkmcnt(0)")
        for t in range(4):
            for k in range(16):
                A(f"v_and_b32 v{BQ+16*t+k}, v{QT+k}, v{MSK+t}")
        self.nop(2)
        for pp in range(8):
            t, hf = pp >> 1, pp & 1
            d = DA + 4 * hf
            for u in range(4):
                c = "0" if (t == 0 and u == 0) else f"v[{d}:{d+3}]"
                r = BUF[pp] + 4 * u
                A(f"v_mfma_f32_16x16x32_bf16 v[{d}:{d+3}], v[{r}:{r+3}], v[{BQ+16*t+4*u}:{BQ+16*t+4*u+3}], {c}")
        A("s_branch L_kpost")
        self.lab("L_kloop")
        A("s_cmp_eq_u32 s57, 3")
        A("s_cselect_b32 s44, s54, s52")
        A("s_cselect_b32 s45, s55, s53")
        A("s_cselect_b32 s56, s49, s56")
        for pp in range(8):
            t, hf = pp >> 1, pp & 1
            for u in range(4):
                A(f"ds_read_b128 v[{KST+4*u}:{KST+4*u+3}], v{KRD+u} offset:{pp*4096}")
            A("s_waitcnt lgkmcnt(0)")
            d = DA + 4 * hf
            for u in range(4):
                c = "0" if (t == 0 and u == 0) else f"v[{d}:{d+3}]"
                A(f"v_mfma_f32_16x16x32_bf16 v[{d}:{d+3}], v[{KST+4*u}:{KST+4*u+3}], v[{BQ+16*t+4*u}:{BQ+16*t+4*u+3}], {c}")
            refill(pp)
        self.lab("L_kpost")
        for k in range(12):
            A(f"v_mov_b32 v{SP+k}, v{SP+k+4}")
        for k in range(4):
            A(f"v_cvt_pk_bf16_f32 v{QT+k}, v{DA+2*k}, v{DA+2*k+1}")
        for k in range(4):
            A(f"v_lshlrev_b32 v{QT+4+2*k}, 16, v{QT+k}")
            A(f"v_and_b32 v{QT+5+2*k}, 0xffff0000, v{QT+k}")
        for k in range(8):
            A(f"v_mul_f32 v{QT+4+k}, s58, v{QT+4+k}")
        for k in range(4):
            A(f"v_cvt_pk_bf16_f32 v{SP+12+k}, v{QT+4+2*k}, v{QT+5+2*k}")
        A("s_add_u32 s57, s57, 1")
        A("s_cmp_lt_u32 s57, 4")
        A("s_cbranch_scc1 L_kloop")
        self.sts(2)
        for k in range(16):
            A(f"v_lshlrev_b32 v{SC+2*k}, 16, v{SP+k}")
            A(f"v_and_b32 v{SC+2*k+1}, 0xffff0000, v{SP+k}")
        A(f"v_max3_f32 v24, v{SC}, v{SC+1}, v{SC+2}")
        A(f"v_max3_f32 v25, v{SC+3}, v{SC+4}, v{SC+5}")
        for k in range(6, 30, 4):
            A(f"v_max3_f32 v24, v24, v{SC+k}, v{SC+k+1}")
            A(f"v_max3_f32 v25, v25, v{SC+k+2}, v{SC+k+3}")
        A(f"v_max3_f32 v24, v24, v{SC+30}, v{SC+31}")
        A("v_max_f32 v24, v24, v25")
        for r in (4, 8):
            self.nop(2)
            A(f"v_max_f32_dpp v24, v24, v24 row_ror:{r} row_mask:0xf bank_mask:0xf")
        self.rows_reduce("max", "v24", "v25")
        A(f"s_mov_b32 s59, {f32(LOG2E)}")
        for k in range(32):
            A(f"v_sub_f32 v{SC+k}, v{SC+k}, v24")
        for k in range(32):
            A(f"v_mul_f32 v{SC+k}, s59, v{SC+k}")
        for k in range(32):
            A(f"v_exp_f32 v{SC+k}, v{SC+k}")
        self.nop(1)
        for k in range(16):
            A(f"v_cvt_pk_bf16_f32 v{SP+k}, v{SC+2*k}, v{SC+2*k+1}")
        st = 16
        while st >= 1:
            for k in range(st):
                A(f"v_add_f32 v{SC+k}, v{SC+k}, v{SC+k+st}")
            st >>= 1
        A(f"v_mov_b32 v25, v{SC}")
        for r in (4, 8):
            self.nop(2)
            A(f"v_add_f32_dpp v25, v25, v25 row_ror:{r} row_mask:0xf bank_mask:0xf")
        self.rows_reduce("add", "v25", "v26")
        A("v_mov_b32 v22, v24")
        A("s_lshl_b32 s57, s3, 5")
        A(f"s_add_u32 s57, s57, {ML}")
        A("v_lshl_add_u32 v26, v1, 2, s57")
        A("s_lshl_b32 s57, s3, 2")
        A(f"s_add_u32 s57, s57, {MLF}")
        A("v_mov_b32 v27, s57")
        A("v_mov_b32 v28, 1")
        A("s_mov_b64 exec, 15")
        A("ds_write_b32 v26, v24")
        A("ds_write_b32 v26, v25 offset:16")
        A("s_waitcnt lgkmcnt(0)")
        A("s_mov_b64 exec, 1")
        A("ds_write_b32 v27, v28")
        A("s_mov_b64 exec, -1")
        for i in range(32):
            A(f"v_mov_b32 v{OA+i}, 0")
        A("s_mov_b32 s57, 0")

        def viter(last):
            for t in range(4):
                for k in range(4):
                    A(f"v_and_b32 v{BT+4*t+k}, v{SP+k}, v{MSK+t}")
            if not last:
                for k in range(12):
                    A(f"v_mov_b32 v{SP+k}, v{SP+k+4}")
            for pp in range(8):
                t, hf = pp >> 1, pp & 1
                if last and (7 - pp) * 4 < D:
                    if pp == 7:
                        self.fin_wait()
                    A(f"s_waitcnt vmcnt({(7-pp)*4})")
                for e in range(8):
                    r = VST + 4 * e + 2 * hf
                    A(f"ds_read_b64_tr_b16 v[{r}:{r+1}], v{VRD+e} offset:{pp*4096}")
                A("s_waitcnt lgkmcnt(0)")
                if hf == 1:
                    for e in range(8):
                        o = OA + 4 * e
                        A(f"v_mfma_f32_16x16x32_bf16 v[{o}:{o+3}], v[{VST+4*e}:{VST+4*e+3}], v[{BT+4*t}:{BT+4*t+3}], v[{o}:{o+3}]")
                if not last:
                    refill(pp)
        self.lab("L_vloop")
        viter(False)
        A("s_add_u32 s57, s57, 1")
        A("s_cmp_lt_u32 s57, 3")
        A("s_cbranch_scc1 L_vloop")
        viter(True)
        self.sts(3)
        self.nop(4)
        for k in range(32):
            A(f"v_mul_f32 v{OA+k}, v24, v{OA+k}")
        for r in (4, 8):
            for k in range(32):
                A(f"v_add_f32_dpp v{OA+k}, v{OA+k}, v{OA+k} row_ror:{r} row_mask:0xf bank_mask:0xf")
        A("s_mov_b32 exec_lo, 0x000f000f")
        A("s_mov_b32 exec_hi, 0x000f000f")
        for e in range(8):
            A(f"ds_write_b128 v26, v[{OA+4*e}:{OA+4*e+3}] offset:{64*e}")
        A("s_mov_b64 exec, -1")
        A("s_waitcnt lgkmcnt(0)")
        A("s_barrier")
        self.sts(4)
        self.sts_flush(6)
        A("s_endpgm")

    def arrive_wait(self, name, dbg_off, mb_off, sleep):
        A = self.A
        if dbg_off is None:
            A("s_lshl_b32 s49, s42, 9")
            A(f"s_add_u32 s49, s49, {WS_SYNC}")
            A("v_mov_b32 v51, s49")
        A("s_waitcnt vmcnt(0)")
        A("s_mov_b64 exec, 1")
        if dbg_off is None:
            A(f"global_atomic_add v4, v51, v30, s[40:41] sc0 sc1")
        else:
            A(f"global_atomic_add v4, v3, v30, s[38:39] offset:{dbg_off} sc0 sc1")
        self.spin_init()
        A("s_waitcnt vmcnt(0)")
        A("v_readfirstlane_b32 s57, v4")
        A("s_nop 3")
        A("s_cmp_lg_u32 s57, 31")
        A(f"s_cbranch_scc1 L_aw_{name}")
        A("s_mov_b32 exec_lo, -1")
        A(f"global_store_dword v38, v30, s[40:41] offset:{mb_off} sc1")
        A(f"s_branch L_ad_{name}")
        self.lab(f"L_aw_{name}")
        A(f"global_load_dword v4, v39, s[40:41] offset:{mb_off} sc1")
        A("s_waitcnt vmcnt(0)")
        A("v_readfirstlane_b32 s57, v4")
        A("s_nop 3")
        A("s_cmp_lg_u32 s57, 0")
        A(f"s_cbranch_scc1 L_ad_{name}")
        self.spin_tail(f"L_aw_{name}", f"L_ad_{name}", sleep)
        self.lab(f"L_ad_{name}")
        A("s_mov_b64 exec, -1")

    def fin_wait(self):
        A = self.A
        A(f"v_mov_b32 v27, {FINF}")
        A("v_and_b32 v26, 3, v1")
        A(f"v_lshlrev_b32 v26, 2, v26")
        A(f"v_add_u32 v26, {FIN}, v26")
        self.spin_init()
        self.lab("L_finw")
        A("ds_read_b32 v28, v27")
        A("ds_read_b32 v24, v26")
        A("ds_read_b32 v25, v26 offset:16")
        A("s_waitcnt lgkmcnt(0)")
        A("v_readfirstlane_b32 s57, v28")
        A("s_nop 3")
        A("s_cmp_lg_u32 s57, 0")
        A("s_cbranch_scc1 L_find")
        self.spin_tail("L_finw", "L_find", 1)
        self.lab("L_find")
        A("v_sub_f32 v24, v22, v24")
        A("v_mul_f32 v24, s59, v24")
        A("v_exp_f32 v24, v24")
        self.nop(1)
        A("v_mul_f32 v24, v24, v25")
        A("v_and_b32 v26, 3, v1")
        A("v_lshlrev_b32 v26, 9, v26")
        A("v_lshrrev_b32 v27, 4, v1")
        A("v_lshl_add_u32 v26, v27, 4, v26")
        A("s_lshl_b32 s57, s3, 11")
        A(f"s_add_u32 s57, s57, {PART}")
        A("v_add_u32 v26, s57, v26")

    def helper(self):
        A = self.A
        opt = self.opt
        X = 8; T = 16; XP = 24
        tsn = 1 if opt.get("ts") else 0
        A("v_lshlrev_b32 v2, 4, v1")
        A("s_lshl_b32 s51, s47, 2")
        A("v_lshrrev_b32 v3, 3, v1")
        A("v_lshlrev_b32 v3, 13, v3")
        A("v_and_b32 v4, 7, v1")
        A("v_lshl_or_b32 v3, v4, 4, v3")
        A("s_lshl_b32 s48, s42, 10")
        A("s_lshl_b32 s49, s43, 5")
        A("s_add_u32 s48, s48, s49")
        A("s_and_b32 s44, s43, 7")
        A("s_lshr_b32 s45, s43, 3")
        A("s_lshl_b32 s56, s45, 20")
        A("s_lshl_b32 s49, s42, 10")
        A("s_add_u32 s56, s56, s49")
        A("s_lshl_b32 s49, s44, 7")
        A("s_add_u32 s56, s56, s49")
        A("s_waitcnt lgkmcnt(0)")
        A("global_load_dwordx4 v[24:27], v2, s[16:17]")
        A("s_mov_b32 s52, s22")
        A("s_and_b32 s53, s23, 0xffff")
        A(f"s_mov_b32 s54, {4 << 20}")
        A("s_mov_b32 s55, 0x20000")
        for k in range(16):
            A(f"s_mov_b32 m0, {WQ + 1024*k}")
            A("s_nop 0")
            A(f"buffer_load_dwordx4 v3, s[52:55], s56 offen nt lds")
            A("s_add_u32 s56, s56, 65536")
        if opt.get("hfirst"):
            A("s_barrier")
        self.ts_entry()
        self.ts(0)
        A("s_lshl_b32 s49, s48, 1")
        A(f"s_add_u32 s49, s49, {WS_O}")
        A("v_add_u32 v28, s49, v2")
        for i in range(4):
            A(f"v_mov_b32 v{32+i}, 0")
        A("s_mov_b64 exec, 15")
        A("global_store_dwordx4 v28, v[32:35], s[40:41] sc1")
        A("s_mov_b64 exec, -1")
        A("s_lshl_b32 s46, s47, 7")
        A(f"s_add_u32 s46, s46, {WS_MB}")
        A("v_add_u32 v28, s46, v2")
        A("s_lshl_b32 s49, s42, 9")
        A(f"s_add_u32 s49, s49, {WS_SYNC}")
        A("v_mov_b32 v29, s49")
        A("v_cmp_eq_u32 vcc, 4, v1")
        self.nop(2)
        A("v_cndmask_b32 v28, v28, v29, vcc")
        A("s_cmp_eq_u32 s43, 0")
        A("s_cselect_b32 exec_lo, 31, 15")
        A("s_mov_b32 exec_hi, 0")
        A("global_store_dwordx4 v28, v[32:35], s[40:41] sc1")
        A("s_mov_b64 exec, -1")
        A(f"v_lshlrev_b32 v28, 2, v1")
        A(f"v_add_u32 v28, {MLF}, v28")
        A("s_mov_b64 exec, 0xffff")
        A("ds_write_b32 v28, v32 offset:0")
        A("ds_write_b32 v28, v32 offset:32")
        A("s_mov_b64 exec, -1")
        A(f"s_waitcnt vmcnt({18 + 2*tsn})")
        self.ts(13)
        for i in range(4):
            A(f"v_lshlrev_b32 v{X+2*i}, 16, v{XP+i}")
            A(f"v_and_b32 v{X+2*i+1}, 0xffff0000, v{XP+i}")
        self.layernorm(X, T, XP)
        A(f"v_add_u32 v28, {XN}, v2")
        A(f"ds_write_b128 v28, v[{XP}:{XP+3}]")
        A("v_lshrrev_b32 v29, 4, v1")
        A("v_lshlrev_b32 v30, 4, v29")
        A("s_lshl_b32 s49, s45, 8")
        A(f"s_add_u32 s49, s49, {XN}")
        A("v_add_u32 v30, s49, v30")
        A("v_bfe_u32 v31, v1, 2, 2")
        A("v_lshl_add_u32 v31, v29, 3, v31")
        A("v_lshlrev_b32 v31, 7, v31")
        A("v_and_b32 v28, 3, v1")
        A("v_lshl_add_u32 v31, v28, 3, v31")
        A(f"v_add_u32 v31, {WQ}, v31")
        A("v_and_b32 v28, 15, v1")
        A("v_lshlrev_b32 v28, 6, v28")
        A("v_lshl_add_u32 v29, v29, 4, v28")
        A("s_lshl_b32 s49, s42, 13")
        A("s_lshl_b32 s56, s45, 11")
        A("s_add_u32 s49, s49, s56")
        A("s_lshl_b32 s56, s44, 8")
        A("s_add_u32 s49, s49, s56")
        A(f"s_add_u32 s49, s49, {WS_QP}")
        A("v_add_u32 v29, s49, v29")
        A("v_and_b32 v28, 15, v1")
        A("s_waitcnt lgkmcnt(0)")
        XO = 64; WO = 128; QD = 32
        for ks in range(4):
            A(f"ds_read_b128 v[{XO+4*ks}:{XO+4*ks+3}], v30 offset:{64*ks}")
        A("s_waitcnt vmcnt(0)")
        self.ts(1)
        for ks in range(4):
            for ct in range(4):
                r = WO + 16 * ks + 4 * ct
                A(f"ds_read_b64_tr_b16 v[{r}:{r+1}], v31 offset:{4096*ks + 32*ct}")
                A(f"ds_read_b64_tr_b16 v[{r+2}:{r+3}], v31 offset:{4096*ks + 32*ct + 512}")
            A("s_waitcnt lgkmcnt(0)")
            for ct in range(4):
                r = WO + 16 * ks + 4 * ct
                d = QD + 4 * ct
                c = "0" if ks == 0 else f"v[{d}:{d+3}]"
                A(f"v_mfma_f32_16x16x32_bf16 v[{d}:{d+3}], v[{r}:{r+3}], v[{XO+4*ks}:{XO+4*ks+3}], {c}")
        A("v_cmp_eq_u32 s[52:53], 1, v28")
        A("v_cmp_eq_u32 s[54:55], 2, v28")
        A("v_cmp_eq_u32 vcc, 3, v28")
        self.nop(6)
        for r in range(4):
            A(f"v_cndmask_b32 v{QD+r}, v{QD+r}, v{QD+4+r}, s[52:53]")
        for r in range(4):
            A(f"v_cndmask_b32 v{QD+r}, v{QD+r}, v{QD+8+r}, s[54:55]")
        for r in range(4):
            A(f"v_cndmask_b32 v{QD+r}, v{QD+r}, v{QD+12+r}, vcc")
        A("s_mov_b32 exec_lo, 0x000f000f")
        A("s_mov_b32 exec_hi, 0x000f000f")
        A(f"global_store_dwordx4 v29, v[{QD}:{QD+3}], s[40:41] sc1")
        A("s_mov_b64 exec, -1")
        A("s_waitcnt vmcnt(0)")
        A("s_lshl_b32 s49, s42, 5")
        A("v_mov_b32 v3, s49")
        A("v_mov_b32 v30, 1")
        A("s_lshl_b32 s49, s42, 12")
        A(f"s_add_u32 s49, s49, {WS_MB}")
        A("v_lshlrev_b32 v38, 7, v1")
        A("v_add_u32 v38, s49, v38")
        A("v_mov_b32 v39, s46")
        self.ts(2)
        self.arrive_wait("q", 0, 0, opt.get("qsleep", 2))
        if opt.get("ts"):
            A("s_mov_b64 exec, 1")
            A("v_mov_b32 v250, s50")
            A("v_mov_b32 v251, 0")
            A("v_mov_b32 v252, s62")
            A("global_store_dwordx2 v252, v[250:251], s[40:41] offset:128")
            A("s_mov_b64 exec, -1")
        self.ts(3)
        A("s_lshl_b32 s49, s42, 13")
        A(f"s_add_u32 s49, s49, {WS_QP}")
        A("v_lshlrev_b32 v28, 5, v1")
        A("v_add_u32 v28, s49, v28")
        A("v_add_u32 v29, 4096, v28")
        for rb in range(4):
            for hh in range(2):
                r = 64 + 8 * rb + 4 * hh
                A(f"global_load_dwordx4 v[{r}:{r+3}], v{28 + rb // 2}, s[40:41] offset:{2048*(rb%2) + 16*hh} sc1")
        A(f"v_add_u32 v28, {QS}, v2")
        A("s_waitcnt vmcnt(0)")
        for k in range(8):
            A(f"v_add_f32 v{64+k}, v{64+k}, v{72+k}")
            A(f"v_add_f32 v{80+k}, v{80+k}, v{88+k}")
        for k in range(8):
            A(f"v_add_f32 v{64+k}, v{64+k}, v{80+k}")
        for k in range(4):
            A(f"v_cvt_pk_bf16_f32 v{32+k}, v{64+2*k}, v{65+2*k}")
        A("ds_write_b128 v28, v[32:35]")
        A("s_waitcnt lgkmcnt(0)")
        A("s_barrier")
        self.ts(4)
        A(f"s_mov_b32 s59, {f32(LOG2E)}")
        A("s_mov_b32 s52, s24")
        A("s_and_b32 s53, s25, 0xffff")
        A(f"s_mov_b32 s54, {4 << 20}")
        A("s_mov_b32 s55, 0x20000")
        A("v_lshrrev_b32 v28, 3, v1")
        A("v_lshlrev_b32 v28, 10, v28")
        A("v_and_b32 v29, 7, v1")
        A("v_lshl_or_b32 v28, v29, 4, v28")
        A("s_lshl_b32 s56, s43, 17")
        A("s_lshl_b32 s49, s42, 7")
        A("s_add_u32 s56, s56, s49")
        for k in range(16):
            A(f"s_mov_b32 m0, {WQ + 1024*k}")
            A("s_nop 0")
            A(f"buffer_load_dwordx4 v28, s[52:55], s56 offen nt lds")
            A("s_add_u32 s56, s56, 8192")
        for a, (lo, base) in enumerate(((28, WST), (30, WST + 4096), (32, WST + 8192))):
            A(f"s_mov_b32 s52, s{lo}")
            A(f"s_and_b32 s53, s{lo+1}, 0xffff")
            A("s_mov_b32 s54, 3584")
            A("s_mov_b32 s55, 0x20000")
            A(f"s_mov_b32 m0, {base}")
            A("s_nop 0")
            for q in range(4):
                A(f"buffer_load_dwordx4 v2, s[52:55], 0 offen offset:{1024*q} lds")
        A("v_mov_b32 v28, s51")
        A("global_load_dword v40, v28, s[16:17]")
        A("v_mov_b32 v29, 0")
        A("global_load_ushort v41, v29, s[34:35]")
        self.layernorm(X, T, XP)
        A(f"v_add_u32 v28, {XN}, v2")
        A(f"ds_write_b128 v28, v[{XP}:{XP+3}]")
        A(f"v_mov_b32 v28, s51")
        A(f"v_add_u32 v28, {XN}, v28")
        A("s_waitcnt lgkmcnt(0)")
        A("ds_read_b32 v42, v28")
        A("v_and_b32 v29, 7, v1")
        A("v_lshrrev_b32 v30, 3, v1")
        A("v_lshlrev_b32 v28, 9, v29")
        A("v_lshl_add_u32 v28, v30, 4, v28")
        A(f"v_add_u32 v28, {WQ}, v28")
        A("v_lshlrev_b32 v31, 16, v30")
        A("v_lshl_add_u32 v31, v29, 4, v31")
        A("s_lshl_b32 s56, s42, 19")
        A("s_lshl_b32 s49, s43, 9")
        A("s_add_u32 s56, s56, s49")
        A(f"s_add_u32 s56, s56, {WS_WT}")
        A("v_add_u32 v31, s56, v31")
        A("s_waitcnt vmcnt(0) lgkmcnt(0)")
        WR = 64; WP = 128
        for a in range(4):
            for c in range(4):
                r = WR + 16 * a + 4 * c
                A(f"ds_read_b128 v[{r}:{r+3}], v28 offset:{4096*a + 128*c}")
        A("s_mov_b32 s56, 0x05040100")
        A("s_mov_b32 s57, 0x07060302")
        A("s_waitcnt lgkmcnt(0)")
        for a in range(4):
            for k in range(4):
                b = WR + 16 * a + k
                o = WP + 16 * a + 4 * k
                A(f"v_perm_b32 v{o}, v{b+4}, v{b}, s56")
                A(f"v_perm_b32 v{o+1}, v{b+4}, v{b}, s57")
                A(f"v_perm_b32 v{o+2}, v{b+12}, v{b+8}, s56")
                A(f"v_perm_b32 v{o+3}, v{b+12}, v{b+8}, s57")
        for k in range(4):
            for a in range(4):
                o = WP + 16 * a + 4 * k
                if not opt.get("nowt"):
                    A(f"global_store_dwordx4 v31, v[{o}:{o+3}], s[40:41] offset:{128*a} sc1")
            if k < 3:
                A("v_add_u32 v31, 16384, v31")
        A("v_lshlrev_b32 v44, 16, v42")
        A("v_and_b32 v45, 0xffff0000, v42")
        A("v_mov_b32 v46, 0")
        A("v_mov_b32 v47, 0")
        A(f"v_lshlrev_b32 v28, 2, v1")
        A(f"v_add_u32 v28, {WST}, v28")
        A("s_mov_b32 s57, 14")
        c1 = -2.0 * 0.7978845608028654 * LOG2E
        A(f"s_mov_b32 s58, {f32(c1)}")
        A(f"s_mov_b32 s56, {f32(c1 * 0.044715)}")
        self.lab("L_gate")
        A("ds_read_b32 v48, v28")
        A("ds_read_b32 v49, v28 offset:4096")
        A("ds_read_b32 v50, v28 offset:8192")
        A("v_add_u32 v28, 256, v28")
        A("s_waitcnt lgkmcnt(0)")
        A("v_lshlrev_b32 v51, 16, v48")
        A("v_and_b32 v52, 0xffff0000, v48")
        A("v_lshlrev_b32 v53, 16, v49")
        A("v_and_b32 v54, 0xffff0000, v49")
        A("v_lshlrev_b32 v55, 16, v50")
        A("v_and_b32 v56, 0xffff0000, v50")
        U = [8, 9, 10, 11]; Z = [12, 13, 14, 15]
        combos = [(44, 51, 53, 55, 46), (44, 52, 54, 56, 46), (45, 51, 53, 55, 47), (45, 52, 54, 56, 47)]
        for k, (h, w1, b1, w2, acc) in enumerate(combos):
            A(f"v_mul_f32 v{U[k]}, v{h}, v{w1}")
        for k in range(4):
            self.bf16r(f"v{U[k]}")
        for k, (h, w1, b1, w2, acc) in enumerate(combos):
            A(f"v_add_f32 v{U[k]}, v{U[k]}, v{b1}")
        for k in range(4):
            self.bf16r(f"v{U[k]}")
        for k in range(4):
            A(f"v_mul_f32 v{Z[k]}, v{U[k]}, v{U[k]}")
        for k in range(4):
            A(f"v_mul_f32 v{Z[k]}, s56, v{Z[k]}")
        for k in range(4):
            A(f"v_add_f32 v{Z[k]}, s58, v{Z[k]}")
        for k in range(4):
            A(f"v_mul_f32 v{Z[k]}, v{Z[k]}, v{U[k]}")
        for k in range(4):
            A(f"v_exp_f32 v{Z[k]}, v{Z[k]}")
        self.nop(1)
        for k in range(4):
            A(f"v_add_f32 v{Z[k]}, 1.0, v{Z[k]}")
        for k in range(4):
            A(f"v_rcp_f32 v{Z[k]}, v{Z[k]}")
        self.nop(1)
        for k in range(4):
            A(f"v_mul_f32 v{U[k]}, v{U[k]}, v{Z[k]}")
        for k in range(4):
            self.bf16r(f"v{U[k]}")
        for k, (h, w1, b1, w2, acc) in enumerate(combos):
            A(f"v_fmac_f32 v{acc}, v{U[k]}, v{w2}")
        A("s_sub_u32 s57, s57, 1")
        A("s_cmp_lg_u32 s57, 0")
        A("s_cbranch_scc1 L_gate")
        A("s_waitcnt vmcnt(0)")
        self.allreduce64("add", "v46", "v16")
        self.allreduce64("add", "v47", "v16")
        A("v_lshlrev_b32 v41, 16, v41")
        for a in (46, 47):
            self.bf16r(f"v{a}")
            A(f"v_add_f32 v{a}, v{a}, v41")
            self.bf16r(f"v{a}")
            A(f"v_mul_f32 v16, s59, v{a}")
            A("v_exp_f32 v16, -v16")
            self.nop(1)
            A("v_add_f32 v16, 1.0, v16")
            A("v_rcp_f32 v17, v16")
            self.nop(1)
            A(f"v_mul_f32 v18, v{a}, v17")
            A(f"v_fma_f32 v19, -v18, v16, v{a}")
            A("v_fma_f32 v19, v19, v17, v18")
            A("v_cmp_gt_f32 vcc, 0x7f000000, v16")
            self.nop(2)
            A(f"v_cndmask_b32 v{a}, v18, v19, vcc")
            self.bf16r(f"v{a}")
        self.ts(5)
        A(f"v_mov_b32 v28, {MLF}")
        A("v_and_b32 v29, 3, v1")
        A("v_lshlrev_b32 v29, 2, v29")
        A(f"v_add_u32 v29, {ML}, v29")
        self.spin_init()
        self.lab("L_mlw")
        A("ds_read_b128 v[4:7], v28")
        for w in range(4):
            A(f"ds_read_b32 v{8+w}, v29 offset:{32*w}")
            A(f"ds_read_b32 v{12+w}, v29 offset:{32*w+16}")
        A("s_waitcnt lgkmcnt(0)")
        A("v_and_b32 v4, v4, v5")
        A("v_and_b32 v6, v6, v7")
        A("v_and_b32 v4, v4, v6")
        A("s_nop 0")
        A("v_readfirstlane_b32 s57, v4")
        A("s_nop 3")
        A("s_cmp_lg_u32 s57, 0")
        A("s_cbranch_scc1 L_mld")
        self.spin_tail("L_mlw", "L_mld", 8)
        self.lab("L_mld")
        self.ts(6)
        A("v_max3_f32 v16, v8, v9, v10")
        A("v_max_f32 v16, v16, v11")
        for w in range(4):
            A(f"v_sub_f32 v{8+w}, v{8+w}, v16")
        for w in range(4):
            A(f"v_mul_f32 v{8+w}, s59, v{8+w}")
        for w in range(4):
            A(f"v_exp_f32 v{8+w}, v{8+w}")
        self.nop(1)
        A("v_mul_f32 v17, v8, v12")
        for w in range(1, 4):
            A(f"v_fmac_f32 v17, v{8+w}, v{12+w}")
        A("s_lshl_b32 s49, s47, 5")
        A(f"s_add_u32 s49, s49, {WS_ML}")
        A("v_lshlrev_b32 v28, 3, v1")
        A("v_add_u32 v28, s49, v28")
        A("v_mov_b32 v30, 1")
        A("s_mov_b64 exec, 15")
        A("global_store_dwordx2 v28, v[16:17], s[40:41] sc1")
        A("s_mov_b64 exec, -1")
        A("v_lshlrev_b32 v28, 5, v1")
        self.spin_init()
        A("s_mov_b64 exec, 0xff")
        self.lab("L_allw")
        A("global_load_dword v4, v28, s[38:39] sc1")
        A("s_waitcnt vmcnt(0)")
        A(f"v_cmp_le_u32 vcc, 32, v4")
        A("s_nop 1")
        A("s_cmp_eq_u64 vcc, exec")
        A("s_cbranch_scc1 L_alld")
        self.spin_tail("L_allw", "L_alld", 32)
        self.lab("L_alld")
        A("s_mov_b64 exec, -1")
        self.arrive_wait("ml", None, 4, opt.get("mlsleep", 16))
        A("s_lshl_b32 s49, s47, 14")
        A(f"s_add_u32 s49, s49, {WS_WT}")
        A("v_add_u32 v31, s49, v2")
        for i in range(16):
            if i and i % 4 == 0:
                A("v_add_u32 v31, 4096, v31")
            A(f"global_load_dwordx4 v[{WP+4*i}:{WP+4*i+3}], v31, s[40:41] offset:{1024*(i%4)} sc1")
        self.ts(7)
        A("s_lshl_b32 s49, s42, 10")
        A(f"s_add_u32 s49, s49, {WS_ML}")
        A("v_lshlrev_b32 v28, 3, v1")
        A("v_add_u32 v28, s49, v28")
        A("global_load_dwordx2 v[8:9], v28, s[40:41] sc1")
        A("global_load_dwordx2 v[10:11], v28, s[40:41] offset:512 sc1")
        A("s_waitcnt vmcnt(0)")
        A("v_max_f32 v16, v8, v10")
        for r in (4, 8):
            self.nop(2)
            A(f"v_max_f32_dpp v16, v16, v16 row_ror:{r} row_mask:0xf bank_mask:0xf")
        self.rows_reduce("max", "v16", "v17")
        A("v_sub_f32 v8, v8, v16")
        A("v_sub_f32 v10, v10, v16")
        A("v_mul_f32 v8, s59, v8")
        A("v_mul_f32 v10, s59, v10")
        A("v_exp_f32 v8, v8")
        A("v_exp_f32 v10, v10")
        self.nop(1)
        A("v_mul_f32 v17, v8, v9")
        A("v_fmac_f32 v17, v10, v11")
        for r in (4, 8):
            self.nop(2)
            A(f"v_add_f32_dpp v17, v17, v17 row_ror:{r} row_mask:0xf bank_mask:0xf")
        self.rows_reduce("add", "v17", "v18")
        A("v_rcp_f32 v18, v17")
        self.nop(1)
        A("v_fma_f32 v19, -v17, v18, 1.0")
        A("v_fmac_f32 v18, v19, v18")
        A("v_lshlrev_b32 v28, 2, v1")
        A(f"v_add_u32 v28, {FIN}, v28")
        A(f"v_mov_b32 v29, {FINF}")
        A("s_mov_b64 exec, 15")
        A("ds_write_b32 v28, v16")
        A("ds_write_b32 v28, v18 offset:16")
        A("s_waitcnt lgkmcnt(0)")
        A("s_mov_b64 exec, 1")
        A("ds_write_b32 v29, v30")
        A("s_mov_b64 exec, -1")
        A("v_lshlrev_b32 v28, 2, v1")
        A(f"v_add_u32 v29, {PART}, v28")
        A("s_lshl_b32 s49, s42, 11")
        A(f"s_add_u32 s49, s49, {WS_O}")
        A("v_add_u32 v32, s49, v28")
        A("s_lshl_b32 s49, s42, 2")
        A(f"s_add_u32 s49, s49, {WS_MB + 32}")
        A("v_lshlrev_b32 v33, 7, v1")
        A("v_add_u32 v33, s49, v33")
        A("v_add_u32 v48, 8192, v33")
        A("v_add_u32 v49, 16384, v33")
        A("v_add_u32 v50, 24576, v33")
        A("v_add_u32 v34, s46, v2")
        A(f"v_add_u32 v31, {WS_O}, v2")
        A(f"v_add_u32 v35, 4096, v31")
        A(f"v_add_u32 v36, 8192, v31")
        A(f"v_add_u32 v37, 12288, v31")
        self.ts(8)
        A("s_waitcnt lgkmcnt(0)")
        A("s_barrier")
        self.ts(9)
        PR = 192
        for k in range(8):
            for w in range(4):
                A(f"ds_read_b32 v{PR+4*k+w}, v29 offset:{2048*w + 256*k}")
        for k in range(8):
            A(f"s_waitcnt lgkmcnt({min(15, 4*(7-k))})")
            A(f"v_add_f32 v{PR+4*k}, v{PR+4*k}, v{PR+4*k+1}")
            A(f"v_add_f32 v{PR+4*k+2}, v{PR+4*k+2}, v{PR+4*k+3}")
            A(f"v_add_f32 v{PR+4*k}, v{PR+4*k}, v{PR+4*k+2}")
            A(f"global_atomic_add_f32 v32, v{PR+4*k}, s[40:41] offset:{256*k} sc1")
        A("s_waitcnt vmcnt(0)")
        self.ts(10)
        A("s_mov_b64 exec, 1")
        A("global_atomic_add v4, v51, v30, s[40:41] offset:4 sc0 sc1")
        A("s_waitcnt vmcnt(0)")
        A("v_readfirstlane_b32 s57, v4")
        A("s_mov_b64 exec, -1")
        A("s_nop 2")
        A("s_cmp_lg_u32 s57, 31")
        A("s_cbranch_scc1 L_notlast")
        for r in (33, 48, 49, 50):
            A(f"global_store_dword v{r}, v30, s[40:41] sc1")
        self.lab("L_notlast")
        self.ts(14)
        self.spin_init()
        A("s_mov_b64 exec, 3")
        self.lab("L_gow")
        A("global_load_dwordx4 v[4:7], v34, s[40:41] offset:32 sc1")
        A("s_waitcnt vmcnt(0)")
        A("v_and_b32 v4, v4, v5")
        A("v_and_b32 v6, v6, v7")
        A("v_and_b32 v4, v4, v6")
        A(f"v_cmp_eq_u32 vcc, 1, v4")
        A("s_nop 1")
        A("s_cmp_eq_u64 vcc, exec")
        A("s_cbranch_scc1 L_god")
        self.spin_tail("L_gow", "L_god", opt.get("fsleep", 2))
        self.lab("L_god")
        A("s_mov_b64 exec, -1")
        self.ts(11)
        OR = 64
        for i in range(16):
            va = (31, 35, 36, 37)[i // 4]
            A(f"global_load_dwordx4 v[{OR+4*i}:{OR+4*i+3}], v{va}, s[40:41] offset:{1024*(i%4)} sc1")
        for c in range(4):
            A(f"v_mov_b32 v{8+c}, 0")
        for i in range(16):
            A(f"s_waitcnt vmcnt({15-i})")
            A(f"v_cvt_pk_bf16_f32 v12, v{OR+4*i}, v{OR+4*i+1}")
            A(f"v_cvt_pk_bf16_f32 v13, v{OR+4*i+2}, v{OR+4*i+3}")
            A(f"v_dot2c_f32_bf16 v8, v12, v{WP+4*i}")
            A(f"v_dot2c_f32_bf16 v9, v12, v{WP+4*i+1}")
            A(f"v_dot2c_f32_bf16 v10, v13, v{WP+4*i+2}")
            A(f"v_dot2c_f32_bf16 v11, v13, v{WP+4*i+3}")
        self.nop(3)
        A("v_add_f32 v8, v8, v10")
        A("v_add_f32 v9, v9, v11")
        for r in (1, 2, 4, 8):
            self.nop(1)
            A(f"v_add_f32_dpp v8, v8, v8 row_ror:{r} row_mask:0xf bank_mask:0xf")
            A(f"v_add_f32_dpp v9, v9, v9 row_ror:{r} row_mask:0xf bank_mask:0xf")
        for sw in ("16", "32"):
            A("v_mov_b32 v10, v8")
            A("v_mov_b32 v11, v9")
            self.nop(1)
            A(f"v_permlane{sw}_swap_b32 v8, v10")
            A(f"v_permlane{sw}_swap_b32 v9, v11")
            self.nop(1)
            A("v_add_f32 v8, v8, v10")
            A("v_add_f32 v9, v9, v11")
        self.bf16r("v8")
        self.bf16r("v9")
        A("v_mul_f32 v8, v8, v46")
        A("v_mul_f32 v9, v9, v47")
        self.bf16r("v8")
        self.bf16r("v9")
        A("v_lshlrev_b32 v10, 16, v40")
        A("v_and_b32 v11, 0xffff0000, v40")
        A("v_add_f32 v8, v8, v10")
        A("v_add_f32 v9, v9, v11")
        A("v_cvt_pk_bf16_f32 v8, v8, v9")
        A("v_mov_b32 v28, s51")
        A("s_mov_b64 exec, 1")
        A("global_store_dword v28, v8, s[36:37]")
        A("s_mov_b64 exec, -1")
        self.ts(12)


if __name__ == "__main__":
    out = sys.argv[1]
    opt = {}
    for a in sys.argv[2:]:
        k, _, v = a.partition("=")
        opt[k] = (int(v) if v.lstrip("-").isdigit() else v) if v else True
    open(out, "w").write(G3(**opt).gen())
```

```python
import sys, struct
from gen import G, NAME, HEADER, f32, LOG2E, SCALE
from gen2 import G2
import gen
_ts0 = gen.G.ts
def _ts(self, slot, sreg="s[74:75]", vt=("v250", "v251", "v252")):
    return _ts0(self, slot, sreg, vt)
gen.G.ts = _ts

RING = 0
WQ = 131072
PART = 147456
WST = 147456
XN = 159744
QS = 160768
ML = 161792
MLF = ML + 128
FIN = ML + 160
FINF = ML + 192
LDS_BYTES = 162304

WS_Q = 0
WS_ML = 8192
WS_O = 16384
WS_SYNC = 32768
WS_GFIN = 32768 + 4096
WS_TS = 65536
WS_WT = 1 << 20
WS_QP = 786432


WS_SACC = 40960
WS_G = 49152
WS_MB = 851968


class G3(G2):
    def gen(self):
        A = self.A
        opt = self.opt
        NT = opt.get("nt", "nt")
        self.L.append(HEADER.rstrip("\n"))
        self.L.append(f"; @launch grid=(256,1,1) block=(320,1,1) lds={LDS_BYTES}")
        self.L.append('.amdgcn_target "amdgcn-amd-amdhsa--gfx950"')
        self.L.append(".text")
        self.L.append(f".globl {NAME}_kernel")
        self.L.append(".p2align 8")
        self.L.append(f".type {NAME}_kernel,@function")
        self.lab(f"{NAME}_kernel")
        A("s_cmp_ge_u32 s2, 256")
        A("s_cbranch_scc1 L_end")
        if opt.get("ts") or opt.get("span"):
            A("s_memrealtime s[66:67]")
        A("s_load_dwordx16 s[16:31], s[0:1], 0")
        A("s_load_dwordx8 s[32:39], s[0:1], 64")
        A("s_load_dwordx2 s[40:41], s[0:1], 96")
        A("v_lshrrev_b32 v1, 6, v0")
        A("s_and_b32 s42, s2, 7")
        A("v_readfirstlane_b32 s3, v1")
        A("s_lshr_b32 s43, s2, 3")
        A("v_and_b32 v1, 63, v0")
        A("s_lshl_b32 s47, s42, 5")
        A("s_add_u32 s47, s47, s43")
        if opt.get("ts"):
            A("s_lshl_b32 s62, s2, 3")
            A("s_add_u32 s62, s62, s3")
            A("s_cmp_eq_u32 s3, 0")
            A("s_cselect_b32 s63, 0, 3")
            A("s_add_u32 s62, s62, s63")
            A("s_lshl_b32 s62, s62, 8")
            A(f"s_add_u32 s62, s62, {WS_TS}")
        A("s_cmp_eq_u32 s3, 0")
        A("s_cbranch_scc1 L_helper")
        self.stream(NT)
        self.lab("L_helper")
        self.helper()
        self.lab("L_end")
        A("s_endpgm")
        self.L.append('.section .rodata,"a"')
        self.L.append(".p2align 6")
        self.L.append(f".amdhsa_kernel {NAME}_kernel")
        for s in ("next_free_vgpr 256", "next_free_sgpr 80", "accum_offset 256", "group_segment_fixed_size 0",
                  "kernarg_size 104", "user_sgpr_count 2", "user_sgpr_kernarg_segment_ptr 1",
                  "system_sgpr_workgroup_id_x 1", "float_denorm_mode_32 3"):
            self.L.append("  .amdhsa_" + s)
        self.L.append(".end_amdhsa_kernel")
        return "\n".join(self.L) + "\n"

    def sts(self, k):
        if not self.opt.get("ts"):
            return
        self.A(f"s_memrealtime s[{68+2*k}:{69+2*k}]")

    def sts_flush(self, n):
        if not self.opt.get("ts"):
            return
        A = self.A
        A("s_waitcnt lgkmcnt(0)")
        A("v_mov_b32 v26, s62")
        A("s_mov_b64 exec, 1")
        for k in range(n):
            A(f"v_mov_b32 v24, s{68+2*k}")
            A(f"v_mov_b32 v25, s{69+2*k}")
            A(f"global_store_dwordx2 v26, v[24:25], s[40:41] offset:{8*k}")
            A("s_nop 1")
        A("v_mov_b32 v24, s66")
        A("v_mov_b32 v25, s67")
        A(f"global_store_dwordx2 v26, v[24:25], s[40:41] offset:{8*15}")
        A("s_mov_b64 exec, -1")

    def stream(self, NT):
        A = self.A
        opt = self.opt
        D = opt.get("depth", 8)
        VOFF = 2; KRD = 6; VRD = 10; MSK = 18
        QV = 24; BQT = 40; DA = 56
        KST = 64; SP = 80; QT = 96; VST = 112; BT = 144; OA = 160; SC = 192
        BUF = [64 + 16 * p for p in range(12)]
        D0 = opt.get("depth0", D)
        n_d0 = opt.get("nd0", 0)
        self.issued = 0
        A("s_sub_u32 s3, s3, 1")
        A("v_lshrrev_b32 v22, 4, v1")
        A("v_and_b32 v23, 15, v1")
        for q in range(4):
            c = 8 * (q & 1) + (q >> 1)
            A(f"v_lshl_or_b32 v{VOFF+q}, v22, 1, {c}")
            A(f"v_xor_b32 v{VOFF+q}, v{VOFF+q}, v23" if not opt.get("noswz") else f"v_mov_b32 v{VOFF+q}, v23")
            A(f"v_lshlrev_b32 v{VOFF+q}, 4, v{VOFF+q}")
            A(f"v_lshl_or_b32 v{VOFF+q}, v22, 8, v{VOFF+q}")
        A("s_lshl_b32 s48, s3, 15")
        A("s_lshl_b32 s49, s43, 2")
        A("s_add_u32 s49, s49, s3")
        A("s_lshl_b32 s49, s49, 12")
        A("s_lshl_b32 s51, s42, 24")
        A("s_waitcnt lgkmcnt(0)")
        A("s_add_u32 s52, s18, s51")
        A("s_addc_u32 s53, s19, 0")
        A("s_and_b32 s53, s53, 0xffff")
        A("s_add_u32 s54, s20, s51")
        A("s_addc_u32 s55, s21, 0")
        A("s_and_b32 s55, s55, 0xffff")
        A("s_mov_b32 s44, s52")
        A("s_mov_b32 s45, s53")
        A(f"s_mov_b32 s46, {1 << 24}")
        A("s_mov_b32 s47, 0x20000")
        A("s_mov_b32 s56, s49")
        if opt.get("hfirst"):
            A("s_barrier")

        def refill(pp, wait=True):
            A(f"s_add_u32 m0, s48, {pp*4096}")
            if wait:
                dd = D0 if self.issued < n_d0 else D
                A(f"s_waitcnt vmcnt({dd-4})")
            else:
                A("s_nop 0")
            for q in range(4):
                A(f"buffer_load_dwordx4 v{VOFF+q}, s[44:47], s56 offen offset:{q*1024} {NT} lds")
            A(f"s_add_u32 s56, s56, {512*1024}")
            self.issued += 1

        n0 = (D0 if n_d0 else D) // 4
        for pp in range(n0):
            refill(pp, wait=False)
        self.sts(0)
        A("v_and_b32 v24, 7, v23")
        A("v_lshlrev_b32 v24, 1, v24")
        A("v_lshrrev_b32 v25, 3, v23")
        A("v_or_b32 v24, v24, v25")
        A("v_lshlrev_b32 v25, 8, v23")
        A("v_add_u32 v25, s48, v25")
        for u in range(4):
            A(f"v_lshl_or_b32 v26, v22, 2, {u}")
            A("v_xor_b32 v26, v26, v24")
            A(f"v_lshl_add_u32 v{KRD+u}, v26, 4, v25")
        A("v_lshrrev_b32 v26, 2, v1")
        A("v_and_b32 v24, 7, v26")
        A("v_lshlrev_b32 v24, 1, v24")
        A("v_lshrrev_b32 v25, 3, v26")
        A("v_or_b32 v24, v24, v25")
        A("v_bfe_u32 v27, v1, 1, 1")
        A("v_xor_b32 v24, v24, v27")
        A("v_and_b32 v27, 1, v1")
        A("v_lshlrev_b32 v27, 3, v27")
        A("v_lshl_add_u32 v25, v26, 8, v27")
        A("v_add_u32 v25, s48, v25")
        for e in range(8):
            A(f"v_xor_b32 v26, {2*e}, v24")
            A(f"v_lshl_add_u32 v{VRD+e}, v26, 4, v25")
        A("v_lshrrev_b32 v26, 2, v23")
        for t in range(4):
            A(f"v_cmp_eq_u32 vcc, {t}, v26")
            self.nop(2)
            A(f"v_cndmask_b32 v{MSK+t}, 0, -1, vcc")
        A("v_and_b32 v26, 3, v1")
        A("v_lshlrev_b32 v26, 8, v26")
        A("v_lshl_add_u32 v26, v22, 6, v26")
        A(f"v_add_u32 v23, {QS}, v26")
        A(f"s_mov_b32 s58, {f32(SCALE)}")
        A("s_mov_b32 s57, 0")
        for pp in range(n0, 8):
            refill(pp)
        for p in range(12):
            pp = p % 8
            for u in range(4):
                r = BUF[p] + 4 * u
                A(f"ds_read_b128 v[{r}:{r+3}], v{KRD+u} offset:{pp*4096}")
            A("s_waitcnt lgkmcnt(0)")
            refill(pp)
        self.sts(5)
        A("s_barrier")
        self.sts(1)
        for u in range(4):
            A(f"ds_read_b128 v[{QV+4*u}:{QV+4*u+3}], v23 offset:{16*u}")
        A("s_waitcnt lgkmcnt(0)")

        def bqt(t):
            for k in range(16):
                A(f"v_and_b32 v{BQT+k}, v{QV+k}, v{MSK+t}")

        def kmfma(pp, src):
            t, hf = pp >> 1, pp & 1
            d = DA + 4 * hf
            for u in range(4):
                c = "0" if (t == 0 and u == 0) else f"v[{d}:{d+3}]"
                r = src + 4 * u
                A(f"v_mfma_f32_16x16x32_bf16 v[{d}:{d+3}], v[{r}:{r+3}], v[{BQT+4*u}:{BQT+4*u+3}], {c}")

        def kpost():
            for k in range(12):
                A(f"v_mov_b32 v{SP+k}, v{SP+k+4}")
            for k in range(4):
                A(f"v_cvt_pk_bf16_f32 v{QT+k}, v{DA+2*k}, v{DA+2*k+1}")
            for k in range(4):
                A(f"v_lshlrev_b32 v{QT+4+2*k}, 16, v{QT+k}")
                A(f"v_and_b32 v{QT+5+2*k}, 0xffff0000, v{QT+k}")
            for k in range(8):
                A(f"v_mul_f32 v{QT+4+k}, s58, v{QT+4+k}")
            for k in range(4):
                A(f"v_cvt_pk_bf16_f32 v{SP+12+k}, v{QT+4+2*k}, v{QT+5+2*k}")

        for p in range(12):
            pp = p % 8
            if pp % 2 == 0:
                bqt(pp >> 1)
                self.nop(2)
            kmfma(pp, BUF[p])
            if p == 7:
                kpost()
        A("s_mov_b32 s57, 1")
        A("s_branch L_kmid")
        self.lab("L_kloop")
        A("s_cmp_eq_u32 s57, 3")
        A("s_cselect_b32 s44, s54, s52")
        A("s_cselect_b32 s45, s55, s53")
        A("s_cselect_b32 s56, s49, s56")
        for pp in range(8):
            if pp == 4:
                self.lab("L_kmid")
            for u in range(4):
                A(f"ds_read_b128 v[{KST+4*u}:{KST+4*u+3}], v{KRD+u} offset:{pp*4096}")
            if pp % 2 == 0:
                bqt(pp >> 1)
            A("s_waitcnt lgkmcnt(0)")
            self.nop(1)
            kmfma(pp, KST)
            refill(pp)
        self.lab("L_kpost")
        for k in range(12):
            A(f"v_mov_b32 v{SP+k}, v{SP+k+4}")
        for k in range(4):
            A(f"v_cvt_pk_bf16_f32 v{QT+k}, v{DA+2*k}, v{DA+2*k+1}")
        for k in range(4):
            A(f"v_lshlrev_b32 v{QT+4+2*k}, 16, v{QT+k}")
            A(f"v_and_b32 v{QT+5+2*k}, 0xffff0000, v{QT+k}")
        for k in range(8):
            A(f"v_mul_f32 v{QT+4+k}, s58, v{QT+4+k}")
        for k in range(4):
            A(f"v_cvt_pk_bf16_f32 v{SP+12+k}, v{QT+4+2*k}, v{QT+5+2*k}")
        A("s_add_u32 s57, s57, 1")
        A("s_cmp_lt_u32 s57, 4")
        A("s_cbranch_scc1 L_kloop")
        self.sts(2)
        for k in range(16):
            A(f"v_lshlrev_b32 v{SC+2*k}, 16, v{SP+k}")
            A(f"v_and_b32 v{SC+2*k+1}, 0xffff0000, v{SP+k}")
        A(f"v_max3_f32 v24, v{SC}, v{SC+1}, v{SC+2}")
        A(f"v_max3_f32 v25, v{SC+3}, v{SC+4}, v{SC+5}")
        for k in range(6, 30, 4):
            A(f"v_max3_f32 v24, v24, v{SC+k}, v{SC+k+1}")
            A(f"v_max3_f32 v25, v25, v{SC+k+2}, v{SC+k+3}")
        A(f"v_max3_f32 v24, v24, v{SC+30}, v{SC+31}")
        A("v_max_f32 v24, v24, v25")
        for r in (4, 8):
            self.nop(2)
            A(f"v_max_f32_dpp v24, v24, v24 row_ror:{r} row_mask:0xf bank_mask:0xf")
        self.rows_reduce("max", "v24", "v25")
        A(f"s_mov_b32 s59, {f32(LOG2E)}")
        for k in range(32):
            A(f"v_sub_f32 v{SC+k}, v{SC+k}, v24")
        for k in range(32):
            A(f"v_mul_f32 v{SC+k}, s59, v{SC+k}")
        for k in range(32):
            A(f"v_exp_f32 v{SC+k}, v{SC+k}")
        self.nop(1)
        for k in range(16):
            A(f"v_cvt_pk_bf16_f32 v{SP+k}, v{SC+2*k}, v{SC+2*k+1}")
        st = 16
        while st >= 1:
            for k in range(st):
                A(f"v_add_f32 v{SC+k}, v{SC+k}, v{SC+k+st}")
            st >>= 1
        A(f"v_mov_b32 v25, v{SC}")
        for r in (4, 8):
            self.nop(2)
            A(f"v_add_f32_dpp v25, v25, v25 row_ror:{r} row_mask:0xf bank_mask:0xf")
        self.rows_reduce("add", "v25", "v26")
        A("v_mov_b32 v22, v24")
        A("s_lshl_b32 s57, s3, 5")
        A(f"s_add_u32 s57, s57, {ML}")
        A("v_lshl_add_u32 v26, v1, 2, s57")
        A("s_lshl_b32 s57, s3, 2")
        A(f"s_add_u32 s57, s57, {MLF}")
        A("v_mov_b32 v27, s57")
        A("v_mov_b32 v28, 1")
        A("s_mov_b64 exec, 15")
        A("ds_write_b32 v26, v24")
        A("ds_write_b32 v26, v25 offset:16")
        A("s_waitcnt lgkmcnt(0)")
        A("s_mov_b64 exec, 1")
        A("ds_write_b32 v27, v28")
        A("s_mov_b64 exec, -1")
        for i in range(32):
            A(f"v_mov_b32 v{OA+i}, 0")
        A("s_mov_b32 s57, 0")

        def viter(last):
            for t in range(4):
                for k in range(4):
                    A(f"v_and_b32 v{BT+4*t+k}, v{SP+k}, v{MSK+t}")
            if not last:
                for k in range(12):
                    A(f"v_mov_b32 v{SP+k}, v{SP+k+4}")
            for pp in range(8):
                t, hf = pp >> 1, pp & 1
                if last and (7 - pp) * 4 < D:
                    if pp == 7:
                        self.fin_wait()
                    A(f"s_waitcnt vmcnt({(7-pp)*4})")
                for e in range(8):
                    r = VST + 4 * e + 2 * hf
                    A(f"ds_read_b64_tr_b16 v[{r}:{r+1}], v{VRD+e} offset:{pp*4096}")
                A("s_waitcnt lgkmcnt(0)")
                if hf == 1:
                    for e in range(8):
                        o = OA + 4 * e
                        A(f"v_mfma_f32_16x16x32_bf16 v[{o}:{o+3}], v[{VST+4*e}:{VST+4*e+3}], v[{BT+4*t}:{BT+4*t+3}], v[{o}:{o+3}]")
                if not last:
                    refill(pp)
        self.lab("L_vloop")
        viter(False)
        A("s_add_u32 s57, s57, 1")
        A("s_cmp_lt_u32 s57, 3")
        A("s_cbranch_scc1 L_vloop")
        viter(True)
        self.sts(3)
        self.nop(4)
        for k in range(32):
            A(f"v_mul_f32 v{OA+k}, v24, v{OA+k}")
        for r in (4, 8):
            for k in range(32):
                A(f"v_add_f32_dpp v{OA+k}, v{OA+k}, v{OA+k} row_ror:{r} row_mask:0xf bank_mask:0xf")
        A("s_mov_b32 exec_lo, 0x000f000f")
        A("s_mov_b32 exec_hi, 0x000f000f")
        for e in range(8):
            A(f"ds_write_b128 v26, v[{OA+4*e}:{OA+4*e+3}] offset:{64*e}")
        A("s_mov_b64 exec, -1")
        A("s_waitcnt lgkmcnt(0)")
        A("s_barrier")
        self.sts(4)
        self.sts_flush(6)
        A("s_endpgm")

    def skipmem(self, tag, start):
        sk = str(self.opt.get("skip", "")).split("+")
        if tag not in sk:
            return
        for i in range(start, len(self.L)):
            t = self.L[i].strip()
            if (t.startswith("global_") or t.startswith("buffer_")) and "v252" not in t:
                self.L[i] = "  s_nop 0"

    def arrive_wait(self, name, dbg_off, mb_off, sleep):
        if name in str(self.opt.get("skip", "")).split("+"):
            self.A("s_lshl_b32 s49, s42, 9")
            self.A(f"s_add_u32 s49, s49, {WS_SYNC}")
            self.A("v_mov_b32 v51, s49")
            self.spin_init()
            return
        self.arrive_wait2(name, dbg_off, mb_off, sleep)

    def arrive_wait2(self, name, dbg_off, mb_off, sleep):
        A = self.A
        if dbg_off is None:
            A("s_lshl_b32 s49, s42, 9")
            A(f"s_add_u32 s49, s49, {WS_SYNC}")
            A("v_mov_b32 v51, s49")
        A("s_waitcnt vmcnt(0)")
        A("s_mov_b64 exec, 1")
        if dbg_off == "fin":
            A(f"global_atomic_add v4, v51, v30, s[40:41] offset:4 sc0 sc1")
        elif dbg_off is None:
            A(f"global_atomic_add v4, v51, v30, s[40:41] sc0 sc1")
        else:
            A(f"global_atomic_add v4, v3, v30, s[38:39] offset:{dbg_off} sc0 sc1")
        self.spin_init()
        A("s_waitcnt vmcnt(0)")
        A("v_readfirstlane_b32 s57, v4")
        A("s_nop 3")
        A("s_and_b32 s57, s57, 31")
        A("s_cmp_lg_u32 s57, 31")
        A(f"s_cbranch_scc1 L_aw_{name}")
        A("s_mov_b32 exec_lo, -1")
        A(f"global_store_dword v38, v30, s[40:41] offset:{mb_off} sc1")
        A(f"s_branch L_ad_{name}")
        self.lab(f"L_aw_{name}")
        A(f"global_load_dword v4, v39, s[40:41] offset:{mb_off} sc1")
        A("s_waitcnt vmcnt(0)")
        A("v_readfirstlane_b32 s57, v4")
        A("s_nop 3")
        A("s_cmp_lg_u32 s57, 0")
        A(f"s_cbranch_scc1 L_ad_{name}")
        self.spin_tail(f"L_aw_{name}", f"L_ad_{name}", sleep)
        self.lab(f"L_ad_{name}")
        A("s_mov_b64 exec, -1")

    def fin_wait(self):
        A = self.A
        A(f"v_mov_b32 v27, {FINF}")
        A("v_and_b32 v26, 3, v1")
        A(f"v_lshlrev_b32 v26, 2, v26")
        A(f"v_add_u32 v26, {FIN}, v26")
        self.spin_init()
        self.lab("L_finw")
        A("ds_read_b32 v28, v27")
        A("ds_read_b32 v24, v26")
        A("ds_read_b32 v25, v26 offset:16")
        A("s_waitcnt lgkmcnt(0)")
        A("v_readfirstlane_b32 s57, v28")
        A("s_nop 3")
        A("s_cmp_lg_u32 s57, 0")
        A("s_cbranch_scc1 L_find")
        self.spin_tail("L_finw", "L_find", 1)
        self.lab("L_find")
        A("v_sub_f32 v24, v22, v24")
        A("v_mul_f32 v24, s59, v24")
        A("v_exp_f32 v24, v24")
        self.nop(1)
        A("v_mul_f32 v24, v24, v25")
        A("v_and_b32 v26, 3, v1")
        A("v_lshlrev_b32 v26, 9, v26")
        A("v_lshrrev_b32 v27, 4, v1")
        A("v_lshl_add_u32 v26, v27, 4, v26")
        A("s_lshl_b32 s57, s3, 11")
        A(f"s_add_u32 s57, s57, {PART}")
        A("v_add_u32 v26, s57, v26")

    def helper(self):
        A = self.A
        opt = self.opt
        X = 8; T = 16; XP = 24
        tsn = 1 if opt.get("ts") else 0
        if opt.get("nohelp"):
            A("s_waitcnt lgkmcnt(0)")
            self.ts_entry()
            A(f"v_mov_b32 v29, {FINF}")
            A("v_mov_b32 v30, 1")
            A("ds_write_b32 v29, v30")
            A("s_waitcnt lgkmcnt(0)")
            A("s_barrier")
            A("s_barrier")
            A("s_endpgm")
        A("v_lshlrev_b32 v2, 4, v1")
        A("s_lshr_b32 s60, s43, 2")
        A("s_and_b32 s61, s43, 3")
        A("s_lshl_b32 s51, s60, 7")
        A("s_lshl_b32 s49, s42, 4")
        A("s_add_u32 s51, s51, s49")
        A("s_lshl_b32 s49, s61, 2")
        A("s_add_u32 s51, s51, s49")
        A("v_lshrrev_b32 v3, 3, v1")
        A("v_lshlrev_b32 v3, 13, v3")
        A("v_and_b32 v4, 7, v1")
        A("v_lshl_or_b32 v3, v4, 4, v3")
        A("s_lshl_b32 s48, s42, 10")
        A("s_lshl_b32 s49, s43, 5")
        A("s_add_u32 s48, s48, s49")
        A("s_and_b32 s44, s43, 7")
        A("s_lshr_b32 s45, s43, 3")
        A("s_lshl_b32 s56, s45, 20")
        A("s_lshl_b32 s49, s42, 10")
        A("s_add_u32 s56, s56, s49")
        A("s_lshl_b32 s49, s44, 7")
        A("s_add_u32 s56, s56, s49")
        A("s_waitcnt lgkmcnt(0)")
        A("global_load_dwordx4 v[24:27], v2, s[16:17]")
        A("s_mov_b32 s52, s22")
        A("s_and_b32 s53, s23, 0xffff")
        A(f"s_mov_b32 s54, {4 << 20}")
        A("s_mov_b32 s55, 0x20000")
        st = len(self.L)
        for k in range(16):
            A(f"s_mov_b32 m0, {WQ + 1024*k}")
            A("s_nop 0")
            A(f"buffer_load_dwordx4 v3, s[52:55], s56 offen nt lds")
            A("s_add_u32 s56, s56, 65536")
        self.skipmem("wq", st)
        if opt.get("hfirst"):
            A("s_barrier")
        self.ts_entry()
        self.ts(0)
        A("s_lshl_b32 s49, s48, 1")
        A(f"s_add_u32 s49, s49, {WS_O}")
        A("v_add_u32 v28, s49, v2")
        for i in range(4):
            A(f"v_mov_b32 v{32+i}, 0")
        A("s_mov_b64 exec, 15")
        A("global_store_dwordx4 v28, v[32:35], s[40:41] sc1")
        A("s_mov_b64 exec, -1")
        A("s_lshl_b32 s46, s47, 7")
        A(f"s_add_u32 s46, s46, {WS_MB}")
        A("v_add_u32 v28, s46, v2")
        A("s_lshl_b32 s49, s42, 9")
        A(f"s_add_u32 s49, s49, {WS_SYNC}")
        A("v_mov_b32 v29, s49")
        A("v_cmp_eq_u32 vcc, 4, v1")
        self.nop(2)
        A("v_cndmask_b32 v28, v28, v29, vcc")
        A("s_cmp_eq_u32 s43, 0")
        A("s_cselect_b32 exec_lo, 31, 15")
        A("s_mov_b32 exec_hi, 0")
        A("global_store_dwordx4 v28, v[32:35], s[40:41] sc1")
        A("s_mov_b64 exec, -1")
        A("s_or_b32 s49, s42, s61")
        A("s_cmp_lg_u32 s49, 0")
        A("s_cbranch_scc1 L_nozs")
        A("s_lshl_b32 s49, s60, 9")
        A(f"s_add_u32 s49, s49, {WS_SACC}")
        A("v_add_u32 v28, s49, v2")
        A("s_mov_b64 exec, 0x1ffff")
        A("global_store_dwordx4 v28, v[32:35], s[40:41] sc1")
        A("s_mov_b64 exec, -1")
        self.lab("L_nozs")
        A(f"v_lshlrev_b32 v28, 2, v1")
        A(f"v_add_u32 v28, {MLF}, v28")
        A("s_mov_b64 exec, 0xffff")
        A("ds_write_b32 v28, v32 offset:0")
        A("ds_write_b32 v28, v32 offset:32")
        A("s_mov_b64 exec, -1")
        A(f"s_waitcnt vmcnt({(18 + 2*tsn) if not opt.get('skip') else 0})")
        self.ts(13)
        for i in range(4):
            A(f"v_lshlrev_b32 v{X+2*i}, 16, v{XP+i}")
            A(f"v_and_b32 v{X+2*i+1}, 0xffff0000, v{XP+i}")
        self.layernorm(X, T, XP)
        A(f"v_add_u32 v28, {XN}, v2")
        A(f"ds_write_b128 v28, v[{XP}:{XP+3}]")
        A("v_lshrrev_b32 v29, 4, v1")
        A("v_lshlrev_b32 v30, 4, v29")
        A("s_lshl_b32 s49, s45, 8")
        A(f"s_add_u32 s49, s49, {XN}")
        A("v_add_u32 v30, s49, v30")
        A("v_bfe_u32 v31, v1, 2, 2")
        A("v_lshl_add_u32 v31, v29, 3, v31")
        A("v_lshlrev_b32 v31, 7, v31")
        A("v_and_b32 v28, 3, v1")
        A("v_lshl_add_u32 v31, v28, 3, v31")
        A(f"v_add_u32 v31, {WQ}, v31")
        A("v_and_b32 v28, 15, v1")
        A("v_lshlrev_b32 v28, 6, v28")
        A("v_lshl_add_u32 v29, v29, 4, v28")
        A("s_lshl_b32 s49, s42, 13")
        A("s_lshl_b32 s56, s45, 11")
        A("s_add_u32 s49, s49, s56")
        A("s_lshl_b32 s56, s44, 8")
        A("s_add_u32 s49, s49, s56")
        A(f"s_add_u32 s49, s49, {WS_QP}")
        A("v_add_u32 v29, s49, v29")
        A("v_and_b32 v28, 15, v1")
        A("s_waitcnt lgkmcnt(0)")
        XO = 64; WO = 128; QD = 32
        for ks in range(4):
            A(f"ds_read_b128 v[{XO+4*ks}:{XO+4*ks+3}], v30 offset:{64*ks}")
        A("s_waitcnt vmcnt(0)")
        self.ts(1)
        for ks in range(4):
            for ct in range(4):
                r = WO + 16 * ks + 4 * ct
                A(f"ds_read_b64_tr_b16 v[{r}:{r+1}], v31 offset:{4096*ks + 32*ct}")
                A(f"ds_read_b64_tr_b16 v[{r+2}:{r+3}], v31 offset:{4096*ks + 32*ct + 512}")
            A("s_waitcnt lgkmcnt(0)")
            for ct in range(4):
                r = WO + 16 * ks + 4 * ct
                d = QD + 4 * ct
                c = "0" if ks == 0 else f"v[{d}:{d+3}]"
                A(f"v_mfma_f32_16x16x32_bf16 v[{d}:{d+3}], v[{r}:{r+3}], v[{XO+4*ks}:{XO+4*ks+3}], {c}")
        A("v_cmp_eq_u32 s[52:53], 1, v28")
        A("v_cmp_eq_u32 s[54:55], 2, v28")
        A("v_cmp_eq_u32 vcc, 3, v28")
        self.nop(6)
        for r in range(4):
            A(f"v_cndmask_b32 v{QD+r}, v{QD+r}, v{QD+4+r}, s[52:53]")
        for r in range(4):
            A(f"v_cndmask_b32 v{QD+r}, v{QD+r}, v{QD+8+r}, s[54:55]")
        for r in range(4):
            A(f"v_cndmask_b32 v{QD+r}, v{QD+r}, v{QD+12+r}, vcc")
        A("s_mov_b32 exec_lo, 0x000f000f")
        A("s_mov_b32 exec_hi, 0x000f000f")
        A(f"global_store_dwordx4 v29, v[{QD}:{QD+3}], s[40:41] sc1")
        A("s_mov_b64 exec, -1")
        A("s_waitcnt vmcnt(0)")
        A("s_lshl_b32 s49, s42, 5")
        A("v_mov_b32 v3, s49")
        A("v_mov_b32 v30, 1")
        A("s_lshl_b32 s49, s42, 12")
        A(f"s_add_u32 s49, s49, {WS_MB}")
        A("v_lshlrev_b32 v38, 7, v1")
        A("v_add_u32 v38, s49, v38")
        A("v_mov_b32 v39, s46")
        self.ts(2)
        self.arrive_wait("q", 0, 0, opt.get("qsleep", 2))
        if opt.get("ts"):
            A("s_mov_b64 exec, 1")
            A("v_mov_b32 v250, s50")
            A("v_mov_b32 v251, 0")
            A("v_mov_b32 v252, s62")
            A("global_store_dwordx2 v252, v[250:251], s[40:41] offset:128")
            A("s_mov_b64 exec, -1")
        self.ts(3)
        A("s_lshl_b32 s49, s42, 13")
        A(f"s_add_u32 s49, s49, {WS_QP}")
        A("v_lshlrev_b32 v28, 5, v1")
        A("v_add_u32 v28, s49, v28")
        A("v_add_u32 v29, 4096, v28")
        st = len(self.L)
        for rb in range(4):
            for hh in range(2):
                r = 64 + 8 * rb + 4 * hh
                A(f"global_load_dwordx4 v[{r}:{r+3}], v{28 + rb // 2}, s[40:41] offset:{2048*(rb%2) + 16*hh} sc1 {opt.get('qldf', '')}")
        self.skipmem("qld", st)
        A(f"v_add_u32 v28, {QS}, v2")
        A("s_waitcnt vmcnt(0)")
        for k in range(8):
            A(f"v_add_f32 v{64+k}, v{64+k}, v{72+k}")
            A(f"v_add_f32 v{80+k}, v{80+k}, v{88+k}")
        for k in range(8):
            A(f"v_add_f32 v{64+k}, v{64+k}, v{80+k}")
        for k in range(4):
            A(f"v_cvt_pk_bf16_f32 v{32+k}, v{64+2*k}, v{65+2*k}")
        A("ds_write_b128 v28, v[32:35]")
        A("s_waitcnt lgkmcnt(0)")
        A("s_barrier")
        self.ts(4)
        if opt.get("span"):
            A("s_memrealtime s[68:69]")
        A(f"s_mov_b32 s59, {f32(LOG2E)}")
        A("s_mov_b32 s52, s24")
        A("s_and_b32 s53, s25, 0xffff")
        A(f"s_mov_b32 s54, {4 << 20}")
        A("s_mov_b32 s55, 0x20000")
        A("v_lshrrev_b32 v28, 3, v1")
        A("v_lshlrev_b32 v28, 10, v28")
        A("v_and_b32 v29, 7, v1")
        A("v_lshl_or_b32 v28, v29, 4, v28")
        A("s_lshl_b32 s56, s42, 19")
        A("s_lshl_b32 s49, s61, 17")
        A("s_add_u32 s56, s56, s49")
        A("s_lshl_b32 s49, s60, 7")
        A("s_add_u32 s56, s56, s49")
        st = len(self.L)
        for k in range(16):
            A(f"s_mov_b32 m0, {WQ + 1024*k}")
            A("s_nop 0")
            A(f"buffer_load_dwordx4 v28, s[52:55], s56 offen nt lds")
            A("s_add_u32 s56, s56, 8192")
        self.skipmem("wo", st)
        st = len(self.L)
        for a, (lo, base) in enumerate(((28, WST), (30, WST + 4096), (32, WST + 8192))):
            A(f"s_mov_b32 s52, s{lo}")
            A(f"s_and_b32 s53, s{lo+1}, 0xffff")
            A("s_mov_b32 s54, 3584")
            A("s_mov_b32 s55, 0x20000")
            A(f"s_mov_b32 m0, {base}")
            A("s_nop 0")
            for q in range(4):
                A(f"buffer_load_dwordx4 v2, s[52:55], 0 offen offset:{1024*q} lds")
        A("s_lshl_b32 s49, s60, 7")
        A("v_lshlrev_b32 v43, 1, v1")
        A("v_add_u32 v43, s49, v43")
        A("global_load_ushort v40, v43, s[16:17]")
        A("v_mov_b32 v29, 0")
        A("global_load_ushort v41, v29, s[34:35]")
        self.skipmem("w1", st)
        self.layernorm(X, T, XP)
        A(f"v_add_u32 v28, {XN}, v2")
        A(f"ds_write_b128 v28, v[{XP}:{XP+3}]")
        A(f"v_mov_b32 v28, s51")
        A(f"v_add_u32 v28, {XN}, v28")
        A("s_waitcnt lgkmcnt(0)")
        A("ds_read_b32 v42, v28")
        A("v_lshrrev_b32 v29, 4, v1")
        A("v_bfe_u32 v31, v1, 2, 2")
        A("v_lshl_add_u32 v31, v29, 3, v31")
        A("v_lshlrev_b32 v31, 7, v31")
        A("v_and_b32 v28, 3, v1")
        A("v_lshl_add_u32 v31, v28, 3, v31")
        A(f"v_add_u32 v31, {WQ}, v31")
        A("s_waitcnt vmcnt(0) lgkmcnt(0)")
        WP = 128
        for ks in range(4):
            for ct in range(4):
                r = WP + 16 * ks + 4 * ct
                A(f"ds_read_b64_tr_b16 v[{r}:{r+1}], v31 offset:{4096*ks + 32*ct}")
                A(f"ds_read_b64_tr_b16 v[{r+2}:{r+3}], v31 offset:{4096*ks + 32*ct + 512}")
            A("s_waitcnt lgkmcnt(0)")
        A("v_lshlrev_b32 v44, 16, v42")
        A("v_and_b32 v45, 0xffff0000, v42")
        A("v_mov_b32 v46, 0")
        A("v_mov_b32 v47, 0")
        A(f"v_lshlrev_b32 v28, 2, v1")
        A(f"v_add_u32 v28, {WST}, v28")
        A("s_mov_b32 s57, 14")
        c1 = -2.0 * 0.7978845608028654 * LOG2E
        A(f"s_mov_b32 s58, {f32(c1)}")
        A(f"s_mov_b32 s56, {f32(c1 * 0.044715)}")
        self.lab("L_gate")
        A("ds_read_b32 v48, v28")
        A("ds_read_b32 v49, v28 offset:4096")
        A("ds_read_b32 v50, v28 offset:8192")
        A("v_add_u32 v28, 256, v28")
        A("s_waitcnt lgkmcnt(0)")
        A("v_lshlrev_b32 v51, 16, v48")
        A("v_and_b32 v52, 0xffff0000, v48")
        A("v_lshlrev_b32 v53, 16, v49")
        A("v_and_b32 v54, 0xffff0000, v49")
        A("v_lshlrev_b32 v55, 16, v50")
        A("v_and_b32 v56, 0xffff0000, v50")
        U = [8, 9, 10, 11]; Z = [12, 13, 14, 15]
        combos = [(44, 51, 53, 55, 46), (44, 52, 54, 56, 46), (45, 51, 53, 55, 47), (45, 52, 54, 56, 47)]
        for k, (h, w1, b1, w2, acc) in enumerate(combos):
            A(f"v_mul_f32 v{U[k]}, v{h}, v{w1}")
        for k in range(4):
            self.bf16r(f"v{U[k]}")
        for k, (h, w1, b1, w2, acc) in enumerate(combos):
            A(f"v_add_f32 v{U[k]}, v{U[k]}, v{b1}")
        for k in range(4):
            self.bf16r(f"v{U[k]}")
        for k in range(4):
            A(f"v_mul_f32 v{Z[k]}, v{U[k]}, v{U[k]}")
        for k in range(4):
            A(f"v_mul_f32 v{Z[k]}, s56, v{Z[k]}")
        for k in range(4):
            A(f"v_add_f32 v{Z[k]}, s58, v{Z[k]}")
        for k in range(4):
            A(f"v_mul_f32 v{Z[k]}, v{Z[k]}, v{U[k]}")
        for k in range(4):
            A(f"v_exp_f32 v{Z[k]}, v{Z[k]}")
        self.nop(1)
        for k in range(4):
            A(f"v_add_f32 v{Z[k]}, 1.0, v{Z[k]}")
        for k in range(4):
            A(f"v_rcp_f32 v{Z[k]}, v{Z[k]}")
        self.nop(1)
        for k in range(4):
            A(f"v_mul_f32 v{U[k]}, v{U[k]}, v{Z[k]}")
        for k in range(4):
            self.bf16r(f"v{U[k]}")
        for k, (h, w1, b1, w2, acc) in enumerate(combos):
            A(f"v_fmac_f32 v{acc}, v{U[k]}, v{w2}")
        A("s_sub_u32 s57, s57, 1")
        A("s_cmp_lg_u32 s57, 0")
        A("s_cbranch_scc1 L_gate")
        A("s_waitcnt vmcnt(0)")
        self.allreduce64("add", "v46", "v16")
        self.allreduce64("add", "v47", "v16")
        A("v_lshlrev_b32 v41, 16, v41")
        for a in (46, 47):
            self.bf16r(f"v{a}")
            A(f"v_add_f32 v{a}, v{a}, v41")
            self.bf16r(f"v{a}")
            A(f"v_mul_f32 v16, s59, v{a}")
            A("v_exp_f32 v16, -v16")
            self.nop(1)
            A("v_add_f32 v16, 1.0, v16")
            A("v_rcp_f32 v17, v16")
            self.nop(1)
            A(f"v_mul_f32 v18, v{a}, v17")
            A(f"v_fma_f32 v19, -v18, v16, v{a}")
            A("v_fma_f32 v19, v19, v17, v18")
            A("v_cmp_gt_f32 vcc, 0x7f000000, v16")
            self.nop(2)
            A(f"v_cndmask_b32 v{a}, v18, v19, vcc")
            self.bf16r(f"v{a}")
        A("s_lshl_b32 s49, s51, 1")
        A(f"s_add_u32 s49, s49, {WS_G}")
        A("v_mov_b32 v28, s49")
        A("s_mov_b64 exec, 1")
        A("global_store_dwordx2 v28, v[46:47], s[40:41] sc1")
        A("s_mov_b64 exec, -1")
        self.ts(5)
        A(f"v_mov_b32 v28, {MLF}")
        A("v_and_b32 v29, 3, v1")
        A("v_lshlrev_b32 v29, 2, v29")
        A(f"v_add_u32 v29, {ML}, v29")
        self.spin_init()
        self.lab("L_mlw")
        A("ds_read_b128 v[4:7], v28")
        for w in range(4):
            A(f"ds_read_b32 v{8+w}, v29 offset:{32*w}")
            A(f"ds_read_b32 v{12+w}, v29 offset:{32*w+16}")
        A("s_waitcnt lgkmcnt(0)")
        A("v_and_b32 v4, v4, v5")
        A("v_and_b32 v6, v6, v7")
        A("v_and_b32 v4, v4, v6")
        A("s_nop 0")
        A("v_readfirstlane_b32 s57, v4")
        A("s_nop 3")
        A("s_cmp_lg_u32 s57, 0")
        A("s_cbranch_scc1 L_mld")
        self.spin_tail("L_mlw", "L_mld", 8)
        self.lab("L_mld")
        self.ts(6)
        A("v_max3_f32 v16, v8, v9, v10")
        A("v_max_f32 v16, v16, v11")
        for w in range(4):
            A(f"v_sub_f32 v{8+w}, v{8+w}, v16")
        for w in range(4):
            A(f"v_mul_f32 v{8+w}, s59, v{8+w}")
        for w in range(4):
            A(f"v_exp_f32 v{8+w}, v{8+w}")
        self.nop(1)
        A("v_mul_f32 v17, v8, v12")
        for w in range(1, 4):
            A(f"v_fmac_f32 v17, v{8+w}, v{12+w}")
        A("s_lshl_b32 s49, s47, 5")
        A(f"s_add_u32 s49, s49, {WS_ML}")
        A("v_lshlrev_b32 v28, 3, v1")
        A("v_add_u32 v28, s49, v28")
        A("v_mov_b32 v30, 1")
        A("s_mov_b64 exec, 15")
        A("global_store_dwordx2 v28, v[16:17], s[40:41] sc1")
        A("s_mov_b64 exec, -1")
        A("v_lshlrev_b32 v28, 5, v1")
        self.spin_init()
        A("s_mov_b64 exec, 0xff")
        self.lab("L_allw")
        A("global_load_dword v4, v28, s[38:39] sc1")
        A("s_waitcnt vmcnt(0)")
        A(f"v_cmp_le_u32 vcc, {0 if 'q' in str(opt.get('skip', '')).split('+') else 32}, v4")
        A("s_nop 1")
        A("s_cmp_eq_u64 vcc, exec")
        A("s_cbranch_scc1 L_alld")
        self.spin_tail("L_allw", "L_alld", 32)
        self.lab("L_alld")
        A("s_mov_b64 exec, -1")
        self.arrive_wait("ml", None, 4, opt.get("mlsleep", 16))
        self.ts(7)
        A("s_lshl_b32 s49, s42, 10")
        A(f"s_add_u32 s49, s49, {WS_ML}")
        A("v_lshlrev_b32 v28, 3, v1")
        A("v_add_u32 v28, s49, v28")
        A("global_load_dwordx2 v[8:9], v28, s[40:41] sc1")
        A("global_load_dwordx2 v[10:11], v28, s[40:41] offset:512 sc1")
        A("s_waitcnt vmcnt(0)")
        A("v_max_f32 v16, v8, v10")
        for r in (4, 8):
            self.nop(2)
            A(f"v_max_f32_dpp v16, v16, v16 row_ror:{r} row_mask:0xf bank_mask:0xf")
        self.rows_reduce("max", "v16", "v17")
        A("v_sub_f32 v8, v8, v16")
        A("v_sub_f32 v10, v10, v16")
        A("v_mul_f32 v8, s59, v8")
        A("v_mul_f32 v10, s59, v10")
        A("v_exp_f32 v8, v8")
        A("v_exp_f32 v10, v10")
        self.nop(1)
        A("v_mul_f32 v17, v8, v9")
        A("v_fmac_f32 v17, v10, v11")
        for r in (4, 8):
            self.nop(2)
            A(f"v_add_f32_dpp v17, v17, v17 row_ror:{r} row_mask:0xf bank_mask:0xf")
        self.rows_reduce("add", "v17", "v18")
        A("v_rcp_f32 v18, v17")
        self.nop(1)
        A("v_fma_f32 v19, -v17, v18, 1.0")
        A("v_fmac_f32 v18, v19, v18")
        A("v_lshlrev_b32 v28, 2, v1")
        A(f"v_add_u32 v28, {FIN}, v28")
        A(f"v_mov_b32 v29, {FINF}")
        A("s_mov_b64 exec, 15")
        A("ds_write_b32 v28, v16")
        A("ds_write_b32 v28, v18 offset:16")
        A("s_waitcnt lgkmcnt(0)")
        A("s_mov_b64 exec, 1")
        A("ds_write_b32 v29, v30")
        A("s_mov_b64 exec, -1")
        A("v_lshlrev_b32 v28, 2, v1")
        A(f"v_add_u32 v29, {PART}, v28")
        A("s_lshl_b32 s49, s42, 11")
        A(f"s_add_u32 s49, s49, {WS_O}")
        A("v_add_u32 v32, s49, v28")
        A("v_lshrrev_b32 v33, 4, v1")
        A("v_lshlrev_b32 v31, 5, v33")
        A("s_lshl_b32 s56, s61, 9")
        A("s_add_u32 s49, s49, s56")
        A("v_add_u32 v31, s49, v31")
        A("s_lshl_b32 s49, s60, 9")
        A(f"s_add_u32 s49, s49, {WS_SACC}")
        A("v_add_u32 v34, s49, v28")
        A("v_mov_b32 v35, s49")
        A("s_lshl_b32 s49, s60, 8")
        A(f"s_add_u32 s49, s49, {WS_G}")
        A("v_add_u32 v36, s49, v28")
        A("v_cmp_eq_u32 s[52:53], 1, v33")
        A("v_cmp_eq_u32 s[54:55], 2, v33")
        A("v_cmp_eq_u32 s[44:45], 3, v33")
        self.ts(8)
        A("s_waitcnt lgkmcnt(0)")
        A("s_barrier")
        self.ts(9)
        if opt.get("span"):
            A("s_memrealtime s[70:71]")
        PR = 192
        for k in range(8):
            for w in range(4):
                A(f"ds_read_b32 v{PR+4*k+w}, v29 offset:{2048*w + 256*k}")
        for k in range(8):
            A(f"s_waitcnt lgkmcnt({min(15, 4*(7-k))})")
            A(f"v_add_f32 v{PR+4*k}, v{PR+4*k}, v{PR+4*k+1}")
            A(f"v_add_f32 v{PR+4*k+2}, v{PR+4*k+2}, v{PR+4*k+3}")
            A(f"v_add_f32 v{PR+4*k}, v{PR+4*k}, v{PR+4*k+2}")
            A(f"global_atomic_add_f32 v32, v{PR+4*k}, s[40:41] offset:{256*k} sc1")
        self.ts(10)
        self.arrive_wait("fin", "fin", 8, opt.get("fsleep", 1))
        self.ts(11)
        OR = 64; OB = 96; SD = 8
        for ks in range(4):
            for hh in range(2):
                r = OR + 8 * ks + 4 * hh
                A(f"global_load_dwordx4 v[{r}:{r+3}], v31, s[40:41] offset:{128*ks + 16*hh} sc1")
        for ks in range(4):
            A(f"s_waitcnt vmcnt({6 - 2*ks})")
            for k in range(4):
                A(f"v_cvt_pk_bf16_f32 v{OB+4*ks+k}, v{OR+8*ks+2*k}, v{OR+8*ks+2*k+1}")
            self.nop(2)
            for ct in range(4):
                r = WP + 16 * ks + 4 * ct
                d = SD + 4 * ct
                c = "0" if ks == 0 else f"v[{d}:{d+3}]"
                A(f"v_mfma_f32_16x16x32_bf16 v[{d}:{d+3}], v[{OB+4*ks}:{OB+4*ks+3}], v[{r}:{r+3}], {c}")
        self.nop(6)
        A(f"v_cndmask_b32 v{SD}, v{SD}, v{SD+4}, s[52:53]")
        A(f"v_cndmask_b32 v{SD}, v{SD}, v{SD+8}, s[54:55]")
        A(f"v_cndmask_b32 v{SD}, v{SD}, v{SD+12}, s[44:45]")
        A(f"global_atomic_add_f32 v34, v{SD}, s[40:41] sc1")
        A("s_waitcnt vmcnt(0)")
        self.ts(14)
        A("s_mov_b64 exec, 1")
        A("global_atomic_add v4, v35, v30, s[40:41] offset:256 sc0 sc1")
        A("s_waitcnt vmcnt(0)")
        A("v_readfirstlane_b32 s57, v4")
        A("s_mov_b64 exec, -1")
        A("s_nop 2")
        A("s_cmp_lg_u32 s57, 31")
        A("s_cbranch_scc1 L_end")
        A("global_load_dword v8, v34, s[40:41] sc1")
        A("global_load_dword v9, v36, s[40:41] sc1")
        A("v_lshlrev_b32 v10, 16, v40")
        A("s_waitcnt vmcnt(0)")
        self.bf16r("v8")
        A("v_mul_f32 v8, v8, v9")
        self.bf16r("v8")
        A("v_add_f32 v8, v8, v10")
        A("v_cvt_pk_bf16_f32 v8, v8, v8")
        A("global_store_short v43, v8, s[36:37]")
        self.ts(12)


if __name__ == "__main__":
    out = sys.argv[1]
    opt = {}
    for a in sys.argv[2:]:
        k, _, v = a.partition("=")
        opt[k] = (int(v) if v.lstrip("-").isdigit() else v) if v else True
    open(out, "w").write(G3(**opt).gen())
```

```python
import sys, struct
from gen import G, NAME, HEADER, f32, LOG2E, SCALE
from gen2 import G2
import gen
_ts0 = gen.G.ts
def _ts(self, slot, sreg="s[74:75]", vt=("v250", "v251", "v252")):
    return _ts0(self, slot, sreg, vt)
gen.G.ts = _ts

RING = 0
WQ = 131072
PART = 147456
WST = 147456
XN = 159744
QS = 160768
ML = 161792
MLF = ML + 128
FIN = ML + 160
FINF = ML + 192
LDS_BYTES = 162304

WS_Q = 0
WS_ML = 8192
WS_O = 16384
WS_SYNC = 32768
WS_GFIN = 32768 + 4096
WS_TS = 65536
WS_WT = 1 << 20
WS_QP = 786432


WS_SACC = 40960
WS_G = 49152
WS_O2 = 917504
WS_MB = 851968


class G3(G2):
    def gen(self):
        A = self.A
        opt = self.opt
        NT = opt.get("nt", "nt")
        self.L.append(HEADER.rstrip("\n"))
        self.L.append(f"; @launch grid=(256,1,1) block=(320,1,1) lds={LDS_BYTES}")
        self.L.append('.amdgcn_target "amdgcn-amd-amdhsa--gfx950"')
        self.L.append(".text")
        self.L.append(f".globl {NAME}_kernel")
        self.L.append(".p2align 8")
        self.L.append(f".type {NAME}_kernel,@function")
        self.lab(f"{NAME}_kernel")
        A("s_cmp_ge_u32 s2, 256")
        A("s_cbranch_scc1 L_end")
        if opt.get("ts") or opt.get("span"):
            A("s_memrealtime s[66:67]")
        A("s_load_dwordx16 s[16:31], s[0:1], 0")
        A("s_load_dwordx8 s[32:39], s[0:1], 64")
        A("s_load_dwordx2 s[40:41], s[0:1], 96")
        A("v_lshrrev_b32 v1, 6, v0")
        if opt.get("imb", 2) or opt.get("pair"):
            A("s_and_b32 s42, s2, 6")
            A("v_readfirstlane_b32 s3, v1")
            A("s_bfe_u32 s43, s2, 0x10003")
            A("s_or_b32 s42, s42, s43")
            A("s_lshr_b32 s43, s2, 4")
            A("s_lshl_b32 s43, s43, 1")
            A("s_and_b32 s44, s2, 1")
            A("s_or_b32 s43, s43, s44")
        else:
            A("s_and_b32 s42, s2, 7")
            A("v_readfirstlane_b32 s3, v1")
            A("s_lshr_b32 s43, s2, 3")
        if opt.get("hlast"):
            A("s_nop 2")
            A("s_add_u32 s3, s3, 1")
            A("s_cmp_eq_u32 s3, 5")
            A("s_cselect_b32 s3, 0, s3")
        A("v_and_b32 v1, 63, v0")
        A("s_lshl_b32 s47, s42, 5")
        A("s_add_u32 s47, s47, s43")
        if opt.get("ts"):
            A("s_lshl_b32 s62, s2, 3")
            A("s_add_u32 s62, s62, s3")
            A("s_cmp_eq_u32 s3, 0")
            A("s_cselect_b32 s63, 0, 3")
            A("s_add_u32 s62, s62, s63")
            A("s_lshl_b32 s62, s62, 8")
            A(f"s_add_u32 s62, s62, {WS_TS}")
        A("s_cmp_eq_u32 s3, 0")
        A("s_cbranch_scc1 L_helper")
        self.stream(NT)
        self.lab("L_helper")
        self.helper()
        self.lab("L_end")
        A("s_endpgm")
        self.L.append('.section .rodata,"a"')
        self.L.append(".p2align 6")
        self.L.append(f".amdhsa_kernel {NAME}_kernel")
        for s in ("next_free_vgpr 256", "next_free_sgpr 80", "accum_offset 256", "group_segment_fixed_size 0",
                  "kernarg_size 104", "user_sgpr_count 2", "user_sgpr_kernarg_segment_ptr 1",
                  "system_sgpr_workgroup_id_x 1", "float_denorm_mode_32 3"):
            self.L.append("  .amdhsa_" + s)
        self.L.append(".end_amdhsa_kernel")
        return "\n".join(self.L) + "\n"

    def ts(self, slot, *a, **k):
        if self.opt.get("ts") == "end" and slot != 12:
            return
        return G2.ts(self, slot, *a, **k)

    def sts(self, k):
        if not self.opt.get("ts"):
            return
        self.A(f"s_memrealtime s[{68+2*k}:{69+2*k}]")

    def sts_flush(self, n):
        if not self.opt.get("ts"):
            return
        A = self.A
        A("s_waitcnt lgkmcnt(0)")
        A("v_mov_b32 v26, s62")
        A("s_mov_b64 exec, 1")
        for k in range(n):
            A(f"v_mov_b32 v24, s{68+2*k}")
            A(f"v_mov_b32 v25, s{69+2*k}")
            A(f"global_store_dwordx2 v26, v[24:25], s[40:41] offset:{8*k}")
            A("s_nop 1")
        A("v_mov_b32 v24, s66")
        A("v_mov_b32 v25, s67")
        A(f"global_store_dwordx2 v26, v[24:25], s[40:41] offset:{8*15}")
        A("s_mov_b64 exec, -1")

    def stream(self, NT):
        A = self.A
        opt = self.opt
        D = opt.get("depth", 8)
        E = opt.get("imb", 2)
        NC = 32 - E
        VOFF = 2; KRD = 6; VRD = 10; MSK = 18
        QV = 24; BQT = 40; DA = 56
        NB = opt.get("nb", 10)
        SP = 64; QT = 84; VST = 96; BT = 128; OA = 144; SC = 176
        BUF = [96 + 16 * p for p in range(10)]
        D0 = opt.get("depth0", D)
        n_d0 = opt.get("nd0", 0)
        st = {"issued": 0, "NP": 32 - E}
        A("s_sub_u32 s3, s3, 1")
        A("v_lshrrev_b32 v22, 4, v1")
        A("v_and_b32 v23, 15, v1")
        for q in range(4):
            c = 8 * (q & 1) + (q >> 1)
            A(f"v_lshl_or_b32 v{VOFF+q}, v22, 1, {c}")
            A(f"v_xor_b32 v{VOFF+q}, v{VOFF+q}, v23")
            A(f"v_lshlrev_b32 v{VOFF+q}, 4, v{VOFF+q}")
            A(f"v_lshl_or_b32 v{VOFF+q}, v22, 8, v{VOFF+q}")
        A("s_lshl_b32 s48, s3, 15")
        A("s_lshl_b32 s49, s43, 2")
        A("s_add_u32 s49, s49, s3")
        A("s_lshl_b32 s49, s49, 12")
        A("s_lshr_b32 s60, s43, 1")
        A("s_lshl_b32 s60, s60, 2")
        A("s_add_u32 s60, s60, s3")
        A("s_lshl_b32 s60, s60, 12")
        A("s_lshl_b32 s51, s42, 24")
        A("s_waitcnt lgkmcnt(0)")
        A("s_add_u32 s44, s18, s51")
        A("s_addc_u32 s45, s19, 0")
        A("s_and_b32 s45, s45, 0xffff")
        A(f"s_mov_b32 s46, {1 << 24}")
        A("s_mov_b32 s47, 0x20000")
        A("s_add_u32 s52, s20, s51")
        A("s_addc_u32 s53, s21, 0")
        A("s_and_b32 s53, s53, 0xffff")
        A(f"s_mov_b32 s54, {1 << 24}")
        A("s_mov_b32 s55, 0x20000")

        def refill(wait=True):
            i = st["issued"]
            NP = st["NP"]
            if i >= 2 * NP:
                return
            p = i % NP
            srd = "s[44:47]" if i < NP else "s[52:55]"
            if p < NC:
                A(f"s_add_u32 s56, s49, {p * 524288}")
            else:
                A(f"s_add_u32 s56, s60, {NC * 524288 + (p - NC) * 262144}")
            A(f"s_add_u32 m0, s48, {(i % 8) * 4096}")
            if wait:
                dd = D0 if i < n_d0 else D
                A(f"s_waitcnt vmcnt({dd-4})")
            else:
                A("s_nop 0")
            for q in range(4):
                A(f"buffer_load_dwordx4 v{VOFF+q}, {srd}, s56 offen offset:{q*1024} {NT} lds")
            st["issued"] += 1

        n0 = (D0 if n_d0 else D) // 4
        for pp in range(n0):
            refill(wait=False)
        self.sts(0)
        A("v_and_b32 v24, 7, v23")
        A("v_lshlrev_b32 v24, 1, v24")
        A("v_lshrrev_b32 v25, 3, v23")
        A("v_or_b32 v24, v24, v25")
        A("v_lshlrev_b32 v25, 8, v23")
        A("v_add_u32 v25, s48, v25")
        for u in range(4):
            A(f"v_lshl_or_b32 v26, v22, 2, {u}")
            A("v_xor_b32 v26, v26, v24")
            A(f"v_lshl_add_u32 v{KRD+u}, v26, 4, v25")
        A("v_lshrrev_b32 v26, 2, v1")
        A("v_and_b32 v24, 7, v26")
        A("v_lshlrev_b32 v24, 1, v24")
        A("v_lshrrev_b32 v25, 3, v26")
        A("v_or_b32 v24, v24, v25")
        A("v_bfe_u32 v27, v1, 1, 1")
        A("v_xor_b32 v24, v24, v27")
        A("v_and_b32 v27, 1, v1")
        A("v_lshlrev_b32 v27, 3, v27")
        A("v_lshl_add_u32 v25, v26, 8, v27")
        A("v_add_u32 v25, s48, v25")
        for e in range(8):
            A(f"v_xor_b32 v26, {2*e}, v24")
            A(f"v_lshl_add_u32 v{VRD+e}, v26, 4, v25")
        A("v_lshrrev_b32 v26, 2, v23")
        for t in range(4):
            A(f"v_cmp_eq_u32 vcc, {t}, v26")
            self.nop(2)
            A(f"v_cndmask_b32 v{MSK+t}, 0, -1, vcc")
        A("v_and_b32 v26, 3, v1")
        A("v_lshlrev_b32 v26, 8, v26")
        A("v_lshl_add_u32 v26, v22, 6, v26")
        A(f"v_add_u32 v23, {QS}, v26")
        A(f"s_mov_b32 s58, {f32(SCALE)}")
        A(f"s_mov_b32 s59, {f32(LOG2E)}")
        A("s_mov_b32 s61, 0xff80ff80")
        for pp in range(n0, 8):
            refill()

        def kcopy(p):
            for u in range(4):
                r = BUF[p % NB] + 4 * u
                A(f"ds_read_b128 v[{r}:{r+3}], v{KRD+u} offset:{(p % 8) * 4096}")
            A("s_waitcnt lgkmcnt(0)")
            refill()

        def vcopy(p, tag):
            NP = st["NP"]
            i = NP + p
            rem = 2 * NP - 1 - i
            if rem == 0:
                self.fin_wait(tag)
            if st["issued"] >= 2 * NP and rem * 4 < D:
                A(f"s_waitcnt vmcnt({rem * 4})")
            for e in range(8):
                r = VST + 4 * e + 2 * (p & 1)
                A(f"ds_read_b64_tr_b16 v[{r}:{r+1}], v{VRD+e} offset:{(i % 8) * 4096}")
            A("s_waitcnt lgkmcnt(0)")
            refill()

        for p in range(NB):
            kcopy(p)
        assert st["issued"] <= NC
        self.sts(5)
        A("s_barrier")
        self.sts(1)
        for u in range(4):
            A(f"ds_read_b128 v[{QV+4*u}:{QV+4*u+3}], v23 offset:{16*u}")
        if E:
            A("s_bitcmp1_b32 s43, 0")
            A("s_cbranch_scc1 L_slow")

        def bqt(t):
            for k in range(16):
                A(f"v_and_b32 v{BQT+k}, v{QV+k}, v{MSK+t}")

        def kmfma(pp, src):
            t, hf = pp >> 1, pp & 1
            d = DA + 4 * hf
            for u in range(4):
                c = "0" if (t == 0 and u == 0) else f"v[{d}:{d+3}]"
                r = src + 4 * u
                A(f"v_mfma_f32_16x16x32_bf16 v[{d}:{d+3}], v[{r}:{r+3}], v[{BQT+4*u}:{BQT+4*u+3}], {c}")

        def kpost(blk, nvalid):
            self.nop(6)
            for k in range(4):
                A(f"v_cvt_pk_bf16_f32 v{QT+k}, v{DA+2*k}, v{DA+2*k+1}")
            for k in range(4):
                A(f"v_lshlrev_b32 v{QT+4+2*k}, 16, v{QT+k}")
                A(f"v_and_b32 v{QT+5+2*k}, 0xffff0000, v{QT+k}")
            for k in range(8):
                A(f"v_mul_f32 v{QT+4+k}, s58, v{QT+4+k}")
            for k in range(4):
                A(f"v_cvt_pk_bf16_f32 v{SP+4*blk+k}, v{QT+4+2*k}, v{QT+5+2*k}")
            if nvalid < 4:
                A(f"v_mov_b32 v{QT}, v{MSK}")
                for t in range(1, nvalid):
                    A(f"v_or_b32 v{QT}, v{QT}, v{MSK+t}")
                for k in range(4):
                    A(f"v_bfi_b32 v{SP+4*blk+k}, v{QT}, v{SP+4*blk+k}, s61")

        issued0 = st["issued"]

        def variant(NP, tag):
            st["NP"] = NP
            st["issued"] = issued0
            A("s_waitcnt lgkmcnt(0)")
            c, k = 0, NB
            while c < NP:
                bqt((c % 8) >> 1)
                while k < c + 2:
                    kcopy(k); k += 1
                self.nop(2)
                kmfma(c % 8, BUF[c % NB])
                kmfma((c + 1) % 8, BUF[(c + 1) % NB])
                c += 2
                if k < NP:
                    kcopy(k); k += 1
                if c % 8 == 0 or c == NP:
                    kpost((c - 1) // 8, ((c - 1) % 8) // 2 + 1)
            self.sts(2)
            nblk = (NP + 7) // 8
            n = 8 * nblk
            for k in range(4 * nblk):
                A(f"v_lshlrev_b32 v{SC+2*k}, 16, v{SP+k}")
                A(f"v_and_b32 v{SC+2*k+1}, 0xffff0000, v{SP+k}")
            vcopy(0, tag)
            A(f"v_max_f32 v24, v{SC}, v{SC+1}")
            A(f"v_max_f32 v25, v{SC+2}, v{SC+3}")
            for k in range(4, n, 4):
                A(f"v_max3_f32 v24, v24, v{SC+k}, v{SC+k+1}")
                A(f"v_max3_f32 v25, v25, v{SC+k+2}, v{SC+k+3}")
            A("v_max_f32 v24, v24, v25")
            for r in (4, 8):
                self.nop(2)
                A(f"v_max_f32_dpp v24, v24, v24 row_ror:{r} row_mask:0xf bank_mask:0xf")
            self.rows_reduce("max", "v24", "v25")
            for k in range(n):
                A(f"v_sub_f32 v{SC+k}, v{SC+k}, v24")
            for k in range(n):
                A(f"v_mul_f32 v{SC+k}, s59, v{SC+k}")
            for k in range(n):
                A(f"v_exp_f32 v{SC+k}, v{SC+k}")
            vcopy(1, tag)
            for k in range(4 * nblk):
                A(f"v_cvt_pk_bf16_f32 v{SP+k}, v{SC+2*k}, v{SC+2*k+1}")
            m = n
            while m > 1:
                h = (m + 1) // 2
                for k in range(m - h):
                    A(f"v_add_f32 v{SC+k}, v{SC+k}, v{SC+k+h}")
                m = h
            A(f"v_mov_b32 v25, v{SC}")
            for r in (4, 8):
                self.nop(2)
                A(f"v_add_f32_dpp v25, v25, v25 row_ror:{r} row_mask:0xf bank_mask:0xf")
            self.rows_reduce("add", "v25", "v26")
            A("v_mov_b32 v22, v24")
            A("s_lshl_b32 s57, s3, 5")
            A(f"s_add_u32 s57, s57, {ML}")
            A("v_lshl_add_u32 v26, v1, 2, s57")
            A("s_lshl_b32 s57, s3, 2")
            A(f"s_add_u32 s57, s57, {MLF}")
            A("v_mov_b32 v27, s57")
            A("v_mov_b32 v28, 1")
            A("s_mov_b64 exec, 15")
            A("ds_write_b32 v26, v24")
            A("ds_write_b32 v26, v25 offset:16")
            A("s_waitcnt lgkmcnt(0)")
            A("s_mov_b64 exec, 1")
            A("ds_write_b32 v27, v28")
            A("s_mov_b64 exec, -1")
            NU = NP // 2

            def bt(un):
                for k in range(4):
                    A(f"v_and_b32 v{BT+4*(un%2)+k}, v{SP+4*(un//4)+k}, v{MSK+un%4}")
            bt(0)
            self.nop(2)
            for un in range(NU):
                bb = BT + 4 * (un % 2)
                for e in range(8):
                    o = OA + 4 * e
                    cc = "0" if un == 0 else f"v[{o}:{o+3}]"
                    A(f"v_mfma_f32_16x16x32_bf16 v[{o}:{o+3}], v[{VST+4*e}:{VST+4*e+3}], v[{bb}:{bb+3}], {cc}")
                if un + 1 < NU:
                    bt(un + 1)
                    vcopy(2 * un + 2, tag)
                    vcopy(2 * un + 3, tag)
            assert st["issued"] == 2 * NP

        variant(32 + E, "f")
        if E:
            A("s_branch L_sepi")
            self.lab("L_slow")
            variant(32 - E, "s")
            self.lab("L_sepi")
        self.sts(3)
        self.nop(4)
        for k in range(32):
            A(f"v_mul_f32 v{OA+k}, v24, v{OA+k}")
        for r in (4, 8):
            for k in range(32):
                A(f"v_add_f32_dpp v{OA+k}, v{OA+k}, v{OA+k} row_ror:{r} row_mask:0xf bank_mask:0xf")
        A("s_mov_b32 exec_lo, 0x000f000f")
        A("s_mov_b32 exec_hi, 0x000f000f")
        for e in range(8):
            A(f"ds_write_b128 v26, v[{OA+4*e}:{OA+4*e+3}] offset:{64*e}")
        A("s_mov_b64 exec, -1")
        A("s_waitcnt lgkmcnt(0)")
        A("s_barrier")
        self.sts(4)
        self.sts_flush(6)
        A("s_endpgm")

    def skipmem(self, tag, start):
        sk = str(self.opt.get("skip", "")).split("+")
        if tag not in sk:
            return
        for i in range(start, len(self.L)):
            t = self.L[i].strip()
            if (t.startswith("global_") or t.startswith("buffer_")) and "v252" not in t:
                self.L[i] = "  s_nop 0"

    def arrive_wait(self, name, dbg_off, mb_off, sleep):
        if name in str(self.opt.get("skip", "")).split("+"):
            self.A("s_lshl_b32 s49, s42, 9")
            self.A(f"s_add_u32 s49, s49, {WS_SYNC}")
            self.A("v_mov_b32 v51, s49")
            self.spin_init()
            return
        self.arrive_wait2(name, dbg_off, mb_off, sleep)

    def arrive_wait2(self, name, dbg_off, mb_off, sleep):
        A = self.A
        if dbg_off is None:
            A("s_lshl_b32 s49, s42, 9")
            A(f"s_add_u32 s49, s49, {WS_SYNC}")
            A("v_mov_b32 v51, s49")
        A("s_waitcnt vmcnt(0)")
        A("s_mov_b64 exec, 1")
        if dbg_off == "fin":
            A(f"global_atomic_add v4, v51, v30, s[40:41] offset:4 sc0 sc1")
        elif dbg_off is None:
            A(f"global_atomic_add v4, v51, v30, s[40:41] sc0 sc1")
        else:
            A(f"global_atomic_add v4, v3, v30, s[38:39] offset:{dbg_off} sc0 sc1")
        self.spin_init()
        A("s_waitcnt vmcnt(0)")
        A("v_readfirstlane_b32 s57, v4")
        A("s_nop 3")
        A("s_and_b32 s57, s57, 31")
        A("s_cmp_lg_u32 s57, 31")
        A(f"s_cbranch_scc1 L_aw_{name}")
        A("s_mov_b32 exec_lo, -1")
        A(f"global_store_dword v38, v30, s[40:41] offset:{mb_off} sc1")
        A(f"s_branch L_ad_{name}")
        self.lab(f"L_aw_{name}")
        A(f"global_load_dword v4, v39, s[40:41] offset:{mb_off} sc1")
        A("s_waitcnt vmcnt(0)")
        A("v_readfirstlane_b32 s57, v4")
        A("s_nop 3")
        A("s_cmp_lg_u32 s57, 0")
        A(f"s_cbranch_scc1 L_ad_{name}")
        self.spin_tail(f"L_aw_{name}", f"L_ad_{name}", sleep)
        self.lab(f"L_ad_{name}")
        A("s_mov_b64 exec, -1")

    def fin_wait(self, tag=''):
        A = self.A
        A(f"v_mov_b32 v27, {FINF}")
        A("v_and_b32 v26, 3, v1")
        A(f"v_lshlrev_b32 v26, 2, v26")
        A(f"v_add_u32 v26, {FIN}, v26")
        self.spin_init()
        self.lab("L_finw" + tag)
        A("ds_read_b32 v28, v27")
        A("ds_read_b32 v24, v26")
        A("ds_read_b32 v25, v26 offset:16")
        A("s_waitcnt lgkmcnt(0)")
        A("v_readfirstlane_b32 s57, v28")
        A("s_nop 3")
        A("s_cmp_lg_u32 s57, 0")
        A("s_cbranch_scc1 L_find" + tag)
        self.spin_tail("L_finw" + tag, "L_find" + tag, 1)
        self.lab("L_find" + tag)
        A("v_sub_f32 v24, v22, v24")
        A("v_mul_f32 v24, s59, v24")
        A("v_exp_f32 v24, v24")
        self.nop(1)
        A("v_mul_f32 v24, v24, v25")
        A("v_and_b32 v26, 3, v1")
        A("v_lshlrev_b32 v26, 9, v26")
        A("v_lshrrev_b32 v27, 4, v1")
        A("v_lshl_add_u32 v26, v27, 4, v26")
        A("s_lshl_b32 s57, s3, 11")
        A(f"s_add_u32 s57, s57, {PART}")
        A("v_add_u32 v26, s57, v26")

    def helper(self):
        A = self.A
        opt = self.opt
        X = 8; T = 16; XP = 24
        tsn = (1 if opt.get("ts") else 0) if opt.get("ts") != "end" else 0
        if opt.get("nohelp"):
            A("s_waitcnt lgkmcnt(0)")
            self.ts_entry()
            A(f"v_mov_b32 v29, {FINF}")
            A("v_mov_b32 v30, 1")
            A("ds_write_b32 v29, v30")
            A("s_waitcnt lgkmcnt(0)")
            A("s_barrier")
            A("s_barrier")
            A("s_endpgm")
        A("v_lshlrev_b32 v2, 4, v1")
        A("s_lshr_b32 s60, s43, 2")
        A("s_and_b32 s61, s43, 3")
        A("s_lshl_b32 s51, s60, 7")
        A("s_lshl_b32 s49, s42, 4")
        A("s_add_u32 s51, s51, s49")
        A("s_lshl_b32 s49, s61, 2")
        A("s_add_u32 s51, s51, s49")
        A("v_lshrrev_b32 v3, 3, v1")
        A("v_lshlrev_b32 v3, 13, v3")
        A("v_and_b32 v4, 7, v1")
        A("v_lshl_or_b32 v3, v4, 4, v3")
        A("s_lshl_b32 s48, s42, 10")
        A("s_lshl_b32 s49, s43, 5")
        A("s_add_u32 s48, s48, s49")
        A("s_and_b32 s44, s43, 7")
        A("s_lshr_b32 s45, s43, 3")
        A("s_lshl_b32 s56, s45, 20")
        A("s_lshl_b32 s49, s42, 10")
        A("s_add_u32 s56, s56, s49")
        A("s_lshl_b32 s49, s44, 7")
        A("s_add_u32 s56, s56, s49")
        A("s_waitcnt lgkmcnt(0)")
        A("global_load_dwordx4 v[24:27], v2, s[16:17]")
        A("s_mov_b32 s52, s22")
        A("s_and_b32 s53, s23, 0xffff")
        A(f"s_mov_b32 s54, {4 << 20}")
        A("s_mov_b32 s55, 0x20000")
        st = len(self.L)
        for k in range(16):
            A(f"s_mov_b32 m0, {WQ + 1024*k}")
            A("s_nop 0")
            A(f"buffer_load_dwordx4 v3, s[52:55], s56 offen nt lds")
            A("s_add_u32 s56, s56, 65536")
        self.skipmem("wq", st)
        if opt.get("hfirst"):
            A("s_barrier")
        if opt.get("ts") != "end":
            self.ts_entry()
        self.ts(0)
        A("s_lshl_b32 s49, s47, 7")
        A(f"s_add_u32 s49, s49, {WS_O2}")
        A("v_add_u32 v28, s49, v2")
        for i in range(4):
            A(f"v_mov_b32 v{32+i}, 0")
        A("s_mov_b64 exec, 0xff")
        A("global_store_dwordx4 v28, v[32:35], s[40:41] sc1")
        A("s_lshl_b32 s49, s51, 1")
        A(f"s_add_u32 s49, s49, {WS_G}")
        A("v_mov_b32 v28, s49")
        A("s_mov_b64 exec, 1")
        A("global_store_dwordx2 v28, v[32:33], s[40:41] sc1")
        A("s_mov_b64 exec, -1")
        A("s_lshl_b32 s46, s47, 7")
        A(f"s_add_u32 s46, s46, {WS_MB}")
        A("v_add_u32 v28, s46, v2")
        A("s_lshl_b32 s49, s42, 9")
        A(f"s_add_u32 s49, s49, {WS_SYNC}")
        A("v_mov_b32 v29, s49")
        A("v_cmp_eq_u32 vcc, 4, v1")
        self.nop(2)
        A("v_cndmask_b32 v28, v28, v29, vcc")
        A("s_cmp_eq_u32 s43, 0")
        A("s_cselect_b32 exec_lo, 31, 15")
        A("s_mov_b32 exec_hi, 0")
        A("global_store_dwordx4 v28, v[32:35], s[40:41] sc1")
        A("s_mov_b64 exec, -1")
        A("s_or_b32 s49, s42, s61")
        A("s_cmp_lg_u32 s49, 0")
        A("s_cbranch_scc1 L_nozs")
        A("s_lshl_b32 s49, s60, 9")
        A(f"s_add_u32 s49, s49, {WS_SACC}")
        A("v_add_u32 v28, s49, v2")
        A("s_mov_b32 exec_hi, 0")
        A("global_store_dwordx4 v28, v[32:35], s[40:41] sc1")
        A("s_mov_b64 exec, -1")
        self.lab("L_nozs")
        A(f"v_lshlrev_b32 v28, 2, v1")
        A(f"v_add_u32 v28, {MLF}, v28")
        A("s_mov_b64 exec, 0xffff")
        A("ds_write_b32 v28, v32 offset:0")
        A("ds_write_b32 v28, v32 offset:32")
        A("s_mov_b64 exec, -1")
        A(f"s_waitcnt vmcnt({(19 + 2*tsn) if not opt.get('skip') else 0})")
        self.ts(13)
        for i in range(4):
            A(f"v_lshlrev_b32 v{X+2*i}, 16, v{XP+i}")
            A(f"v_and_b32 v{X+2*i+1}, 0xffff0000, v{XP+i}")
        self.layernorm(X, T, XP)
        A(f"v_add_u32 v28, {XN}, v2")
        A(f"ds_write_b128 v28, v[{XP}:{XP+3}]")
        A("v_lshrrev_b32 v29, 4, v1")
        A("v_lshlrev_b32 v30, 4, v29")
        A("s_lshl_b32 s49, s45, 8")
        A(f"s_add_u32 s49, s49, {XN}")
        A("v_add_u32 v30, s49, v30")
        A("v_bfe_u32 v31, v1, 2, 2")
        A("v_lshl_add_u32 v31, v29, 3, v31")
        A("v_lshlrev_b32 v31, 7, v31")
        A("v_and_b32 v28, 3, v1")
        A("v_lshl_add_u32 v31, v28, 3, v31")
        A(f"v_add_u32 v31, {WQ}, v31")
        A("v_and_b32 v28, 15, v1")
        A("v_lshlrev_b32 v28, 6, v28")
        A("v_lshl_add_u32 v29, v29, 4, v28")
        A("s_lshl_b32 s49, s42, 13")
        A("s_lshl_b32 s56, s45, 11")
        A("s_add_u32 s49, s49, s56")
        A("s_lshl_b32 s56, s44, 8")
        A("s_add_u32 s49, s49, s56")
        A(f"s_add_u32 s49, s49, {WS_QP}")
        A("v_add_u32 v29, s49, v29")
        A("v_and_b32 v28, 15, v1")
        A("s_waitcnt lgkmcnt(0)")
        XO = 64; WO = 128; QD = 32
        for ks in range(4):
            A(f"ds_read_b128 v[{XO+4*ks}:{XO+4*ks+3}], v30 offset:{64*ks}")
        A("s_waitcnt vmcnt(0)")
        self.ts(1)
        for ks in range(4):
            for ct in range(4):
                r = WO + 16 * ks + 4 * ct
                A(f"ds_read_b64_tr_b16 v[{r}:{r+1}], v31 offset:{4096*ks + 32*ct}")
                A(f"ds_read_b64_tr_b16 v[{r+2}:{r+3}], v31 offset:{4096*ks + 32*ct + 512}")
            A("s_waitcnt lgkmcnt(0)")
            for ct in range(4):
                r = WO + 16 * ks + 4 * ct
                d = QD + 4 * ct
                c = "0" if ks == 0 else f"v[{d}:{d+3}]"
                A(f"v_mfma_f32_16x16x32_bf16 v[{d}:{d+3}], v[{r}:{r+3}], v[{XO+4*ks}:{XO+4*ks+3}], {c}")
        A("v_cmp_eq_u32 s[52:53], 1, v28")
        A("v_cmp_eq_u32 s[54:55], 2, v28")
        A("v_cmp_eq_u32 vcc, 3, v28")
        self.nop(6)
        for r in range(4):
            A(f"v_cndmask_b32 v{QD+r}, v{QD+r}, v{QD+4+r}, s[52:53]")
        for r in range(4):
            A(f"v_cndmask_b32 v{QD+r}, v{QD+r}, v{QD+8+r}, s[54:55]")
        for r in range(4):
            A(f"v_cndmask_b32 v{QD+r}, v{QD+r}, v{QD+12+r}, vcc")
        A("s_mov_b32 exec_lo, 0x000f000f")
        A("s_mov_b32 exec_hi, 0x000f000f")
        A(f"global_store_dwordx4 v29, v[{QD}:{QD+3}], s[40:41] sc1")
        A("s_mov_b64 exec, -1")
        A("s_waitcnt vmcnt(0)")
        A("s_lshl_b32 s49, s42, 5")
        A("v_mov_b32 v3, s49")
        A("v_mov_b32 v30, 1")
        A("s_lshl_b32 s49, s42, 12")
        A(f"s_add_u32 s49, s49, {WS_MB}")
        A("v_lshlrev_b32 v38, 7, v1")
        A("v_add_u32 v38, s49, v38")
        A("v_mov_b32 v39, s46")
        self.ts(2)
        self.arrive_wait("q", 0, 0, opt.get("qsleep", 2))
        if opt.get("ts") and opt.get("ts") != "end":
            A("s_mov_b64 exec, 1")
            A("v_mov_b32 v250, s50")
            A("v_mov_b32 v251, 0")
            A("v_mov_b32 v252, s62")
            A("global_store_dwordx2 v252, v[250:251], s[40:41] offset:128")
            A("s_mov_b64 exec, -1")
        self.ts(3)
        A("s_lshl_b32 s49, s42, 13")
        A(f"s_add_u32 s49, s49, {WS_QP}")
        A("v_lshlrev_b32 v28, 5, v1")
        A("v_add_u32 v28, s49, v28")
        A("v_add_u32 v29, 4096, v28")
        st = len(self.L)
        for rb in range(4):
            for hh in range(2):
                r = 64 + 8 * rb + 4 * hh
                A(f"global_load_dwordx4 v[{r}:{r+3}], v{28 + rb // 2}, s[40:41] offset:{2048*(rb%2) + 16*hh} sc1 {opt.get('qldf', '')}")
        self.skipmem("qld", st)
        A(f"v_add_u32 v28, {QS}, v2")
        A("s_waitcnt vmcnt(0)")
        for k in range(8):
            A(f"v_add_f32 v{64+k}, v{64+k}, v{72+k}")
            A(f"v_add_f32 v{80+k}, v{80+k}, v{88+k}")
        for k in range(8):
            A(f"v_add_f32 v{64+k}, v{64+k}, v{80+k}")
        for k in range(4):
            A(f"v_cvt_pk_bf16_f32 v{32+k}, v{64+2*k}, v{65+2*k}")
        A("ds_write_b128 v28, v[32:35]")
        A("s_waitcnt lgkmcnt(0)")
        A("s_barrier")
        self.ts(4)
        if opt.get("span"):
            A("s_memrealtime s[68:69]")
        A(f"s_mov_b32 s59, {f32(LOG2E)}")
        A("s_mov_b32 s52, s24")
        A("s_and_b32 s53, s25, 0xffff")
        A(f"s_mov_b32 s54, {4 << 20}")
        A("s_mov_b32 s55, 0x20000")
        A("v_lshrrev_b32 v28, 3, v1")
        A("v_lshlrev_b32 v28, 10, v28")
        A("v_and_b32 v29, 7, v1")
        A("v_lshl_or_b32 v28, v29, 4, v28")
        A("s_lshl_b32 s56, s42, 19")
        A("s_lshl_b32 s49, s61, 17")
        A("s_add_u32 s56, s56, s49")
        A("s_lshl_b32 s49, s60, 7")
        A("s_add_u32 s56, s56, s49")
        st = len(self.L)
        for k in range(16):
            A(f"s_mov_b32 m0, {WQ + 1024*k}")
            A("s_nop 0")
            A(f"buffer_load_dwordx4 v28, s[52:55], s56 offen nt lds")
            A("s_add_u32 s56, s56, 8192")
        self.skipmem("wo", st)
        st = len(self.L)
        for a, (lo, base) in enumerate(((28, WST), (30, WST + 4096), (32, WST + 8192))):
            A(f"s_mov_b32 s52, s{lo}")
            A(f"s_and_b32 s53, s{lo+1}, 0xffff")
            A("s_mov_b32 s54, 3584")
            A("s_mov_b32 s55, 0x20000")
            A(f"s_mov_b32 m0, {base}")
            A("s_nop 0")
            for q in range(4):
                A(f"buffer_load_dwordx4 v2, s[52:55], 0 offen offset:{1024*q} lds")
        A("s_lshl_b32 s49, s60, 7")
        A("v_lshlrev_b32 v43, 1, v1")
        A("v_add_u32 v43, s49, v43")
        A("global_load_ushort v40, v43, s[16:17]")
        A("v_mov_b32 v29, 0")
        A("global_load_ushort v41, v29, s[34:35]")
        self.skipmem("w1", st)
        self.layernorm(X, T, XP)
        A(f"v_add_u32 v28, {XN}, v2")
        A(f"ds_write_b128 v28, v[{XP}:{XP+3}]")
        A(f"v_mov_b32 v28, s51")
        A(f"v_add_u32 v28, {XN}, v28")
        A("s_waitcnt lgkmcnt(0)")
        A("ds_read_b32 v42, v28")
        A("v_lshrrev_b32 v29, 4, v1")
        A("v_bfe_u32 v31, v1, 2, 2")
        A("v_lshl_add_u32 v31, v29, 3, v31")
        A("v_lshlrev_b32 v31, 7, v31")
        A("v_and_b32 v28, 3, v1")
        A("v_lshl_add_u32 v31, v28, 3, v31")
        A(f"v_add_u32 v31, {WQ}, v31")
        A("s_waitcnt vmcnt(0) lgkmcnt(0)")
        WP = 128
        for ks in range(4):
            for ct in range(4):
                r = WP + 16 * ks + 4 * ct
                A(f"ds_read_b64_tr_b16 v[{r}:{r+1}], v31 offset:{4096*ks + 32*ct}")
                A(f"ds_read_b64_tr_b16 v[{r+2}:{r+3}], v31 offset:{4096*ks + 32*ct + 512}")
            A("s_waitcnt lgkmcnt(0)")
        A("v_lshlrev_b32 v44, 16, v42")
        A("v_and_b32 v45, 0xffff0000, v42")
        A("v_mov_b32 v46, 0")
        A("v_mov_b32 v47, 0")
        A(f"v_lshlrev_b32 v28, 2, v1")
        A(f"v_add_u32 v28, {WST}, v28")
        A("s_mov_b32 s57, 14")
        c1 = -2.0 * 0.7978845608028654 * LOG2E
        A(f"s_mov_b32 s58, {f32(c1)}")
        A(f"s_mov_b32 s56, {f32(c1 * 0.044715)}")
        self.lab("L_gate")
        A("ds_read_b32 v48, v28")
        A("ds_read_b32 v49, v28 offset:4096")
        A("ds_read_b32 v50, v28 offset:8192")
        A("v_add_u32 v28, 256, v28")
        A("s_waitcnt lgkmcnt(0)")
        A("v_lshlrev_b32 v51, 16, v48")
        A("v_and_b32 v52, 0xffff0000, v48")
        A("v_lshlrev_b32 v53, 16, v49")
        A("v_and_b32 v54, 0xffff0000, v49")
        A("v_lshlrev_b32 v55, 16, v50")
        A("v_and_b32 v56, 0xffff0000, v50")
        U = [8, 9, 10, 11]; Z = [12, 13, 14, 15]
        combos = [(44, 51, 53, 55, 46), (44, 52, 54, 56, 46), (45, 51, 53, 55, 47), (45, 52, 54, 56, 47)]
        for k, (h, w1, b1, w2, acc) in enumerate(combos):
            A(f"v_mul_f32 v{U[k]}, v{h}, v{w1}")
        for k in range(4):
            self.bf16r(f"v{U[k]}")
        for k, (h, w1, b1, w2, acc) in enumerate(combos):
            A(f"v_add_f32 v{U[k]}, v{U[k]}, v{b1}")
        for k in range(4):
            self.bf16r(f"v{U[k]}")
        for k in range(4):
            A(f"v_mul_f32 v{Z[k]}, v{U[k]}, v{U[k]}")
        for k in range(4):
            A(f"v_mul_f32 v{Z[k]}, s56, v{Z[k]}")
        for k in range(4):
            A(f"v_add_f32 v{Z[k]}, s58, v{Z[k]}")
        for k in range(4):
            A(f"v_mul_f32 v{Z[k]}, v{Z[k]}, v{U[k]}")
        for k in range(4):
            A(f"v_exp_f32 v{Z[k]}, v{Z[k]}")
        self.nop(1)
        for k in range(4):
            A(f"v_add_f32 v{Z[k]}, 1.0, v{Z[k]}")
        for k in range(4):
            A(f"v_rcp_f32 v{Z[k]}, v{Z[k]}")
        self.nop(1)
        for k in range(4):
            A(f"v_mul_f32 v{U[k]}, v{U[k]}, v{Z[k]}")
        for k in range(4):
            self.bf16r(f"v{U[k]}")
        for k, (h, w1, b1, w2, acc) in enumerate(combos):
            A(f"v_fmac_f32 v{acc}, v{U[k]}, v{w2}")
        A("s_sub_u32 s57, s57, 1")
        A("s_cmp_lg_u32 s57, 0")
        A("s_cbranch_scc1 L_gate")
        A("s_waitcnt vmcnt(0)")
        self.allreduce64("add", "v46", "v16")
        self.allreduce64("add", "v47", "v16")
        A("v_lshlrev_b32 v41, 16, v41")
        for a in (46, 47):
            self.bf16r(f"v{a}")
            A(f"v_add_f32 v{a}, v{a}, v41")
            self.bf16r(f"v{a}")
            A(f"v_mul_f32 v16, s59, v{a}")
            A("v_exp_f32 v16, -v16")
            self.nop(1)
            A("v_add_f32 v16, 1.0, v16")
            A("v_rcp_f32 v17, v16")
            self.nop(1)
            A(f"v_mul_f32 v18, v{a}, v17")
            A(f"v_fma_f32 v19, -v18, v16, v{a}")
            A("v_fma_f32 v19, v19, v17, v18")
            A("v_cmp_gt_f32 vcc, 0x7f000000, v16")
            self.nop(2)
            A(f"v_cndmask_b32 v{a}, v18, v19, vcc")
            self.bf16r(f"v{a}")
        A("v_bfrev_b32 v16, 1")
        A("v_cmp_eq_u32 vcc, 0, v46")
        A("v_cmp_eq_u32 s[52:53], 0, v47")
        self.nop(2)
        A("v_cndmask_b32 v46, v46, v16, vcc")
        A("v_cndmask_b32 v47, v47, v16, s[52:53]")
        A("s_lshl_b32 s49, s51, 1")
        A(f"s_add_u32 s49, s49, {WS_G}")
        A("v_mov_b32 v28, s49")
        A("s_mov_b64 exec, 1")
        A("global_store_dwordx2 v28, v[46:47], s[40:41] sc1")
        A("s_mov_b64 exec, -1")
        self.ts(5)
        A(f"v_mov_b32 v28, {MLF}")
        A("v_and_b32 v29, 3, v1")
        A("v_lshlrev_b32 v29, 2, v29")
        A(f"v_add_u32 v29, {ML}, v29")
        self.spin_init()
        self.lab("L_mlw")
        A("ds_read_b128 v[4:7], v28")
        for w in range(4):
            A(f"ds_read_b32 v{8+w}, v29 offset:{32*w}")
            A(f"ds_read_b32 v{12+w}, v29 offset:{32*w+16}")
        A("s_waitcnt lgkmcnt(0)")
        A("v_and_b32 v4, v4, v5")
        A("v_and_b32 v6, v6, v7")
        A("v_and_b32 v4, v4, v6")
        A("s_nop 0")
        A("v_readfirstlane_b32 s57, v4")
        A("s_nop 3")
        A("s_cmp_lg_u32 s57, 0")
        A("s_cbranch_scc1 L_mld")
        self.spin_tail("L_mlw", "L_mld", 8)
        self.lab("L_mld")
        self.ts(6)
        A("v_max3_f32 v16, v8, v9, v10")
        A("v_max_f32 v16, v16, v11")
        for w in range(4):
            A(f"v_sub_f32 v{8+w}, v{8+w}, v16")
        for w in range(4):
            A(f"v_mul_f32 v{8+w}, s59, v{8+w}")
        for w in range(4):
            A(f"v_exp_f32 v{8+w}, v{8+w}")
        self.nop(1)
        A("v_mul_f32 v17, v8, v12")
        for w in range(1, 4):
            A(f"v_fmac_f32 v17, v{8+w}, v{12+w}")
        A("s_lshl_b32 s49, s47, 5")
        A(f"s_add_u32 s49, s49, {WS_ML}")
        A("v_lshlrev_b32 v28, 3, v1")
        A("v_add_u32 v28, s49, v28")
        A("v_mov_b32 v30, 1")
        A("s_mov_b64 exec, 15")
        A("global_store_dwordx2 v28, v[16:17], s[40:41] sc1")
        A("s_mov_b64 exec, -1")
        A("v_lshlrev_b32 v28, 5, v1")
        self.spin_init()
        A("s_mov_b64 exec, 0xff")
        self.lab("L_allw")
        A("global_load_dword v4, v28, s[38:39] sc1")
        A("s_waitcnt vmcnt(0)")
        A(f"v_cmp_le_u32 vcc, {0 if 'q' in str(opt.get('skip', '')).split('+') else 32}, v4")
        A("s_nop 1")
        A("s_cmp_eq_u64 vcc, exec")
        A("s_cbranch_scc1 L_alld")
        self.spin_tail("L_allw", "L_alld", 32)
        self.lab("L_alld")
        A("s_mov_b64 exec, -1")
        self.arrive_wait("ml", None, 4, opt.get("mlsleep", 16))
        self.ts(7)
        A("s_lshl_b32 s49, s42, 10")
        A(f"s_add_u32 s49, s49, {WS_ML}")
        A("v_lshlrev_b32 v28, 3, v1")
        A("v_add_u32 v28, s49, v28")
        A("global_load_dwordx2 v[8:9], v28, s[40:41] sc1")
        A("global_load_dwordx2 v[10:11], v28, s[40:41] offset:512 sc1")
        A("s_waitcnt vmcnt(0)")
        A("v_max_f32 v16, v8, v10")
        for r in (4, 8):
            self.nop(2)
            A(f"v_max_f32_dpp v16, v16, v16 row_ror:{r} row_mask:0xf bank_mask:0xf")
        self.rows_reduce("max", "v16", "v17")
        A("v_sub_f32 v8, v8, v16")
        A("v_sub_f32 v10, v10, v16")
        A("v_mul_f32 v8, s59, v8")
        A("v_mul_f32 v10, s59, v10")
        A("v_exp_f32 v8, v8")
        A("v_exp_f32 v10, v10")
        self.nop(1)
        A("v_mul_f32 v17, v8, v9")
        A("v_fmac_f32 v17, v10, v11")
        for r in (4, 8):
            self.nop(2)
            A(f"v_add_f32_dpp v17, v17, v17 row_ror:{r} row_mask:0xf bank_mask:0xf")
        self.rows_reduce("add", "v17", "v18")
        A("v_rcp_f32 v18, v17")
        self.nop(1)
        A("v_fma_f32 v19, -v17, v18, 1.0")
        A("v_fmac_f32 v18, v19, v18")
        A("v_lshlrev_b32 v28, 2, v1")
        A(f"v_add_u32 v28, {FIN}, v28")
        A(f"v_mov_b32 v29, {FINF}")
        A("s_mov_b64 exec, 15")
        A("ds_write_b32 v28, v16")
        A("ds_write_b32 v28, v18 offset:16")
        A("s_waitcnt lgkmcnt(0)")
        A("s_mov_b64 exec, 1")
        A("ds_write_b32 v29, v30")
        A("s_mov_b64 exec, -1")
        A("v_lshrrev_b32 v33, 4, v1")
        A("v_and_b32 v34, 15, v1")
        A("v_and_b32 v28, 7, v1")
        A("v_lshl_add_u32 v28, v33, 3, v28")
        A("v_lshrrev_b32 v29, 3, v34")
        A("v_lshl_add_u32 v28, v29, 8, v28")
        A("v_lshlrev_b32 v29, 2, v28")
        A(f"v_add_u32 v29, {PART}, v29")
        A("v_cmp_eq_u32 s[68:69], 8, v34")
        A("v_cmp_eq_u32 s[70:71], 7, v34")
        A("v_min_u32 v35, 8, v34")
        A("v_subrev_u32 v36, 8, v34")
        self.nop(1)
        A("v_cndmask_b32 v36, v36, 8, s[70:71]")
        A("v_lshlrev_b32 v37, 6, v33")
        A("s_lshl_b32 s49, s42, 12")
        A(f"s_add_u32 s49, s49, {WS_O2}")
        A("v_lshl_add_u32 v32, v35, 2, v37")
        A("v_add_u32 v32, s49, v32")
        A("v_lshl_add_u32 v48, v36, 2, v37")
        A("v_add_u32 v48, s49, v48")
        A("v_add_u32 v48, 2048, v48")
        A("v_and_b32 v31, 3, v1")
        A("v_lshl_add_u32 v31, v31, 4, v37")
        A("s_lshl_b32 s56, s61, 10")
        A("s_add_u32 s49, s49, s56")
        A("v_add_u32 v31, s49, v31")
        A("s_lshl_b32 s49, s60, 9")
        A(f"s_add_u32 s49, s49, {WS_SACC}")
        A("v_lshlrev_b32 v37, 7, v33")
        A("v_lshl_add_u32 v49, v35, 2, v37")
        A("v_add_u32 v49, s49, v49")
        A("v_lshl_add_u32 v50, v36, 2, v37")
        A("v_add_u32 v50, s49, v50")
        A("v_cmp_eq_u32 s[52:53], 1, v33")
        A("v_cmp_eq_u32 s[54:55], 2, v33")
        A("v_cmp_eq_u32 s[44:45], 3, v33")
        A("v_cmp_gt_u32 s[72:73], 8, v34")
        A("s_lshl_b32 s49, s60, 8")
        A(f"s_add_u32 s49, s49, {WS_G}")
        A("v_lshlrev_b32 v36, 2, v1")
        A("v_add_u32 v36, s49, v36")
        self.spin_init()
        self.lab("L_gw")
        A("global_load_dword v41, v36, s[40:41] sc1")
        A("s_waitcnt vmcnt(0)")
        A("v_cmp_eq_u32 vcc, 0, v41")
        A("s_nop 1")
        A("s_cmp_eq_u64 vcc, 0")
        A("s_cbranch_scc1 L_gd")
        self.spin_tail("L_gw", "L_gd", 16)
        self.lab("L_gd")
        A("v_lshlrev_b32 v40, 16, v40")
        self.ts(8)
        A("s_waitcnt vmcnt(0) lgkmcnt(0)")
        A("s_barrier")
        self.ts(9)
        PR = 192
        for k in range(8):
            for w in range(4):
                A(f"ds_read_b32 v{PR+4*k+w}, v29 offset:{2048*w + 128*k}")
        for k in range(8):
            A(f"s_waitcnt lgkmcnt({min(15, 4*(7-k))})")
            A(f"v_add_f32 v{PR+4*k}, v{PR+4*k}, v{PR+4*k+1}")
            A(f"v_add_f32 v{PR+4*k+2}, v{PR+4*k+2}, v{PR+4*k+3}")
            A(f"v_add_f32 v{PR+4*k}, v{PR+4*k}, v{PR+4*k+2}")
            A(f"v_cndmask_b32 v{PR+4*k+1}, v{PR+4*k}, 1.0, s[68:69]")
            A(f"v_cndmask_b32 v{PR+4*k+2}, v{PR+4*k}, 1.0, s[70:71]")
        A("s_mov_b32 exec_lo, 0x01ff01ff")
        A("s_mov_b32 exec_hi, 0x01ff01ff")
        for k in range(8):
            A(f"global_atomic_add_f32 v32, v{PR+4*k+1}, s[40:41] offset:{256*k} sc1")
        A("s_mov_b32 exec_lo, 0xff80ff80")
        A("s_mov_b32 exec_hi, 0xff80ff80")
        for k in range(8):
            A(f"global_atomic_add_f32 v48, v{PR+4*k+2}, s[40:41] offset:{256*k} sc1")
        A("s_mov_b64 exec, -1")
        self.ts(10)
        if opt.get("stagea") == "cnt":
            self.arrive_wait("fin", "fin", 8, 1)
        OR = 64; OQ = 80; OB = 112; SD = 8
        A("s_mov_b32 s56, 0x44444444")
        A("s_mov_b32 s57, 0x44444444")
        self.spin_init()
        self.lab("L_ow")
        for ks in range(4):
            A(f"global_load_dwordx4 v[{OR+4*ks}:{OR+4*ks+3}], v31, s[40:41] offset:{256*ks} sc1")
        A("s_waitcnt vmcnt(0)")
        A(f"v_min3_f32 v4, v{OR}, v{OR+4}, v{OR+8}")
        A(f"v_min_f32 v4, v4, v{OR+12}")
        A("v_cmp_eq_f32 vcc, 0x42000000, v4")
        A("s_nop 1")
        A("s_and_b64 vcc, vcc, s[56:57]")
        A("s_cmp_eq_u64 vcc, s[56:57]")
        A("s_cbranch_scc1 L_od")
        self.spin_tail("L_ow", "L_od", opt.get("fsleep", 2))
        self.lab("L_od")
        self.ts(11)
        for ks in range(4):
            A(f"v_cvt_pk_bf16_f32 v{OQ+2*ks}, v{OR+4*ks}, v{OR+4*ks+1}")
            A(f"v_cvt_pk_bf16_f32 v{OQ+2*ks+1}, v{OR+4*ks+2}, v{OR+4*ks+3}")
        self.nop(1)
        for ks in range(4):
            for hh in range(2):
                for k in range(2):
                    A(f"v_mov_b32_dpp v{OB+4*ks+2*hh+k}, v{OQ+2*ks+k} quad_perm:[{hh},{hh},{hh},{hh}] row_mask:0xf bank_mask:0xf")
        self.nop(2)
        for ks in range(4):
            for ct in range(4):
                r = WP + 16 * ks + 4 * ct
                d = SD + 4 * ct
                c = "0" if ks == 0 else f"v[{d}:{d+3}]"
                A(f"v_mfma_f32_16x16x32_bf16 v[{d}:{d+3}], v[{OB+4*ks}:{OB+4*ks+3}], v[{r}:{r+3}], {c}")
        self.nop(6)
        A(f"v_cndmask_b32 v{SD}, v{SD}, v{SD+4}, s[52:53]")
        A(f"v_cndmask_b32 v{SD}, v{SD}, v{SD+8}, s[54:55]")
        A(f"v_cndmask_b32 v{SD}, v{SD}, v{SD+12}, s[44:45]")
        A(f"v_cndmask_b32 v9, v{SD}, 1.0, s[68:69]")
        A(f"v_cndmask_b32 v10, v{SD}, 1.0, s[70:71]")
        A("s_mov_b32 exec_lo, 0x01ff01ff")
        A("s_mov_b32 exec_hi, 0x01ff01ff")
        A("global_atomic_add_f32 v12, v49, v9, s[40:41] sc0 sc1")
        A("s_mov_b32 exec_lo, 0xff80ff80")
        A("s_mov_b32 exec_hi, 0xff80ff80")
        A("global_atomic_add_f32 v13, v50, v10, s[40:41] offset:64 sc0 sc1")
        A("s_mov_b64 exec, -1")
        A("s_waitcnt vmcnt(0)")
        self.ts(14)
        A("v_mov_b32_dpp v14, v12 row_newbcast:8 row_mask:0xf bank_mask:0xf")
        A("v_mov_b32_dpp v15, v13 row_newbcast:7 row_mask:0xf bank_mask:0xf")
        A("v_cndmask_b32 v12, v13, v12, s[72:73]")
        A("v_cndmask_b32 v14, v15, v14, s[72:73]")
        A(f"v_add_f32 v8, v{SD}, v12")
        A("v_cmp_eq_f32 vcc, 0x41f80000, v14")
        self.bf16r("v8")
        A("v_mul_f32 v8, v8, v41")
        self.bf16r("v8")
        A("v_add_f32 v8, v8, v40")
        A("v_cvt_pk_bf16_f32 v8, v8, v8")
        A("s_and_b64 exec, exec, vcc")
        A("s_cbranch_scc0 L_end")
        A("global_store_short v43, v8, s[36:37]")
        A("s_mov_b64 exec, -1")
        self.ts(12)


if __name__ == "__main__":
    out = sys.argv[1]
    opt = {}
    for a in sys.argv[2:]:
        k, _, v = a.partition("=")
        opt[k] = (int(v) if v.lstrip("-").isdigit() else v) if v else True
    open(out, "w").write(G3(**opt).gen())
```

```python
import sys, struct
from gen import G, NAME, HEADER, f32, LOG2E, SCALE
from gen2 import G2
import gen
_ts0 = gen.G.ts
def _ts(self, slot, sreg="s[74:75]", vt=("v250", "v251", "v252")):
    return _ts0(self, slot, sreg, vt)
gen.G.ts = _ts

RING = 0
WQ = 131072
PART = 147456
WST = 147456
XN = 159744
QS = 160768
ML = 161792
MLF = ML + 128
FIN = ML + 160
FINF = ML + 192
WOF = ML + 196
LDS_BYTES = 162304

WS_Q = 0
WS_ML = 8192
WS_O = 16384
WS_SYNC = 32768
WS_GFIN = 32768 + 4096
WS_TS = 65536
WS_WT = 1 << 20
WS_QP = 786432


WS_SACC = 40960
WS_G = 49152
WS_O2 = 917504
WS_MB = 851968


class G3(G2):
    def gen(self):
        A = self.A
        opt = self.opt
        NT = opt.get("nt", "nt")
        self.L.append(HEADER.rstrip("\n"))
        self.L.append(f"; @launch grid=(256,1,1) block=(320,1,1) lds={LDS_BYTES}")
        self.L.append('.amdgcn_target "amdgcn-amd-amdhsa--gfx950"')
        self.L.append(".text")
        self.L.append(f".globl {NAME}_kernel")
        self.L.append(".p2align 8")
        self.L.append(f".type {NAME}_kernel,@function")
        self.lab(f"{NAME}_kernel")
        A("s_cmp_ge_u32 s2, 256")
        A("s_cbranch_scc1 L_end")
        if opt.get("ts") or opt.get("span"):
            A("s_memrealtime s[66:67]")
        A("s_load_dwordx16 s[16:31], s[0:1], 0")
        A("s_load_dwordx8 s[32:39], s[0:1], 64")
        A("s_load_dwordx2 s[40:41], s[0:1], 96")
        A("v_lshrrev_b32 v1, 6, v0")
        if opt.get("imb", 2) or opt.get("pair"):
            A("s_and_b32 s42, s2, 6")
            A("v_readfirstlane_b32 s3, v1")
            A("s_bfe_u32 s43, s2, 0x10003")
            A("s_or_b32 s42, s42, s43")
            A("s_lshr_b32 s43, s2, 4")
            A("s_lshl_b32 s43, s43, 1")
            A("s_and_b32 s44, s2, 1")
            A("s_or_b32 s43, s43, s44")
        else:
            A("s_and_b32 s42, s2, 7")
            A("v_readfirstlane_b32 s3, v1")
            A("s_lshr_b32 s43, s2, 3")
        if opt.get("hlast"):
            A("s_nop 2")
            A("s_add_u32 s3, s3, 1")
            A("s_cmp_eq_u32 s3, 5")
            A("s_cselect_b32 s3, 0, s3")
        A("v_and_b32 v1, 63, v0")
        A("s_lshl_b32 s47, s42, 5")
        A("s_add_u32 s47, s47, s43")
        if opt.get("ts"):
            A("s_lshl_b32 s62, s2, 3")
            A("s_add_u32 s62, s62, s3")
            A("s_cmp_eq_u32 s3, 0")
            A("s_cselect_b32 s63, 0, 3")
            A("s_add_u32 s62, s62, s63")
            A("s_lshl_b32 s62, s62, 8")
            A(f"s_add_u32 s62, s62, {WS_TS}")
        A("s_cmp_eq_u32 s3, 0")
        A("s_cbranch_scc1 L_helper")
        self.stream(NT)
        self.lab("L_helper")
        self.helper()
        self.lab("L_end")
        A("s_endpgm")
        self.L.append('.section .rodata,"a"')
        self.L.append(".p2align 6")
        self.L.append(f".amdhsa_kernel {NAME}_kernel")
        for s in ("next_free_vgpr 256", "next_free_sgpr 80", "accum_offset 256", "group_segment_fixed_size 0",
                  "kernarg_size 104", "user_sgpr_count 2", "user_sgpr_kernarg_segment_ptr 1",
                  "system_sgpr_workgroup_id_x 1", "float_denorm_mode_32 3"):
            self.L.append("  .amdhsa_" + s)
        self.L.append(".end_amdhsa_kernel")
        return "\n".join(self.L) + "\n"

    def ts(self, slot, *a, **k):
        if self.opt.get("ts") == "end" and slot != 12:
            return
        return G2.ts(self, slot, *a, **k)

    def sts(self, k):
        if not self.opt.get("ts"):
            return
        self.A(f"s_memrealtime s[{68+2*k}:{69+2*k}]")

    def sts_flush(self, n):
        if not self.opt.get("ts"):
            return
        A = self.A
        A("s_waitcnt lgkmcnt(0)")
        A("v_mov_b32 v26, s62")
        A("s_mov_b64 exec, 1")
        for k in range(n):
            A(f"v_mov_b32 v24, s{68+2*k}")
            A(f"v_mov_b32 v25, s{69+2*k}")
            A(f"global_store_dwordx2 v26, v[24:25], s[40:41] offset:{8*k}")
            A("s_nop 1")
        A("v_mov_b32 v24, s66")
        A("v_mov_b32 v25, s67")
        A(f"global_store_dwordx2 v26, v[24:25], s[40:41] offset:{8*15}")
        A("s_mov_b64 exec, -1")

    def stream(self, NT):
        A = self.A
        opt = self.opt
        D = opt.get("depth", 8)
        E = opt.get("imb", 2)
        NC = 32 - E
        VOFF = 2; KRD = 6; VRD = 10; MSK = 18
        QV = 24; BQT = 40; DA = 56
        NB = opt.get("nb", 10)
        SP = 64; QT = 84; VST = 96; BT = 128; OA = 144; SC = 176
        BUF = [96 + 16 * p for p in range(10)]
        D0 = opt.get("depth0", D)
        n_d0 = opt.get("nd0", 0)
        st = {"issued": 0, "NP": 32 - E}
        A("s_sub_u32 s3, s3, 1")
        A("v_lshrrev_b32 v22, 4, v1")
        A("v_and_b32 v23, 15, v1")
        for q in range(4):
            c = 8 * (q & 1) + (q >> 1)
            A(f"v_lshl_or_b32 v{VOFF+q}, v22, 1, {c}")
            A(f"v_xor_b32 v{VOFF+q}, v{VOFF+q}, v23")
            A(f"v_lshlrev_b32 v{VOFF+q}, 4, v{VOFF+q}")
            A(f"v_lshl_or_b32 v{VOFF+q}, v22, 8, v{VOFF+q}")
        A("s_lshl_b32 s48, s3, 15")
        A("s_lshl_b32 s49, s43, 2")
        A("s_add_u32 s49, s49, s3")
        A("s_lshl_b32 s49, s49, 12")
        A("s_lshr_b32 s60, s43, 1")
        A("s_lshl_b32 s60, s60, 2")
        A("s_add_u32 s60, s60, s3")
        A("s_lshl_b32 s60, s60, 12")
        A("s_lshl_b32 s51, s42, 24")
        A("s_waitcnt lgkmcnt(0)")
        A("s_add_u32 s44, s18, s51")
        A("s_addc_u32 s45, s19, 0")
        A("s_and_b32 s45, s45, 0xffff")
        A(f"s_mov_b32 s46, {1 << 24}")
        A("s_mov_b32 s47, 0x20000")
        A("s_add_u32 s52, s20, s51")
        A("s_addc_u32 s53, s21, 0")
        A("s_and_b32 s53, s53, 0xffff")
        A(f"s_mov_b32 s54, {1 << 24}")
        A("s_mov_b32 s55, 0x20000")

        def refill(wait=True):
            i = st["issued"]
            NP = st["NP"]
            if i >= 2 * NP:
                return
            p = i % NP
            srd = "s[44:47]" if i < NP else "s[52:55]"
            if p < NC:
                A(f"s_add_u32 s56, s49, {p * 524288}")
            else:
                A(f"s_add_u32 s56, s60, {NC * 524288 + (p - NC) * 262144}")
            A(f"s_add_u32 m0, s48, {(i % 8) * 4096}")
            if wait:
                dd = D0 if i < n_d0 else D
                A(f"s_waitcnt vmcnt({dd-4})")
            else:
                A("s_nop 0")
            for q in range(4):
                A(f"buffer_load_dwordx4 v{VOFF+q}, {srd}, s56 offen offset:{q*1024} {NT} lds")
            st["issued"] += 1

        n0 = (D0 if n_d0 else D) // 4
        for pp in range(n0):
            refill(wait=False)
        self.sts(0)
        A("v_and_b32 v24, 7, v23")
        A("v_lshlrev_b32 v24, 1, v24")
        A("v_lshrrev_b32 v25, 3, v23")
        A("v_or_b32 v24, v24, v25")
        A("v_lshlrev_b32 v25, 8, v23")
        A("v_add_u32 v25, s48, v25")
        for u in range(4):
            A(f"v_lshl_or_b32 v26, v22, 2, {u}")
            A("v_xor_b32 v26, v26, v24")
            A(f"v_lshl_add_u32 v{KRD+u}, v26, 4, v25")
        A("v_lshrrev_b32 v26, 2, v1")
        A("v_and_b32 v24, 7, v26")
        A("v_lshlrev_b32 v24, 1, v24")
        A("v_lshrrev_b32 v25, 3, v26")
        A("v_or_b32 v24, v24, v25")
        A("v_bfe_u32 v27, v1, 1, 1")
        A("v_xor_b32 v24, v24, v27")
        A("v_and_b32 v27, 1, v1")
        A("v_lshlrev_b32 v27, 3, v27")
        A("v_lshl_add_u32 v25, v26, 8, v27")
        A("v_add_u32 v25, s48, v25")
        for e in range(8):
            A(f"v_xor_b32 v26, {2*e}, v24")
            A(f"v_lshl_add_u32 v{VRD+e}, v26, 4, v25")
        A("v_lshrrev_b32 v26, 2, v23")
        for t in range(4):
            A(f"v_cmp_eq_u32 vcc, {t}, v26")
            self.nop(2)
            A(f"v_cndmask_b32 v{MSK+t}, 0, -1, vcc")
        A("v_and_b32 v26, 3, v1")
        A("v_lshlrev_b32 v26, 8, v26")
        A("v_lshl_add_u32 v26, v22, 6, v26")
        A(f"v_add_u32 v23, {QS}, v26")
        A(f"s_mov_b32 s58, {f32(SCALE)}")
        A(f"s_mov_b32 s59, {f32(LOG2E)}")
        A("s_mov_b32 s61, 0xff80ff80")
        for pp in range(n0, 8):
            refill()

        def kcopy(p):
            for u in range(4):
                r = BUF[p % NB] + 4 * u
                A(f"ds_read_b128 v[{r}:{r+3}], v{KRD+u} offset:{(p % 8) * 4096}")
            A("s_waitcnt lgkmcnt(0)")
            refill()

        def vcopy(p, tag):
            NP = st["NP"]
            i = NP + p
            rem = 2 * NP - 1 - i
            if rem == 0:
                self.fin_wait(tag)
            if st["issued"] >= 2 * NP and rem * 4 < D:
                A(f"s_waitcnt vmcnt({rem * 4})")
            for e in range(8):
                r = VST + 4 * e + 2 * (p & 1)
                A(f"ds_read_b64_tr_b16 v[{r}:{r+1}], v{VRD+e} offset:{(i % 8) * 4096}")
            A("s_waitcnt lgkmcnt(0)")
            refill()

        for p in range(NB):
            kcopy(p)
        assert st["issued"] <= NC
        self.sts(5)
        A("s_barrier")
        self.sts(1)
        for u in range(4):
            A(f"ds_read_b128 v[{QV+4*u}:{QV+4*u+3}], v23 offset:{16*u}")
        if E:
            A("s_bitcmp1_b32 s43, 0")
            A("s_cbranch_scc1 L_slow")

        def bqt(t):
            for k in range(16):
                A(f"v_and_b32 v{BQT+k}, v{QV+k}, v{MSK+t}")

        def kmfma(pp, src):
            t, hf = pp >> 1, pp & 1
            d = DA + 4 * hf
            for u in range(4):
                c = "0" if (t == 0 and u == 0) else f"v[{d}:{d+3}]"
                r = src + 4 * u
                A(f"v_mfma_f32_16x16x32_bf16 v[{d}:{d+3}], v[{r}:{r+3}], v[{BQT+4*u}:{BQT+4*u+3}], {c}")

        def kpost(blk, nvalid):
            self.nop(6)
            for k in range(4):
                A(f"v_cvt_pk_bf16_f32 v{QT+k}, v{DA+2*k}, v{DA+2*k+1}")
            for k in range(4):
                A(f"v_lshlrev_b32 v{QT+4+2*k}, 16, v{QT+k}")
                A(f"v_and_b32 v{QT+5+2*k}, 0xffff0000, v{QT+k}")
            for k in range(8):
                A(f"v_mul_f32 v{QT+4+k}, s58, v{QT+4+k}")
            for k in range(4):
                A(f"v_cvt_pk_bf16_f32 v{SP+4*blk+k}, v{QT+4+2*k}, v{QT+5+2*k}")
            if nvalid < 4:
                A(f"v_mov_b32 v{QT}, v{MSK}")
                for t in range(1, nvalid):
                    A(f"v_or_b32 v{QT}, v{QT}, v{MSK+t}")
                for k in range(4):
                    A(f"v_bfi_b32 v{SP+4*blk+k}, v{QT}, v{SP+4*blk+k}, s61")

        issued0 = st["issued"]

        def variant(NP, tag):
            st["NP"] = NP
            st["issued"] = issued0
            A("s_waitcnt lgkmcnt(0)")
            c, k = 0, NB
            while c < NP:
                bqt((c % 8) >> 1)
                while k < c + 2:
                    kcopy(k); k += 1
                self.nop(2)
                kmfma(c % 8, BUF[c % NB])
                kmfma((c + 1) % 8, BUF[(c + 1) % NB])
                c += 2
                if k < NP:
                    kcopy(k); k += 1
                if c % 8 == 0 or c == NP:
                    kpost((c - 1) // 8, ((c - 1) % 8) // 2 + 1)
            self.sts(2)
            nblk = (NP + 7) // 8
            n = 8 * nblk
            for k in range(4 * nblk):
                A(f"v_lshlrev_b32 v{SC+2*k}, 16, v{SP+k}")
                A(f"v_and_b32 v{SC+2*k+1}, 0xffff0000, v{SP+k}")
            vcopy(0, tag)
            A(f"v_max_f32 v24, v{SC}, v{SC+1}")
            A(f"v_max_f32 v25, v{SC+2}, v{SC+3}")
            for k in range(4, n, 4):
                A(f"v_max3_f32 v24, v24, v{SC+k}, v{SC+k+1}")
                A(f"v_max3_f32 v25, v25, v{SC+k+2}, v{SC+k+3}")
            A("v_max_f32 v24, v24, v25")
            for r in (4, 8):
                self.nop(2)
                A(f"v_max_f32_dpp v24, v24, v24 row_ror:{r} row_mask:0xf bank_mask:0xf")
            self.rows_reduce("max", "v24", "v25")
            for k in range(n):
                A(f"v_sub_f32 v{SC+k}, v{SC+k}, v24")
            for k in range(n):
                A(f"v_mul_f32 v{SC+k}, s59, v{SC+k}")
            for k in range(n):
                A(f"v_exp_f32 v{SC+k}, v{SC+k}")
            vcopy(1, tag)
            for k in range(4 * nblk):
                A(f"v_cvt_pk_bf16_f32 v{SP+k}, v{SC+2*k}, v{SC+2*k+1}")
            m = n
            while m > 1:
                h = (m + 1) // 2
                for k in range(m - h):
                    A(f"v_add_f32 v{SC+k}, v{SC+k}, v{SC+k+h}")
                m = h
            A(f"v_mov_b32 v25, v{SC}")
            for r in (4, 8):
                self.nop(2)
                A(f"v_add_f32_dpp v25, v25, v25 row_ror:{r} row_mask:0xf bank_mask:0xf")
            self.rows_reduce("add", "v25", "v26")
            A("v_mov_b32 v22, v24")
            A("s_lshl_b32 s57, s3, 5")
            A(f"s_add_u32 s57, s57, {ML}")
            A("v_lshl_add_u32 v26, v1, 2, s57")
            A("s_lshl_b32 s57, s3, 2")
            A(f"s_add_u32 s57, s57, {MLF}")
            A("v_mov_b32 v27, s57")
            A("v_mov_b32 v28, 1")
            A("s_mov_b64 exec, 15")
            A("ds_write_b32 v26, v24")
            A("ds_write_b32 v26, v25 offset:16")
            A("s_waitcnt lgkmcnt(0)")
            A("s_mov_b64 exec, 1")
            A("ds_write_b32 v27, v28")
            A("s_mov_b64 exec, -1")
            NU = NP // 2

            def bt(un):
                for k in range(4):
                    A(f"v_and_b32 v{BT+4*(un%2)+k}, v{SP+4*(un//4)+k}, v{MSK+un%4}")
            bt(0)
            self.nop(2)
            for un in range(NU):
                bb = BT + 4 * (un % 2)
                for e in range(8):
                    o = OA + 4 * e
                    cc = "0" if un == 0 else f"v[{o}:{o+3}]"
                    A(f"v_mfma_f32_16x16x32_bf16 v[{o}:{o+3}], v[{VST+4*e}:{VST+4*e+3}], v[{bb}:{bb+3}], {cc}")
                if opt.get("wolate") and un == NU - opt.get("wolate"):
                    A(f"v_mov_b32 v27, {WOF}")
                    A("v_mov_b32 v28, 1")
                    A("ds_write_b32 v27, v28")
                if un + 1 < NU:
                    bt(un + 1)
                    vcopy(2 * un + 2, tag)
                    vcopy(2 * un + 3, tag)
            assert st["issued"] == 2 * NP

        variant(32 + E, "f")
        if E:
            A("s_branch L_sepi")
            self.lab("L_slow")
            variant(32 - E, "s")
            self.lab("L_sepi")
        self.sts(3)
        self.nop(4)
        for k in range(32):
            A(f"v_mul_f32 v{OA+k}, v24, v{OA+k}")
        for r in (4, 8):
            for k in range(32):
                A(f"v_add_f32_dpp v{OA+k}, v{OA+k}, v{OA+k} row_ror:{r} row_mask:0xf bank_mask:0xf")
        A("s_mov_b32 exec_lo, 0x000f000f")
        A("s_mov_b32 exec_hi, 0x000f000f")
        for e in range(8):
            A(f"ds_write_b128 v26, v[{OA+4*e}:{OA+4*e+3}] offset:{64*e}")
        A("s_mov_b64 exec, -1")
        A("s_waitcnt lgkmcnt(0)")
        A("s_barrier")
        self.sts(4)
        self.sts_flush(6)
        A("s_endpgm")

    def wo_dma(self):
        A = self.A
        opt = self.opt
        A("s_mov_b32 s52, s24")
        A("s_and_b32 s53, s25, 0xffff")
        A(f"s_mov_b32 s54, {4 << 20}")
        A("s_mov_b32 s55, 0x20000")
        A("v_lshrrev_b32 v28, 3, v1")
        A("v_lshlrev_b32 v28, 10, v28")
        A("v_and_b32 v29, 7, v1")
        A("v_lshl_or_b32 v28, v29, 4, v28")
        A("s_lshl_b32 s56, s42, 19")
        A("s_lshl_b32 s49, s61, 17")
        A("s_add_u32 s56, s56, s49")
        A("s_lshl_b32 s49, s60, 7")
        A("s_add_u32 s56, s56, s49")
        st = len(self.L)
        for k in range(16):
            A(f"s_mov_b32 m0, {WQ + 1024*k}")
            A("s_nop 0")
            A(f"buffer_load_dwordx4 v28, s[52:55], s56 offen nt lds")
            A("s_add_u32 s56, s56, 8192")
        self.skipmem("wo", st)

    def wo_tr(self, WP):
        A = self.A
        for ks in range(4):
            for ct in range(4):
                r = WP + 16 * ks + 4 * ct
                A(f"ds_read_b64_tr_b16 v[{r}:{r+1}], v57 offset:{4096*ks + 32*ct}")
                A(f"ds_read_b64_tr_b16 v[{r+2}:{r+3}], v57 offset:{4096*ks + 32*ct + 512}")

    def skipmem(self, tag, start):
        sk = str(self.opt.get("skip", "")).split("+")
        if tag not in sk:
            return
        for i in range(start, len(self.L)):
            t = self.L[i].strip()
            if (t.startswith("global_") or t.startswith("buffer_")) and "v252" not in t:
                self.L[i] = "  s_nop 0"

    def arrive_wait(self, name, dbg_off, mb_off, sleep):
        if name in str(self.opt.get("skip", "")).split("+"):
            self.A("s_lshl_b32 s49, s42, 9")
            self.A(f"s_add_u32 s49, s49, {WS_SYNC}")
            self.A("v_mov_b32 v51, s49")
            self.spin_init()
            return
        self.arrive_wait2(name, dbg_off, mb_off, sleep)

    def arrive_wait2(self, name, dbg_off, mb_off, sleep):
        A = self.A
        if dbg_off is None:
            A("s_lshl_b32 s49, s42, 9")
            A(f"s_add_u32 s49, s49, {WS_SYNC}")
            A("v_mov_b32 v51, s49")
        A("s_waitcnt vmcnt(0)")
        A("s_mov_b64 exec, 1")
        if dbg_off == "fin":
            A(f"global_atomic_add v4, v51, v30, s[40:41] offset:4 sc0 sc1")
        elif dbg_off is None:
            A(f"global_atomic_add v4, v51, v30, s[40:41] sc0 sc1")
        else:
            A(f"global_atomic_add v4, v3, v30, s[38:39] offset:{dbg_off} sc0 sc1")
        self.spin_init()
        A("s_waitcnt vmcnt(0)")
        A("v_readfirstlane_b32 s57, v4")
        A("s_nop 3")
        A("s_and_b32 s57, s57, 31")
        A("s_cmp_lg_u32 s57, 31")
        A(f"s_cbranch_scc1 L_aw_{name}")
        A("s_mov_b32 exec_lo, -1")
        A(f"global_store_dword v38, v30, s[40:41] offset:{mb_off} sc1")
        A(f"s_branch L_ad_{name}")
        self.lab(f"L_aw_{name}")
        A(f"global_load_dword v4, v39, s[40:41] offset:{mb_off} sc1")
        A("s_waitcnt vmcnt(0)")
        A("v_readfirstlane_b32 s57, v4")
        A("s_nop 3")
        A("s_cmp_lg_u32 s57, 0")
        A(f"s_cbranch_scc1 L_ad_{name}")
        self.spin_tail(f"L_aw_{name}", f"L_ad_{name}", sleep)
        self.lab(f"L_ad_{name}")
        A("s_mov_b64 exec, -1")

    def fin_wait(self, tag=''):
        A = self.A
        A(f"v_mov_b32 v27, {FINF}")
        A("v_and_b32 v26, 3, v1")
        A(f"v_lshlrev_b32 v26, 2, v26")
        A(f"v_add_u32 v26, {FIN}, v26")
        self.spin_init()
        self.lab("L_finw" + tag)
        A("ds_read_b32 v28, v27")
        A("ds_read_b32 v24, v26")
        A("ds_read_b32 v25, v26 offset:16")
        A("s_waitcnt lgkmcnt(0)")
        A("v_readfirstlane_b32 s57, v28")
        A("s_nop 3")
        A("s_cmp_lg_u32 s57, 0")
        A("s_cbranch_scc1 L_find" + tag)
        self.spin_tail("L_finw" + tag, "L_find" + tag, 1)
        self.lab("L_find" + tag)
        A("v_sub_f32 v24, v22, v24")
        A("v_mul_f32 v24, s59, v24")
        A("v_exp_f32 v24, v24")
        self.nop(1)
        A("v_mul_f32 v24, v24, v25")
        A("v_and_b32 v26, 3, v1")
        A("v_lshlrev_b32 v26, 9, v26")
        A("v_lshrrev_b32 v27, 4, v1")
        A("v_lshl_add_u32 v26, v27, 4, v26")
        A("s_lshl_b32 s57, s3, 11")
        A(f"s_add_u32 s57, s57, {PART}")
        A("v_add_u32 v26, s57, v26")

    def helper(self):
        A = self.A
        opt = self.opt
        X = 8; T = 16; XP = 24
        tsn = (1 if opt.get("ts") else 0) if opt.get("ts") != "end" else 0
        if opt.get("nohelp"):
            A("s_waitcnt lgkmcnt(0)")
            self.ts_entry()
            A(f"v_mov_b32 v29, {FINF}")
            A("v_mov_b32 v30, 1")
            A("ds_write_b32 v29, v30")
            A("s_waitcnt lgkmcnt(0)")
            A("s_barrier")
            A("s_barrier")
            A("s_endpgm")
        A("v_lshlrev_b32 v2, 4, v1")
        A("s_lshr_b32 s60, s43, 2")
        A("s_and_b32 s61, s43, 3")
        A("s_lshl_b32 s51, s60, 7")
        A("s_lshl_b32 s49, s42, 4")
        A("s_add_u32 s51, s51, s49")
        A("s_lshl_b32 s49, s61, 2")
        A("s_add_u32 s51, s51, s49")
        A("v_lshrrev_b32 v3, 3, v1")
        A("v_lshlrev_b32 v3, 13, v3")
        A("v_and_b32 v4, 7, v1")
        A("v_lshl_or_b32 v3, v4, 4, v3")
        A("s_lshl_b32 s48, s42, 10")
        A("s_lshl_b32 s49, s43, 5")
        A("s_add_u32 s48, s48, s49")
        A("s_and_b32 s44, s43, 7")
        A("s_lshr_b32 s45, s43, 3")
        A("s_lshl_b32 s56, s45, 20")
        A("s_lshl_b32 s49, s42, 10")
        A("s_add_u32 s56, s56, s49")
        A("s_lshl_b32 s49, s44, 7")
        A("s_add_u32 s56, s56, s49")
        A("s_waitcnt lgkmcnt(0)")
        A("global_load_dwordx4 v[24:27], v2, s[16:17]")
        A("s_mov_b32 s52, s22")
        A("s_and_b32 s53, s23, 0xffff")
        A(f"s_mov_b32 s54, {4 << 20}")
        A("s_mov_b32 s55, 0x20000")
        st = len(self.L)
        for k in range(16):
            A(f"s_mov_b32 m0, {WQ + 1024*k}")
            A("s_nop 0")
            A(f"buffer_load_dwordx4 v3, s[52:55], s56 offen nt lds")
            A("s_add_u32 s56, s56, 65536")
        self.skipmem("wq", st)
        if opt.get("hfirst"):
            A("s_barrier")
        if opt.get("ts") != "end":
            self.ts_entry()
        self.ts(0)
        A("s_lshl_b32 s49, s47, 6")
        A(f"s_add_u32 s49, s49, {WS_O}")
        A("v_add_u32 v28, s49, v2")
        for i in range(4):
            A(f"v_mov_b32 v{32+i}, 0")
        A("s_mov_b64 exec, 15")
        A("global_store_dwordx4 v28, v[32:35], s[40:41] sc1")
        A("s_lshl_b32 s49, s51, 1")
        A(f"s_add_u32 s49, s49, {WS_G}")
        A("v_mov_b32 v28, s49")
        A("s_mov_b64 exec, 1")
        A("global_store_dwordx2 v28, v[32:33], s[40:41] sc1")
        A("s_mov_b64 exec, -1")
        A("s_lshl_b32 s46, s47, 7")
        A(f"s_add_u32 s46, s46, {WS_MB}")
        A("v_add_u32 v28, s46, v2")
        A("s_lshl_b32 s49, s42, 9")
        A(f"s_add_u32 s49, s49, {WS_SYNC}")
        A("v_mov_b32 v29, s49")
        A("v_cmp_eq_u32 vcc, 4, v1")
        self.nop(2)
        A("v_cndmask_b32 v28, v28, v29, vcc")
        A("s_cmp_eq_u32 s43, 0")
        A("s_cselect_b32 exec_lo, 31, 15")
        A("s_mov_b32 exec_hi, 0")
        A("global_store_dwordx4 v28, v[32:35], s[40:41] sc1")
        A("s_mov_b64 exec, -1")
        A("s_or_b32 s49, s42, s61")
        A("s_cmp_lg_u32 s49, 0")
        A("s_cbranch_scc1 L_nozs")
        A("s_lshl_b32 s49, s60, 9")
        A(f"s_add_u32 s49, s49, {WS_SACC}")
        A("v_add_u32 v28, s49, v2")
        A("s_mov_b32 exec_hi, 0")
        A("global_store_dwordx4 v28, v[32:35], s[40:41] sc1")
        A("s_mov_b64 exec, -1")
        self.lab("L_nozs")
        A(f"v_lshlrev_b32 v28, 2, v1")
        A(f"v_add_u32 v28, {MLF}, v28")
        A("s_mov_b64 exec, 0xffff")
        A("ds_write_b32 v28, v32 offset:0")
        A("ds_write_b32 v28, v32 offset:32")
        A("s_mov_b64 exec, -1")
        A(f"s_waitcnt vmcnt({(19 + 2*tsn) if not opt.get('skip') else 0})")
        self.ts(13)
        for i in range(4):
            A(f"v_lshlrev_b32 v{X+2*i}, 16, v{XP+i}")
            A(f"v_and_b32 v{X+2*i+1}, 0xffff0000, v{XP+i}")
        self.layernorm(X, T, XP)
        A(f"v_add_u32 v28, {XN}, v2")
        A(f"ds_write_b128 v28, v[{XP}:{XP+3}]")
        A("v_lshrrev_b32 v29, 4, v1")
        A("v_lshlrev_b32 v30, 4, v29")
        A("s_lshl_b32 s49, s45, 8")
        A(f"s_add_u32 s49, s49, {XN}")
        A("v_add_u32 v30, s49, v30")
        A("v_bfe_u32 v31, v1, 2, 2")
        A("v_lshl_add_u32 v31, v29, 3, v31")
        A("v_lshlrev_b32 v31, 7, v31")
        A("v_and_b32 v28, 3, v1")
        A("v_lshl_add_u32 v31, v28, 3, v31")
        A(f"v_add_u32 v31, {WQ}, v31")
        A("v_and_b32 v28, 15, v1")
        A("v_lshlrev_b32 v28, 6, v28")
        A("v_lshl_add_u32 v29, v29, 4, v28")
        A("s_lshl_b32 s49, s42, 13")
        A("s_lshl_b32 s56, s45, 11")
        A("s_add_u32 s49, s49, s56")
        A("s_lshl_b32 s56, s44, 8")
        A("s_add_u32 s49, s49, s56")
        A(f"s_add_u32 s49, s49, {WS_QP}")
        A("v_add_u32 v29, s49, v29")
        A("v_and_b32 v28, 15, v1")
        A("s_waitcnt lgkmcnt(0)")
        XO = 64; WO = 128; QD = 32
        for ks in range(4):
            A(f"ds_read_b128 v[{XO+4*ks}:{XO+4*ks+3}], v30 offset:{64*ks}")
        A("s_waitcnt vmcnt(0)")
        self.ts(1)
        for ks in range(4):
            for ct in range(4):
                r = WO + 16 * ks + 4 * ct
                A(f"ds_read_b64_tr_b16 v[{r}:{r+1}], v31 offset:{4096*ks + 32*ct}")
                A(f"ds_read_b64_tr_b16 v[{r+2}:{r+3}], v31 offset:{4096*ks + 32*ct + 512}")
            A("s_waitcnt lgkmcnt(0)")
            for ct in range(4):
                r = WO + 16 * ks + 4 * ct
                d = QD + 4 * ct
                c = "0" if ks == 0 else f"v[{d}:{d+3}]"
                A(f"v_mfma_f32_16x16x32_bf16 v[{d}:{d+3}], v[{r}:{r+3}], v[{XO+4*ks}:{XO+4*ks+3}], {c}")
        A("v_cmp_eq_u32 s[52:53], 1, v28")
        A("v_cmp_eq_u32 s[54:55], 2, v28")
        A("v_cmp_eq_u32 vcc, 3, v28")
        self.nop(6)
        for r in range(4):
            A(f"v_cndmask_b32 v{QD+r}, v{QD+r}, v{QD+4+r}, s[52:53]")
        for r in range(4):
            A(f"v_cndmask_b32 v{QD+r}, v{QD+r}, v{QD+8+r}, s[54:55]")
        for r in range(4):
            A(f"v_cndmask_b32 v{QD+r}, v{QD+r}, v{QD+12+r}, vcc")
        A("s_mov_b32 exec_lo, 0x000f000f")
        A("s_mov_b32 exec_hi, 0x000f000f")
        A(f"global_store_dwordx4 v29, v[{QD}:{QD+3}], s[40:41] sc1")
        A("s_mov_b64 exec, -1")
        A("s_waitcnt vmcnt(0)")
        A("s_lshl_b32 s49, s42, 5")
        A("v_mov_b32 v3, s49")
        A("v_mov_b32 v30, 1")
        A("s_lshl_b32 s49, s42, 12")
        A(f"s_add_u32 s49, s49, {WS_MB}")
        A("v_lshlrev_b32 v38, 7, v1")
        A("v_add_u32 v38, s49, v38")
        A("v_mov_b32 v39, s46")
        self.ts(2)
        self.arrive_wait("q", 0, 0, opt.get("qsleep", 2))
        if opt.get("ts") and opt.get("ts") != "end":
            A("s_mov_b64 exec, 1")
            A("v_mov_b32 v250, s50")
            A("v_mov_b32 v251, 0")
            A("v_mov_b32 v252, s62")
            A("global_store_dwordx2 v252, v[250:251], s[40:41] offset:128")
            A("s_mov_b64 exec, -1")
        self.ts(3)
        A("s_lshl_b32 s49, s42, 13")
        A(f"s_add_u32 s49, s49, {WS_QP}")
        A("v_lshlrev_b32 v28, 5, v1")
        A("v_add_u32 v28, s49, v28")
        A("v_add_u32 v29, 4096, v28")
        st = len(self.L)
        for rb in range(4):
            for hh in range(2):
                r = 64 + 8 * rb + 4 * hh
                A(f"global_load_dwordx4 v[{r}:{r+3}], v{28 + rb // 2}, s[40:41] offset:{2048*(rb%2) + 16*hh} sc1 {opt.get('qldf', '')}")
        self.skipmem("qld", st)
        A(f"v_add_u32 v28, {QS}, v2")
        A("s_waitcnt vmcnt(0)")
        for k in range(8):
            A(f"v_add_f32 v{64+k}, v{64+k}, v{72+k}")
            A(f"v_add_f32 v{80+k}, v{80+k}, v{88+k}")
        for k in range(8):
            A(f"v_add_f32 v{64+k}, v{64+k}, v{80+k}")
        for k in range(4):
            A(f"v_cvt_pk_bf16_f32 v{32+k}, v{64+2*k}, v{65+2*k}")
        A("ds_write_b128 v28, v[32:35]")
        A("s_waitcnt lgkmcnt(0)")
        A("s_barrier")
        self.ts(4)
        if opt.get("span"):
            A("s_memrealtime s[68:69]")
        A(f"s_mov_b32 s59, {f32(LOG2E)}")
        if not opt.get("wolate"):
            self.wo_dma()
        st = len(self.L)
        for a, (lo, base) in enumerate(((28, WST), (30, WST + 4096), (32, WST + 8192))):
            A(f"s_mov_b32 s52, s{lo}")
            A(f"s_and_b32 s53, s{lo+1}, 0xffff")
            A("s_mov_b32 s54, 3584")
            A("s_mov_b32 s55, 0x20000")
            A(f"s_mov_b32 m0, {base}")
            A("s_nop 0")
            for q in range(4):
                A(f"buffer_load_dwordx4 v2, s[52:55], 0 offen offset:{1024*q} lds")
        A("s_lshl_b32 s49, s60, 7")
        A("v_lshlrev_b32 v43, 1, v1")
        A("v_add_u32 v43, s49, v43")
        A("global_load_ushort v40, v43, s[16:17]")
        A("v_mov_b32 v29, 0")
        A("global_load_ushort v41, v29, s[34:35]")
        self.skipmem("w1", st)
        self.layernorm(X, T, XP)
        A(f"v_add_u32 v28, {XN}, v2")
        A(f"ds_write_b128 v28, v[{XP}:{XP+3}]")
        A(f"v_mov_b32 v28, s51")
        A(f"v_add_u32 v28, {XN}, v28")
        A("s_waitcnt lgkmcnt(0)")
        A("ds_read_b32 v42, v28")
        A("v_lshrrev_b32 v29, 4, v1")
        A("v_bfe_u32 v57, v1, 2, 2")
        A("v_lshl_add_u32 v57, v29, 3, v57")
        A("v_lshlrev_b32 v57, 7, v57")
        A("v_and_b32 v28, 3, v1")
        A("v_lshl_add_u32 v57, v28, 3, v57")
        A(f"v_add_u32 v57, {WQ}, v57")
        A("s_waitcnt vmcnt(0) lgkmcnt(0)")
        WP = 128
        if not opt.get("wolate"):
            self.wo_tr(WP)
            A("s_waitcnt lgkmcnt(0)")
        A("v_lshlrev_b32 v44, 16, v42")
        A("v_and_b32 v45, 0xffff0000, v42")
        A("v_mov_b32 v46, 0")
        A("v_mov_b32 v47, 0")
        A(f"v_lshlrev_b32 v28, 2, v1")
        A(f"v_add_u32 v28, {WST}, v28")
        A("s_mov_b32 s57, 14")
        c1 = -2.0 * 0.7978845608028654 * LOG2E
        A(f"s_mov_b32 s58, {f32(c1)}")
        A(f"s_mov_b32 s56, {f32(c1 * 0.044715)}")
        self.lab("L_gate")
        A("ds_read_b32 v48, v28")
        A("ds_read_b32 v49, v28 offset:4096")
        A("ds_read_b32 v50, v28 offset:8192")
        A("v_add_u32 v28, 256, v28")
        A("s_waitcnt lgkmcnt(0)")
        A("v_lshlrev_b32 v51, 16, v48")
        A("v_and_b32 v52, 0xffff0000, v48")
        A("v_lshlrev_b32 v53, 16, v49")
        A("v_and_b32 v54, 0xffff0000, v49")
        A("v_lshlrev_b32 v55, 16, v50")
        A("v_and_b32 v56, 0xffff0000, v50")
        U = [8, 9, 10, 11]; Z = [12, 13, 14, 15]
        combos = [(44, 51, 53, 55, 46), (44, 52, 54, 56, 46), (45, 51, 53, 55, 47), (45, 52, 54, 56, 47)]
        for k, (h, w1, b1, w2, acc) in enumerate(combos):
            A(f"v_mul_f32 v{U[k]}, v{h}, v{w1}")
        for k in range(4):
            self.bf16r(f"v{U[k]}")
        for k, (h, w1, b1, w2, acc) in enumerate(combos):
            A(f"v_add_f32 v{U[k]}, v{U[k]}, v{b1}")
        for k in range(4):
            self.bf16r(f"v{U[k]}")
        for k in range(4):
            A(f"v_mul_f32 v{Z[k]}, v{U[k]}, v{U[k]}")
        for k in range(4):
            A(f"v_mul_f32 v{Z[k]}, s56, v{Z[k]}")
        for k in range(4):
            A(f"v_add_f32 v{Z[k]}, s58, v{Z[k]}")
        for k in range(4):
            A(f"v_mul_f32 v{Z[k]}, v{Z[k]}, v{U[k]}")
        for k in range(4):
            A(f"v_exp_f32 v{Z[k]}, v{Z[k]}")
        self.nop(1)
        for k in range(4):
            A(f"v_add_f32 v{Z[k]}, 1.0, v{Z[k]}")
        for k in range(4):
            A(f"v_rcp_f32 v{Z[k]}, v{Z[k]}")
        self.nop(1)
        for k in range(4):
            A(f"v_mul_f32 v{U[k]}, v{U[k]}, v{Z[k]}")
        for k in range(4):
            self.bf16r(f"v{U[k]}")
        for k, (h, w1, b1, w2, acc) in enumerate(combos):
            A(f"v_fmac_f32 v{acc}, v{U[k]}, v{w2}")
        A("s_sub_u32 s57, s57, 1")
        A("s_cmp_lg_u32 s57, 0")
        A("s_cbranch_scc1 L_gate")
        A("s_waitcnt vmcnt(0)")
        self.allreduce64("add", "v46", "v16")
        self.allreduce64("add", "v47", "v16")
        A("v_lshlrev_b32 v41, 16, v41")
        for a in (46, 47):
            self.bf16r(f"v{a}")
            A(f"v_add_f32 v{a}, v{a}, v41")
            self.bf16r(f"v{a}")
            A(f"v_mul_f32 v16, s59, v{a}")
            A("v_exp_f32 v16, -v16")
            self.nop(1)
            A("v_add_f32 v16, 1.0, v16")
            A("v_rcp_f32 v17, v16")
            self.nop(1)
            A(f"v_mul_f32 v18, v{a}, v17")
            A(f"v_fma_f32 v19, -v18, v16, v{a}")
            A("v_fma_f32 v19, v19, v17, v18")
            A("v_cmp_gt_f32 vcc, 0x7f000000, v16")
            self.nop(2)
            A(f"v_cndmask_b32 v{a}, v18, v19, vcc")
            self.bf16r(f"v{a}")
        A("v_bfrev_b32 v16, 1")
        A("v_cmp_eq_u32 vcc, 0, v46")
        A("v_cmp_eq_u32 s[52:53], 0, v47")
        self.nop(2)
        A("v_cndmask_b32 v46, v46, v16, vcc")
        A("v_cndmask_b32 v47, v47, v16, s[52:53]")
        A("s_lshl_b32 s49, s51, 1")
        A(f"s_add_u32 s49, s49, {WS_G}")
        A("v_mov_b32 v28, s49")
        A("s_mov_b64 exec, 1")
        A("global_store_dwordx2 v28, v[46:47], s[40:41] sc1")
        A("s_mov_b64 exec, -1")
        self.ts(5)
        A(f"v_mov_b32 v28, {MLF}")
        A("v_and_b32 v29, 3, v1")
        A("v_lshlrev_b32 v29, 2, v29")
        A(f"v_add_u32 v29, {ML}, v29")
        self.spin_init()
        self.lab("L_mlw")
        A("ds_read_b128 v[4:7], v28")
        for w in range(4):
            A(f"ds_read_b32 v{8+w}, v29 offset:{32*w}")
            A(f"ds_read_b32 v{12+w}, v29 offset:{32*w+16}")
        A("s_waitcnt lgkmcnt(0)")
        A("v_and_b32 v4, v4, v5")
        A("v_and_b32 v6, v6, v7")
        A("v_and_b32 v4, v4, v6")
        A("s_nop 0")
        A("v_readfirstlane_b32 s57, v4")
        A("s_nop 3")
        A("s_cmp_lg_u32 s57, 0")
        A("s_cbranch_scc1 L_mld")
        self.spin_tail("L_mlw", "L_mld", 8)
        self.lab("L_mld")
        self.ts(6)
        A("v_max3_f32 v16, v8, v9, v10")
        A("v_max_f32 v16, v16, v11")
        for w in range(4):
            A(f"v_sub_f32 v{8+w}, v{8+w}, v16")
        for w in range(4):
            A(f"v_mul_f32 v{8+w}, s59, v{8+w}")
        for w in range(4):
            A(f"v_exp_f32 v{8+w}, v{8+w}")
        self.nop(1)
        A("v_mul_f32 v17, v8, v12")
        for w in range(1, 4):
            A(f"v_fmac_f32 v17, v{8+w}, v{12+w}")
        A("s_lshl_b32 s49, s47, 5")
        A(f"s_add_u32 s49, s49, {WS_ML}")
        A("v_lshlrev_b32 v28, 3, v1")
        A("v_add_u32 v28, s49, v28")
        A("v_mov_b32 v30, 1")
        A("s_mov_b64 exec, 15")
        A("global_store_dwordx2 v28, v[16:17], s[40:41] sc1")
        A("s_mov_b64 exec, -1")
        A("v_lshlrev_b32 v28, 5, v1")
        self.spin_init()
        A("s_mov_b64 exec, 0xff")
        self.lab("L_allw")
        A("global_load_dword v4, v28, s[38:39] sc1")
        A("s_waitcnt vmcnt(0)")
        A(f"v_cmp_le_u32 vcc, {0 if 'q' in str(opt.get('skip', '')).split('+') else 32}, v4")
        A("s_nop 1")
        A("s_cmp_eq_u64 vcc, exec")
        A("s_cbranch_scc1 L_alld")
        self.spin_tail("L_allw", "L_alld", 32)
        self.lab("L_alld")
        A("s_mov_b64 exec, -1")
        self.arrive_wait("ml", None, 4, opt.get("mlsleep", 16))
        self.ts(7)
        A("s_lshl_b32 s49, s42, 10")
        A(f"s_add_u32 s49, s49, {WS_ML}")
        A("v_lshlrev_b32 v28, 3, v1")
        A("v_add_u32 v28, s49, v28")
        A("global_load_dwordx2 v[8:9], v28, s[40:41] sc1")
        A("global_load_dwordx2 v[10:11], v28, s[40:41] offset:512 sc1")
        A("s_waitcnt vmcnt(0)")
        A("v_max_f32 v16, v8, v10")
        for r in (4, 8):
            self.nop(2)
            A(f"v_max_f32_dpp v16, v16, v16 row_ror:{r} row_mask:0xf bank_mask:0xf")
        self.rows_reduce("max", "v16", "v17")
        A("v_sub_f32 v8, v8, v16")
        A("v_sub_f32 v10, v10, v16")
        A("v_mul_f32 v8, s59, v8")
        A("v_mul_f32 v10, s59, v10")
        A("v_exp_f32 v8, v8")
        A("v_exp_f32 v10, v10")
        self.nop(1)
        A("v_mul_f32 v17, v8, v9")
        A("v_fmac_f32 v17, v10, v11")
        for r in (4, 8):
            self.nop(2)
            A(f"v_add_f32_dpp v17, v17, v17 row_ror:{r} row_mask:0xf bank_mask:0xf")
        self.rows_reduce("add", "v17", "v18")
        A("v_rcp_f32 v18, v17")
        self.nop(1)
        A("v_fma_f32 v19, -v17, v18, 1.0")
        A("v_fmac_f32 v18, v19, v18")
        A("v_lshlrev_b32 v28, 2, v1")
        A(f"v_add_u32 v28, {FIN}, v28")
        A(f"v_mov_b32 v29, {FINF}")
        A("s_mov_b64 exec, 15")
        A("ds_write_b32 v28, v16")
        A("ds_write_b32 v28, v18 offset:16")
        A("s_waitcnt lgkmcnt(0)")
        A("s_mov_b64 exec, 1")
        A("ds_write_b32 v29, v30")
        A("s_mov_b64 exec, -1")
        if opt.get("wolate"):
            A(f"v_mov_b32 v28, {WOF}")
            self.spin_init()
            self.lab("L_wow")
            A("ds_read_b32 v4, v28")
            A("s_waitcnt lgkmcnt(0)")
            A("v_readfirstlane_b32 s57, v4")
            A("s_nop 3")
            A("s_cmp_lg_u32 s57, 0")
            A("s_cbranch_scc1 L_wod")
            self.spin_tail("L_wow", "L_wod", 4)
            self.lab("L_wod")
        A("v_lshrrev_b32 v33, 4, v1")
        A("v_and_b32 v34, 15, v1")
        A("v_lshlrev_b32 v28, 2, v1")
        A(f"v_add_u32 v29, {PART}, v28")
        A("v_cmp_eq_u32 s[68:69], 8, v34")
        A("v_cmp_eq_u32 s[70:71], 7, v34")
        A("v_min_u32 v35, 8, v34")
        A("v_subrev_u32 v36, 8, v34")
        self.nop(1)
        A("v_cndmask_b32 v36, v36, 8, s[70:71]")
        A("s_lshl_b32 s49, s42, 11")
        A(f"s_add_u32 s49, s49, {WS_O}")
        A("v_add_u32 v32, s49, v28")
        A("v_lshlrev_b32 v31, 5, v33")
        A("s_lshl_b32 s56, s61, 9")
        A("s_add_u32 s49, s49, s56")
        A("v_add_u32 v31, s49, v31")
        A("s_lshl_b32 s49, s60, 9")
        A(f"s_add_u32 s49, s49, {WS_SACC}")
        A("v_lshlrev_b32 v37, 7, v33")
        A("v_lshl_add_u32 v49, v35, 2, v37")
        A("v_add_u32 v49, s49, v49")
        A("v_lshl_add_u32 v50, v36, 2, v37")
        A("v_add_u32 v50, s49, v50")
        A("v_cmp_eq_u32 s[52:53], 1, v33")
        A("v_cmp_eq_u32 s[54:55], 2, v33")
        A("v_cmp_eq_u32 s[44:45], 3, v33")
        A("v_cmp_gt_u32 s[72:73], 8, v34")
        A("s_lshl_b32 s49, s60, 8")
        A(f"s_add_u32 s49, s49, {WS_G}")
        A("v_lshlrev_b32 v36, 2, v1")
        A("v_add_u32 v36, s49, v36")
        self.spin_init()
        self.lab("L_gw")
        A("global_load_dword v41, v36, s[40:41] sc1")
        A("s_waitcnt vmcnt(0)")
        A("v_cmp_eq_u32 vcc, 0, v41")
        A("s_nop 1")
        A("s_cmp_eq_u64 vcc, 0")
        A("s_cbranch_scc1 L_gd")
        self.spin_tail("L_gw", "L_gd", 16)
        self.lab("L_gd")
        A("v_lshlrev_b32 v40, 16, v40")
        self.ts(8)
        A("s_waitcnt vmcnt(0) lgkmcnt(0)")
        if opt.get("wolate"):
            A("s_mov_b64 s[76:77], s[52:53]")
            A("s_mov_b64 s[78:79], s[54:55]")
            A("v_mov_b32 v58, v29")
            self.wo_dma()
            A("v_mov_b32 v29, v58")
            A("s_mov_b64 s[52:53], s[76:77]")
            A("s_mov_b64 s[54:55], s[78:79]")
        A("s_barrier")
        self.ts(9)
        PR = 192
        for k in range(8):
            for w in range(4):
                A(f"ds_read_b32 v{PR+4*k+w}, v29 offset:{2048*w + 256*k}")
        for k in range(8):
            A(f"s_waitcnt lgkmcnt({min(15, 4*(7-k))})")
            A(f"v_add_f32 v{PR+4*k}, v{PR+4*k}, v{PR+4*k+1}")
            A(f"v_add_f32 v{PR+4*k+2}, v{PR+4*k+2}, v{PR+4*k+3}")
            A(f"v_add_f32 v{PR+4*k}, v{PR+4*k}, v{PR+4*k+2}")
            A(f"global_atomic_add_f32 v32, v{PR+4*k}, s[40:41] offset:{256*k} sc1")
        self.ts(10)
        if opt.get("wolate"):
            A("s_waitcnt vmcnt(8)")
            self.wo_tr(WP)
        self.arrive_wait("fin", "fin", 8, opt.get("fsleep", 1))
        self.ts(11)
        OR = 64; OB = 96; SD = 8
        for ks in range(4):
            for hh in range(2):
                r = OR + 8 * ks + 4 * hh
                A(f"global_load_dwordx4 v[{r}:{r+3}], v31, s[40:41] offset:{128*ks + 16*hh} sc1")
        for ks in range(4):
            A(f"s_waitcnt vmcnt({6 - 2*ks}) lgkmcnt(0)")
            for k in range(4):
                A(f"v_cvt_pk_bf16_f32 v{OB+4*ks+k}, v{OR+8*ks+2*k}, v{OR+8*ks+2*k+1}")
            self.nop(2)
            for ct in range(4):
                r = WP + 16 * ks + 4 * ct
                d = SD + 4 * ct
                c = "0" if ks == 0 else f"v[{d}:{d+3}]"
                A(f"v_mfma_f32_16x16x32_bf16 v[{d}:{d+3}], v[{OB+4*ks}:{OB+4*ks+3}], v[{r}:{r+3}], {c}")
        self.nop(6)
        A(f"v_cndmask_b32 v{SD}, v{SD}, v{SD+4}, s[52:53]")
        A(f"v_cndmask_b32 v{SD}, v{SD}, v{SD+8}, s[54:55]")
        A(f"v_cndmask_b32 v{SD}, v{SD}, v{SD+12}, s[44:45]")
        A(f"v_cndmask_b32 v9, v{SD}, 1.0, s[68:69]")
        A(f"v_cndmask_b32 v10, v{SD}, 1.0, s[70:71]")
        A("s_mov_b32 exec_lo, 0x01ff01ff")
        A("s_mov_b32 exec_hi, 0x01ff01ff")
        A("global_atomic_add_f32 v12, v49, v9, s[40:41] sc0 sc1")
        A("s_mov_b32 exec_lo, 0xff80ff80")
        A("s_mov_b32 exec_hi, 0xff80ff80")
        A("global_atomic_add_f32 v13, v50, v10, s[40:41] offset:64 sc0 sc1")
        A("s_mov_b64 exec, -1")
        A("s_waitcnt vmcnt(0)")
        self.ts(14)
        A("v_mov_b32_dpp v14, v12 row_newbcast:8 row_mask:0xf bank_mask:0xf")
        A("v_mov_b32_dpp v15, v13 row_newbcast:7 row_mask:0xf bank_mask:0xf")
        A("v_cndmask_b32 v12, v13, v12, s[72:73]")
        A("v_cndmask_b32 v14, v15, v14, s[72:73]")
        A(f"v_add_f32 v8, v{SD}, v12")
        A("v_cmp_eq_f32 vcc, 0x41f80000, v14")
        self.bf16r("v8")
        A("v_mul_f32 v8, v8, v41")
        self.bf16r("v8")
        A("v_add_f32 v8, v8, v40")
        A("v_cvt_pk_bf16_f32 v8, v8, v8")
        A("s_and_b64 exec, exec, vcc")
        A("s_cbranch_scc0 L_end")
        A("global_store_short v43, v8, s[36:37]")
        A("s_mov_b64 exec, -1")
        self.ts(12)


if __name__ == "__main__":
    out = sys.argv[1]
    opt = {}
    for a in sys.argv[2:]:
        k, _, v = a.partition("=")
        opt[k] = (int(v) if v.lstrip("-").isdigit() else v) if v else True
    open(out, "w").write(G3(**opt).gen())
```

```python
import sys, struct
from gen import G, NAME, HEADER, f32, LOG2E, SCALE
from gen2 import G2
import gen
_ts0 = gen.G.ts
def _ts(self, slot, sreg="s[74:75]", vt=("v250", "v251", "v252")):
    return _ts0(self, slot, sreg, vt)
gen.G.ts = _ts

RING = 0
WQ = 131072
PART = 147456
WST = 147456
XN = 159744
QS = 160768
ML = 161792
MLF = ML + 128
FIN = ML + 160
FINF = ML + 192
WOF = ML + 196
LDS_BYTES = 162304

WS_Q = 0
WS_ML = 8192
WS_O = 16384
WS_SYNC = 32768
WS_GFIN = 32768 + 4096
WS_TS = 65536
WS_WT = 1 << 20
WS_QP = 786432


WS_SACC = 40960
WS_G = 49152
WS_O2 = 917504
WS_MB = 851968


class G3(G2):
    def gen(self):
        A = self.A
        opt = self.opt
        NT = opt.get("nt", "nt")
        self.L.append(HEADER.rstrip("\n"))
        self.L.append(f"; @launch grid=(256,1,1) block=(320,1,1) lds={LDS_BYTES}")
        self.L.append('.amdgcn_target "amdgcn-amd-amdhsa--gfx950"')
        self.L.append(".text")
        self.L.append(f".globl {NAME}_kernel")
        self.L.append(".p2align 8")
        self.L.append(f".type {NAME}_kernel,@function")
        self.lab(f"{NAME}_kernel")
        A("s_cmp_ge_u32 s2, 256")
        A("s_cbranch_scc1 L_end")
        if opt.get("ts") or opt.get("span"):
            A("s_memrealtime s[66:67]")
        A("s_load_dwordx16 s[16:31], s[0:1], 0")
        A("s_load_dwordx8 s[32:39], s[0:1], 64")
        A("s_load_dwordx2 s[40:41], s[0:1], 96")
        A("v_lshrrev_b32 v1, 6, v0")
        if opt.get("imb", 2) or opt.get("pair"):
            A("s_and_b32 s42, s2, 6")
            A("v_readfirstlane_b32 s3, v1")
            A("s_bfe_u32 s43, s2, 0x10003")
            A("s_or_b32 s42, s42, s43")
            A("s_lshr_b32 s43, s2, 4")
            A("s_lshl_b32 s43, s43, 1")
            A("s_and_b32 s44, s2, 1")
            A("s_or_b32 s43, s43, s44")
        else:
            A("s_and_b32 s42, s2, 7")
            A("v_readfirstlane_b32 s3, v1")
            A("s_lshr_b32 s43, s2, 3")
        if opt.get("hlast"):
            A("s_nop 2")
            A("s_add_u32 s3, s3, 1")
            A("s_cmp_eq_u32 s3, 5")
            A("s_cselect_b32 s3, 0, s3")
        A("v_and_b32 v1, 63, v0")
        A("s_lshl_b32 s47, s42, 5")
        A("s_add_u32 s47, s47, s43")
        if opt.get("ts"):
            A("s_lshl_b32 s62, s2, 3")
            A("s_add_u32 s62, s62, s3")
            A("s_cmp_eq_u32 s3, 0")
            A("s_cselect_b32 s63, 0, 3")
            A("s_add_u32 s62, s62, s63")
            A("s_lshl_b32 s62, s62, 8")
            A(f"s_add_u32 s62, s62, {WS_TS}")
        A("s_cmp_eq_u32 s3, 0")
        A("s_cbranch_scc1 L_helper")
        self.stream(NT)
        self.lab("L_helper")
        self.helper()
        self.lab("L_end")
        A("s_endpgm")
        self.L.append('.section .rodata,"a"')
        self.L.append(".p2align 6")
        self.L.append(f".amdhsa_kernel {NAME}_kernel")
        for s in ("next_free_vgpr 256", "next_free_sgpr 80", "accum_offset 256", "group_segment_fixed_size 0",
                  "kernarg_size 104", "user_sgpr_count 2", "user_sgpr_kernarg_segment_ptr 1",
                  "system_sgpr_workgroup_id_x 1", "float_denorm_mode_32 3"):
            self.L.append("  .amdhsa_" + s)
        self.L.append(".end_amdhsa_kernel")
        return "\n".join(self.L) + "\n"

    def ts(self, slot, *a, **k):
        if self.opt.get("ts") == "end" and slot != 12:
            return
        return G2.ts(self, slot, *a, **k)

    def sts(self, k):
        if not self.opt.get("ts"):
            return
        self.A(f"s_memrealtime s[{68+2*k}:{69+2*k}]")

    def sts_flush(self, n):
        if not self.opt.get("ts"):
            return
        A = self.A
        A("s_waitcnt lgkmcnt(0)")
        A("v_mov_b32 v26, s62")
        A("s_mov_b64 exec, 1")
        for k in range(n):
            A(f"v_mov_b32 v24, s{68+2*k}")
            A(f"v_mov_b32 v25, s{69+2*k}")
            A(f"global_store_dwordx2 v26, v[24:25], s[40:41] offset:{8*k}")
            A("s_nop 1")
        A("v_mov_b32 v24, s66")
        A("v_mov_b32 v25, s67")
        A(f"global_store_dwordx2 v26, v[24:25], s[40:41] offset:{8*15}")
        A("s_mov_b64 exec, -1")

    def stream(self, NT):
        A = self.A
        opt = self.opt
        D = opt.get("depth", 8)
        E = opt.get("imb", 2)
        NC = 32 - E
        VOFF = 2; KRD = 6; VRD = 10; MSK = 18
        QV = 24; BQT = 40; DA = 56
        NB = opt.get("nb", 10)
        SP = 64; QT = 84; VST = 96; BT = 128; OA = 144; SC = 176
        BUF = [96 + 16 * p for p in range(10)]
        D0 = opt.get("depth0", D)
        n_d0 = opt.get("nd0", 0)
        st = {"issued": 0, "NP": 32 - E}
        A("s_sub_u32 s3, s3, 1")
        A("v_lshrrev_b32 v22, 4, v1")
        A("v_and_b32 v23, 15, v1")
        for q in range(4):
            c = 8 * (q & 1) + (q >> 1)
            A(f"v_lshl_or_b32 v{VOFF+q}, v22, 1, {c}")
            A(f"v_xor_b32 v{VOFF+q}, v{VOFF+q}, v23")
            A(f"v_lshlrev_b32 v{VOFF+q}, 4, v{VOFF+q}")
            A(f"v_lshl_or_b32 v{VOFF+q}, v22, 8, v{VOFF+q}")
        A("s_lshl_b32 s48, s3, 15")
        A("s_lshl_b32 s49, s43, 2")
        A("s_add_u32 s49, s49, s3")
        A("s_lshl_b32 s49, s49, 12")
        A("s_lshr_b32 s60, s43, 1")
        A("s_lshl_b32 s60, s60, 2")
        A("s_add_u32 s60, s60, s3")
        A("s_lshl_b32 s60, s60, 12")
        A("s_lshl_b32 s51, s42, 24")
        A("s_waitcnt lgkmcnt(0)")
        A("s_add_u32 s44, s18, s51")
        A("s_addc_u32 s45, s19, 0")
        A("s_and_b32 s45, s45, 0xffff")
        A(f"s_mov_b32 s46, {1 << 24}")
        A("s_mov_b32 s47, 0x20000")
        A("s_add_u32 s52, s20, s51")
        A("s_addc_u32 s53, s21, 0")
        A("s_and_b32 s53, s53, 0xffff")
        A(f"s_mov_b32 s54, {1 << 24}")
        A("s_mov_b32 s55, 0x20000")

        WF = opt.get("wfirst", 0)

        def pace():
            i = st["issued"]
            if i >= 2 * st["NP"] or st.get("paced") == i:
                return
            dd = D0 if i < n_d0 else D
            A(f"s_waitcnt vmcnt({dd-4})")
            st["paced"] = i

        def refill(wait=True):
            i = st["issued"]
            NP = st["NP"]
            if i >= 2 * NP:
                return
            if st.get("paced") == i:
                wait = False
            p = i % NP
            srd = "s[44:47]" if i < NP else "s[52:55]"
            if p < NC:
                A(f"s_add_u32 s56, s49, {p * 524288}")
            else:
                A(f"s_add_u32 s56, s60, {NC * 524288 + (p - NC) * 262144}")
            A(f"s_add_u32 m0, s48, {(i % 8) * 4096}")
            if wait:
                dd = D0 if i < n_d0 else D
                A(f"s_waitcnt vmcnt({dd-4})")
            else:
                A("s_nop 0")
            for q in range(4):
                A(f"buffer_load_dwordx4 v{VOFF+q}, {srd}, s56 offen offset:{q*1024} {NT} lds")
            st["issued"] += 1

        n0 = (D0 if n_d0 else D) // 4
        for pp in range(n0):
            refill(wait=False)
        self.sts(0)
        A("v_and_b32 v24, 7, v23")
        A("v_lshlrev_b32 v24, 1, v24")
        A("v_lshrrev_b32 v25, 3, v23")
        A("v_or_b32 v24, v24, v25")
        A("v_lshlrev_b32 v25, 8, v23")
        A("v_add_u32 v25, s48, v25")
        for u in range(4):
            A(f"v_lshl_or_b32 v26, v22, 2, {u}")
            A("v_xor_b32 v26, v26, v24")
            A(f"v_lshl_add_u32 v{KRD+u}, v26, 4, v25")
        A("v_lshrrev_b32 v26, 2, v1")
        A("v_and_b32 v24, 7, v26")
        A("v_lshlrev_b32 v24, 1, v24")
        A("v_lshrrev_b32 v25, 3, v26")
        A("v_or_b32 v24, v24, v25")
        A("v_bfe_u32 v27, v1, 1, 1")
        A("v_xor_b32 v24, v24, v27")
        A("v_and_b32 v27, 1, v1")
        A("v_lshlrev_b32 v27, 3, v27")
        A("v_lshl_add_u32 v25, v26, 8, v27")
        A("v_add_u32 v25, s48, v25")
        for e in range(8):
            A(f"v_xor_b32 v26, {2*e}, v24")
            A(f"v_lshl_add_u32 v{VRD+e}, v26, 4, v25")
        A("v_lshrrev_b32 v26, 2, v23")
        for t in range(4):
            A(f"v_cmp_eq_u32 vcc, {t}, v26")
            self.nop(2)
            A(f"v_cndmask_b32 v{MSK+t}, 0, -1, vcc")
        A("v_and_b32 v26, 3, v1")
        A("v_lshlrev_b32 v26, 8, v26")
        A("v_lshl_add_u32 v26, v22, 6, v26")
        A(f"v_add_u32 v23, {QS}, v26")
        A(f"s_mov_b32 s58, {f32(SCALE)}")
        A(f"s_mov_b32 s59, {f32(LOG2E)}")
        A("s_mov_b32 s61, 0xff80ff80")
        for pp in range(n0, 8):
            refill()

        def kcopy(p):
            if WF:
                pace()
            for u in range(4):
                r = BUF[p % NB] + 4 * u
                A(f"ds_read_b128 v[{r}:{r+3}], v{KRD+u} offset:{(p % 8) * 4096}")
            A("s_waitcnt lgkmcnt(0)")
            refill()

        def vcopy(p, tag):
            NP = st["NP"]
            i = NP + p
            rem = 2 * NP - 1 - i
            if rem == 0:
                self.fin_wait(tag)
            if st["issued"] >= 2 * NP and rem * 4 < D:
                A(f"s_waitcnt vmcnt({rem * 4})")
            if WF:
                pace()
            for e in range(8):
                r = VST + 4 * e + 2 * (p & 1)
                A(f"ds_read_b64_tr_b16 v[{r}:{r+1}], v{VRD+e} offset:{(i % 8) * 4096}")
            A("s_waitcnt lgkmcnt(0)")
            refill()

        for p in range(NB):
            kcopy(p)
        assert st["issued"] <= NC
        self.sts(5)
        A("s_barrier")
        self.sts(1)
        for u in range(4):
            A(f"ds_read_b128 v[{QV+4*u}:{QV+4*u+3}], v23 offset:{16*u}")
        if E:
            A("s_bitcmp1_b32 s43, 0")
            A("s_cbranch_scc1 L_slow")

        def bqt(t):
            for k in range(16):
                A(f"v_and_b32 v{BQT+k}, v{QV+k}, v{MSK+t}")

        def kmfma(pp, src):
            t, hf = pp >> 1, pp & 1
            d = DA + 4 * hf
            for u in range(4):
                c = "0" if (t == 0 and u == 0) else f"v[{d}:{d+3}]"
                r = src + 4 * u
                A(f"v_mfma_f32_16x16x32_bf16 v[{d}:{d+3}], v[{r}:{r+3}], v[{BQT+4*u}:{BQT+4*u+3}], {c}")

        def kpost(blk, nvalid):
            self.nop(6)
            for k in range(4):
                A(f"v_cvt_pk_bf16_f32 v{QT+k}, v{DA+2*k}, v{DA+2*k+1}")
            for k in range(4):
                A(f"v_lshlrev_b32 v{QT+4+2*k}, 16, v{QT+k}")
                A(f"v_and_b32 v{QT+5+2*k}, 0xffff0000, v{QT+k}")
            for k in range(8):
                A(f"v_mul_f32 v{QT+4+k}, s58, v{QT+4+k}")
            for k in range(4):
                A(f"v_cvt_pk_bf16_f32 v{SP+4*blk+k}, v{QT+4+2*k}, v{QT+5+2*k}")
            if nvalid < 4:
                A(f"v_mov_b32 v{QT}, v{MSK}")
                for t in range(1, nvalid):
                    A(f"v_or_b32 v{QT}, v{QT}, v{MSK+t}")
                for k in range(4):
                    A(f"v_bfi_b32 v{SP+4*blk+k}, v{QT}, v{SP+4*blk+k}, s61")

        issued0 = st["issued"]

        def variant(NP, tag):
            st["NP"] = NP
            st["issued"] = issued0
            st["paced"] = -1
            A("s_waitcnt lgkmcnt(0)")
            c, k = 0, NB
            while c < NP:
                bqt((c % 8) >> 1)
                while k < c + 2:
                    kcopy(k); k += 1
                if WF >= 2 and k < NP:
                    pace()
                self.nop(2)
                kmfma(c % 8, BUF[c % NB])
                kmfma((c + 1) % 8, BUF[(c + 1) % NB])
                c += 2
                if k < NP:
                    kcopy(k); k += 1
                if c % 8 == 0 or c == NP:
                    kpost((c - 1) // 8, ((c - 1) % 8) // 2 + 1)
            self.sts(2)
            nblk = (NP + 7) // 8
            n = 8 * nblk
            for k in range(4 * nblk):
                A(f"v_lshlrev_b32 v{SC+2*k}, 16, v{SP+k}")
                A(f"v_and_b32 v{SC+2*k+1}, 0xffff0000, v{SP+k}")
            vcopy(0, tag)
            A(f"v_max_f32 v24, v{SC}, v{SC+1}")
            A(f"v_max_f32 v25, v{SC+2}, v{SC+3}")
            for k in range(4, n, 4):
                A(f"v_max3_f32 v24, v24, v{SC+k}, v{SC+k+1}")
                A(f"v_max3_f32 v25, v25, v{SC+k+2}, v{SC+k+3}")
            A("v_max_f32 v24, v24, v25")
            for r in (4, 8):
                self.nop(2)
                A(f"v_max_f32_dpp v24, v24, v24 row_ror:{r} row_mask:0xf bank_mask:0xf")
            self.rows_reduce("max", "v24", "v25")
            for k in range(n):
                A(f"v_sub_f32 v{SC+k}, v{SC+k}, v24")
            for k in range(n):
                A(f"v_mul_f32 v{SC+k}, s59, v{SC+k}")
            for k in range(n):
                A(f"v_exp_f32 v{SC+k}, v{SC+k}")
            vcopy(1, tag)
            for k in range(4 * nblk):
                A(f"v_cvt_pk_bf16_f32 v{SP+k}, v{SC+2*k}, v{SC+2*k+1}")
            m = n
            while m > 1:
                h = (m + 1) // 2
                for k in range(m - h):
                    A(f"v_add_f32 v{SC+k}, v{SC+k}, v{SC+k+h}")
                m = h
            A(f"v_mov_b32 v25, v{SC}")
            for r in (4, 8):
                self.nop(2)
                A(f"v_add_f32_dpp v25, v25, v25 row_ror:{r} row_mask:0xf bank_mask:0xf")
            self.rows_reduce("add", "v25", "v26")
            A("v_mov_b32 v22, v24")
            A("s_lshl_b32 s57, s3, 5")
            A(f"s_add_u32 s57, s57, {ML}")
            A("v_lshl_add_u32 v26, v1, 2, s57")
            A("s_lshl_b32 s57, s3, 2")
            A(f"s_add_u32 s57, s57, {MLF}")
            A("v_mov_b32 v27, s57")
            A("v_mov_b32 v28, 1")
            A("s_mov_b64 exec, 15")
            A("ds_write_b32 v26, v24")
            A("ds_write_b32 v26, v25 offset:16")
            A("s_waitcnt lgkmcnt(0)")
            A("s_mov_b64 exec, 1")
            A("ds_write_b32 v27, v28")
            A("s_mov_b64 exec, -1")
            NU = NP // 2

            def bt(un):
                for k in range(4):
                    A(f"v_and_b32 v{BT+4*(un%2)+k}, v{SP+4*(un//4)+k}, v{MSK+un%4}")
            bt(0)
            self.nop(2)
            for un in range(NU):
                bb = BT + 4 * (un % 2)
                if WF >= 2:
                    pace()
                for e in range(8):
                    o = OA + 4 * e
                    cc = "0" if un == 0 else f"v[{o}:{o+3}]"
                    A(f"v_mfma_f32_16x16x32_bf16 v[{o}:{o+3}], v[{VST+4*e}:{VST+4*e+3}], v[{bb}:{bb+3}], {cc}")
                if opt.get("wolate") and un == NU - opt.get("wolate"):
                    A(f"v_mov_b32 v27, {WOF}")
                    A("v_mov_b32 v28, 1")
                    A("ds_write_b32 v27, v28")
                if un + 1 < NU:
                    bt(un + 1)
                    vcopy(2 * un + 2, tag)
                    vcopy(2 * un + 3, tag)
            assert st["issued"] == 2 * NP

        variant(32 + E, "f")
        if E:
            A("s_branch L_sepi")
            self.lab("L_slow")
            variant(32 - E, "s")
            self.lab("L_sepi")
        self.sts(3)
        self.nop(4)
        for k in range(32):
            A(f"v_mul_f32 v{OA+k}, v24, v{OA+k}")
        for r in (4, 8):
            for k in range(32):
                A(f"v_add_f32_dpp v{OA+k}, v{OA+k}, v{OA+k} row_ror:{r} row_mask:0xf bank_mask:0xf")
        A("s_mov_b32 exec_lo, 0x000f000f")
        A("s_mov_b32 exec_hi, 0x000f000f")
        for e in range(8):
            A(f"ds_write_b128 v26, v[{OA+4*e}:{OA+4*e+3}] offset:{64*e}")
        A("s_mov_b64 exec, -1")
        A("s_waitcnt lgkmcnt(0)")
        A("s_barrier")
        self.sts(4)
        self.sts_flush(6)
        A("s_endpgm")

    def wo_dma(self):
        A = self.A
        opt = self.opt
        A("s_mov_b32 s52, s24")
        A("s_and_b32 s53, s25, 0xffff")
        A(f"s_mov_b32 s54, {4 << 20}")
        A("s_mov_b32 s55, 0x20000")
        A("v_lshrrev_b32 v28, 3, v1")
        A("v_lshlrev_b32 v28, 10, v28")
        A("v_and_b32 v29, 7, v1")
        A("v_lshl_or_b32 v28, v29, 4, v28")
        A("s_lshl_b32 s56, s42, 19")
        A("s_lshl_b32 s49, s61, 17")
        A("s_add_u32 s56, s56, s49")
        A("s_lshl_b32 s49, s60, 7")
        A("s_add_u32 s56, s56, s49")
        st = len(self.L)
        for k in range(16):
            A(f"s_mov_b32 m0, {WQ + 1024*k}")
            A("s_nop 0")
            A(f"buffer_load_dwordx4 v28, s[52:55], s56 offen nt lds")
            A("s_add_u32 s56, s56, 8192")
        self.skipmem("wo", st)

    def wo_tr(self, WP):
        A = self.A
        for ks in range(4):
            for ct in range(4):
                r = WP + 16 * ks + 4 * ct
                A(f"ds_read_b64_tr_b16 v[{r}:{r+1}], v57 offset:{4096*ks + 32*ct}")
                A(f"ds_read_b64_tr_b16 v[{r+2}:{r+3}], v57 offset:{4096*ks + 32*ct + 512}")

    def skipmem(self, tag, start):
        sk = str(self.opt.get("skip", "")).split("+")
        if tag not in sk:
            return
        for i in range(start, len(self.L)):
            t = self.L[i].strip()
            if (t.startswith("global_") or t.startswith("buffer_")) and "v252" not in t:
                self.L[i] = "  s_nop 0"

    def arrive_wait(self, name, dbg_off, mb_off, sleep):
        if name in str(self.opt.get("skip", "")).split("+"):
            self.A("s_lshl_b32 s49, s42, 9")
            self.A(f"s_add_u32 s49, s49, {WS_SYNC}")
            self.A("v_mov_b32 v51, s49")
            self.spin_init()
            return
        self.arrive_wait2(name, dbg_off, mb_off, sleep)

    def arrive_wait2(self, name, dbg_off, mb_off, sleep):
        A = self.A
        if dbg_off is None:
            A("s_lshl_b32 s49, s42, 9")
            A(f"s_add_u32 s49, s49, {WS_SYNC}")
            A("v_mov_b32 v51, s49")
        A("s_waitcnt vmcnt(0)")
        A("s_mov_b64 exec, 1")
        if dbg_off == "fin":
            A(f"global_atomic_add v4, v51, v30, s[40:41] offset:4 sc0 sc1")
        elif dbg_off is None:
            A(f"global_atomic_add v4, v51, v30, s[40:41] sc0 sc1")
        else:
            A(f"global_atomic_add v4, v3, v30, s[38:39] offset:{dbg_off} sc0 sc1")
        self.spin_init()
        A("s_waitcnt vmcnt(0)")
        A("v_readfirstlane_b32 s57, v4")
        A("s_nop 3")
        A("s_and_b32 s57, s57, 31")
        A("s_cmp_lg_u32 s57, 31")
        A(f"s_cbranch_scc1 L_aw_{name}")
        A("s_mov_b32 exec_lo, -1")
        A(f"global_store_dword v38, v30, s[40:41] offset:{mb_off} sc1")
        A(f"s_branch L_ad_{name}")
        self.lab(f"L_aw_{name}")
        A(f"global_load_dword v4, v39, s[40:41] offset:{mb_off} sc1")
        A("s_waitcnt vmcnt(0)")
        A("v_readfirstlane_b32 s57, v4")
        A("s_nop 3")
        A("s_cmp_lg_u32 s57, 0")
        A(f"s_cbranch_scc1 L_ad_{name}")
        self.spin_tail(f"L_aw_{name}", f"L_ad_{name}", sleep)
        self.lab(f"L_ad_{name}")
        A("s_mov_b64 exec, -1")

    def fin_wait(self, tag=''):
        A = self.A
        A(f"v_mov_b32 v27, {FINF}")
        A("v_and_b32 v26, 3, v1")
        A(f"v_lshlrev_b32 v26, 2, v26")
        A(f"v_add_u32 v26, {FIN}, v26")
        self.spin_init()
        self.lab("L_finw" + tag)
        A("ds_read_b32 v28, v27")
        A("ds_read_b32 v24, v26")
        A("ds_read_b32 v25, v26 offset:16")
        A("s_waitcnt lgkmcnt(0)")
        A("v_readfirstlane_b32 s57, v28")
        A("s_nop 3")
        A("s_cmp_lg_u32 s57, 0")
        A("s_cbranch_scc1 L_find" + tag)
        self.spin_tail("L_finw" + tag, "L_find" + tag, 1)
        self.lab("L_find" + tag)
        A("v_sub_f32 v24, v22, v24")
        A("v_mul_f32 v24, s59, v24")
        A("v_exp_f32 v24, v24")
        self.nop(1)
        A("v_mul_f32 v24, v24, v25")
        A("v_and_b32 v26, 3, v1")
        A("v_lshlrev_b32 v26, 9, v26")
        A("v_lshrrev_b32 v27, 4, v1")
        A("v_lshl_add_u32 v26, v27, 4, v26")
        A("s_lshl_b32 s57, s3, 11")
        A(f"s_add_u32 s57, s57, {PART}")
        A("v_add_u32 v26, s57, v26")

    def helper(self):
        A = self.A
        opt = self.opt
        X = 8; T = 16; XP = 24
        tsn = (1 if opt.get("ts") else 0) if opt.get("ts") != "end" else 0
        if opt.get("nohelp"):
            A("s_waitcnt lgkmcnt(0)")
            self.ts_entry()
            A(f"v_mov_b32 v29, {FINF}")
            A("v_mov_b32 v30, 1")
            A("ds_write_b32 v29, v30")
            A("s_waitcnt lgkmcnt(0)")
            A("s_barrier")
            A("s_barrier")
            A("s_endpgm")
        A("v_lshlrev_b32 v2, 4, v1")
        A("s_lshr_b32 s60, s43, 2")
        A("s_and_b32 s61, s43, 3")
        A("s_lshl_b32 s51, s60, 7")
        A("s_lshl_b32 s49, s42, 4")
        A("s_add_u32 s51, s51, s49")
        A("s_lshl_b32 s49, s61, 2")
        A("s_add_u32 s51, s51, s49")
        A("v_lshrrev_b32 v3, 3, v1")
        A("v_lshlrev_b32 v3, 13, v3")
        A("v_and_b32 v4, 7, v1")
        A("v_lshl_or_b32 v3, v4, 4, v3")
        A("s_lshl_b32 s48, s42, 10")
        A("s_lshl_b32 s49, s43, 5")
        A("s_add_u32 s48, s48, s49")
        A("s_and_b32 s44, s43, 7")
        A("s_lshr_b32 s45, s43, 3")
        A("s_lshl_b32 s56, s45, 20")
        A("s_lshl_b32 s49, s42, 10")
        A("s_add_u32 s56, s56, s49")
        A("s_lshl_b32 s49, s44, 7")
        A("s_add_u32 s56, s56, s49")
        A("s_waitcnt lgkmcnt(0)")
        A("global_load_dwordx4 v[24:27], v2, s[16:17]")
        A("s_mov_b32 s52, s22")
        A("s_and_b32 s53, s23, 0xffff")
        A(f"s_mov_b32 s54, {4 << 20}")
        A("s_mov_b32 s55, 0x20000")
        st = len(self.L)
        for k in range(16):
            A(f"s_mov_b32 m0, {WQ + 1024*k}")
            A("s_nop 0")
            A(f"buffer_load_dwordx4 v3, s[52:55], s56 offen nt lds")
            A("s_add_u32 s56, s56, 65536")
        self.skipmem("wq", st)
        if opt.get("hfirst"):
            A("s_barrier")
        if opt.get("ts") != "end":
            self.ts_entry()
        self.ts(0)
        A("s_lshl_b32 s49, s47, 6")
        A(f"s_add_u32 s49, s49, {WS_O}")
        A("v_add_u32 v28, s49, v2")
        for i in range(4):
            A(f"v_mov_b32 v{32+i}, 0")
        A("s_mov_b64 exec, 15")
        A("global_store_dwordx4 v28, v[32:35], s[40:41] sc1")
        A("s_lshl_b32 s49, s51, 1")
        A(f"s_add_u32 s49, s49, {WS_G}")
        A("v_mov_b32 v28, s49")
        A("s_mov_b64 exec, 1")
        A("global_store_dwordx2 v28, v[32:33], s[40:41] sc1")
        A("s_mov_b64 exec, -1")
        A("s_lshl_b32 s46, s47, 7")
        A(f"s_add_u32 s46, s46, {WS_MB}")
        A("v_add_u32 v28, s46, v2")
        A("s_lshl_b32 s49, s42, 9")
        A(f"s_add_u32 s49, s49, {WS_SYNC}")
        A("v_mov_b32 v29, s49")
        A("v_cmp_eq_u32 vcc, 4, v1")
        self.nop(2)
        A("v_cndmask_b32 v28, v28, v29, vcc")
        A("s_cmp_eq_u32 s43, 0")
        A("s_cselect_b32 exec_lo, 31, 15")
        A("s_mov_b32 exec_hi, 0")
        A("global_store_dwordx4 v28, v[32:35], s[40:41] sc1")
        A("s_mov_b64 exec, -1")
        A("s_or_b32 s49, s42, s61")
        A("s_cmp_lg_u32 s49, 0")
        A("s_cbranch_scc1 L_nozs")
        A("s_lshl_b32 s49, s60, 9")
        A(f"s_add_u32 s49, s49, {WS_SACC}")
        A("v_add_u32 v28, s49, v2")
        A("s_mov_b32 exec_hi, 0")
        A("global_store_dwordx4 v28, v[32:35], s[40:41] sc1")
        A("s_mov_b64 exec, -1")
        self.lab("L_nozs")
        A(f"v_lshlrev_b32 v28, 2, v1")
        A(f"v_add_u32 v28, {MLF}, v28")
        A("s_mov_b64 exec, 0xffff")
        A("ds_write_b32 v28, v32 offset:0")
        A("ds_write_b32 v28, v32 offset:32")
        A("s_mov_b64 exec, -1")
        A(f"s_waitcnt vmcnt({(19 + 2*tsn) if not opt.get('skip') else 0})")
        self.ts(13)
        for i in range(4):
            A(f"v_lshlrev_b32 v{X+2*i}, 16, v{XP+i}")
            A(f"v_and_b32 v{X+2*i+1}, 0xffff0000, v{XP+i}")
        self.layernorm(X, T, XP)
        A(f"v_add_u32 v28, {XN}, v2")
        A(f"ds_write_b128 v28, v[{XP}:{XP+3}]")
        A("v_lshrrev_b32 v29, 4, v1")
        A("v_lshlrev_b32 v30, 4, v29")
        A("s_lshl_b32 s49, s45, 8")
        A(f"s_add_u32 s49, s49, {XN}")
        A("v_add_u32 v30, s49, v30")
        A("v_bfe_u32 v31, v1, 2, 2")
        A("v_lshl_add_u32 v31, v29, 3, v31")
        A("v_lshlrev_b32 v31, 7, v31")
        A("v_and_b32 v28, 3, v1")
        A("v_lshl_add_u32 v31, v28, 3, v31")
        A(f"v_add_u32 v31, {WQ}, v31")
        A("v_and_b32 v28, 15, v1")
        A("v_lshlrev_b32 v28, 6, v28")
        A("v_lshl_add_u32 v29, v29, 4, v28")
        A("s_lshl_b32 s49, s42, 13")
        A("s_lshl_b32 s56, s45, 11")
        A("s_add_u32 s49, s49, s56")
        A("s_lshl_b32 s56, s44, 8")
        A("s_add_u32 s49, s49, s56")
        A(f"s_add_u32 s49, s49, {WS_QP}")
        A("v_add_u32 v29, s49, v29")
        A("v_and_b32 v28, 15, v1")
        A("s_waitcnt lgkmcnt(0)")
        XO = 64; WO = 128; QD = 32
        for ks in range(4):
            A(f"ds_read_b128 v[{XO+4*ks}:{XO+4*ks+3}], v30 offset:{64*ks}")
        A("s_waitcnt vmcnt(0)")
        self.ts(1)
        for ks in range(4):
            for ct in range(4):
                r = WO + 16 * ks + 4 * ct
                A(f"ds_read_b64_tr_b16 v[{r}:{r+1}], v31 offset:{4096*ks + 32*ct}")
                A(f"ds_read_b64_tr_b16 v[{r+2}:{r+3}], v31 offset:{4096*ks + 32*ct + 512}")
            A("s_waitcnt lgkmcnt(0)")
            for ct in range(4):
                r = WO + 16 * ks + 4 * ct
                d = QD + 4 * ct
                c = "0" if ks == 0 else f"v[{d}:{d+3}]"
                A(f"v_mfma_f32_16x16x32_bf16 v[{d}:{d+3}], v[{r}:{r+3}], v[{XO+4*ks}:{XO+4*ks+3}], {c}")
        A("v_cmp_eq_u32 s[52:53], 1, v28")
        A("v_cmp_eq_u32 s[54:55], 2, v28")
        A("v_cmp_eq_u32 vcc, 3, v28")
        self.nop(6)
        for r in range(4):
            A(f"v_cndmask_b32 v{QD+r}, v{QD+r}, v{QD+4+r}, s[52:53]")
        for r in range(4):
            A(f"v_cndmask_b32 v{QD+r}, v{QD+r}, v{QD+8+r}, s[54:55]")
        for r in range(4):
            A(f"v_cndmask_b32 v{QD+r}, v{QD+r}, v{QD+12+r}, vcc")
        A("s_mov_b32 exec_lo, 0x000f000f")
        A("s_mov_b32 exec_hi, 0x000f000f")
        A(f"global_store_dwordx4 v29, v[{QD}:{QD+3}], s[40:41] sc1")
        A("s_mov_b64 exec, -1")
        A("s_waitcnt vmcnt(0)")
        A("s_lshl_b32 s49, s42, 5")
        A("v_mov_b32 v3, s49")
        A("v_mov_b32 v30, 1")
        A("s_lshl_b32 s49, s42, 12")
        A(f"s_add_u32 s49, s49, {WS_MB}")
        A("v_lshlrev_b32 v38, 7, v1")
        A("v_add_u32 v38, s49, v38")
        A("v_mov_b32 v39, s46")
        self.ts(2)
        self.arrive_wait("q", 0, 0, opt.get("qsleep", 2))
        if opt.get("ts") and opt.get("ts") != "end":
            A("s_mov_b64 exec, 1")
            A("v_mov_b32 v250, s50")
            A("v_mov_b32 v251, 0")
            A("v_mov_b32 v252, s62")
            A("global_store_dwordx2 v252, v[250:251], s[40:41] offset:128")
            A("s_mov_b64 exec, -1")
        self.ts(3)
        A("s_lshl_b32 s49, s42, 13")
        A(f"s_add_u32 s49, s49, {WS_QP}")
        A("v_lshlrev_b32 v28, 5, v1")
        A("v_add_u32 v28, s49, v28")
        A("v_add_u32 v29, 4096, v28")
        st = len(self.L)
        for rb in range(4):
            for hh in range(2):
                r = 64 + 8 * rb + 4 * hh
                A(f"global_load_dwordx4 v[{r}:{r+3}], v{28 + rb // 2}, s[40:41] offset:{2048*(rb%2) + 16*hh} sc1 {opt.get('qldf', '')}")
        self.skipmem("qld", st)
        A(f"v_add_u32 v28, {QS}, v2")
        A("s_waitcnt vmcnt(0)")
        for k in range(8):
            A(f"v_add_f32 v{64+k}, v{64+k}, v{72+k}")
            A(f"v_add_f32 v{80+k}, v{80+k}, v{88+k}")
        for k in range(8):
            A(f"v_add_f32 v{64+k}, v{64+k}, v{80+k}")
        for k in range(4):
            A(f"v_cvt_pk_bf16_f32 v{32+k}, v{64+2*k}, v{65+2*k}")
        A("ds_write_b128 v28, v[32:35]")
        A("s_waitcnt lgkmcnt(0)")
        A("s_barrier")
        self.ts(4)
        if opt.get("span"):
            A("s_memrealtime s[68:69]")
        A(f"s_mov_b32 s59, {f32(LOG2E)}")
        if not opt.get("wolate"):
            self.wo_dma()
        st = len(self.L)
        for a, (lo, base) in enumerate(((28, WST), (30, WST + 4096), (32, WST + 8192))):
            A(f"s_mov_b32 s52, s{lo}")
            A(f"s_and_b32 s53, s{lo+1}, 0xffff")
            A("s_mov_b32 s54, 3584")
            A("s_mov_b32 s55, 0x20000")
            A(f"s_mov_b32 m0, {base}")
            A("s_nop 0")
            for q in range(4):
                A(f"buffer_load_dwordx4 v2, s[52:55], 0 offen offset:{1024*q} lds")
        A("s_lshl_b32 s49, s60, 7")
        A("v_lshlrev_b32 v43, 1, v1")
        A("v_add_u32 v43, s49, v43")
        A("global_load_ushort v40, v43, s[16:17]")
        A("v_mov_b32 v29, 0")
        A("global_load_ushort v41, v29, s[34:35]")
        self.skipmem("w1", st)
        self.layernorm(X, T, XP)
        A(f"v_add_u32 v28, {XN}, v2")
        A(f"ds_write_b128 v28, v[{XP}:{XP+3}]")
        A(f"v_mov_b32 v28, s51")
        A(f"v_add_u32 v28, {XN}, v28")
        A("s_waitcnt lgkmcnt(0)")
        A("ds_read_b32 v42, v28")
        A("v_lshrrev_b32 v29, 4, v1")
        A("v_bfe_u32 v57, v1, 2, 2")
        A("v_lshl_add_u32 v57, v29, 3, v57")
        A("v_lshlrev_b32 v57, 7, v57")
        A("v_and_b32 v28, 3, v1")
        A("v_lshl_add_u32 v57, v28, 3, v57")
        A(f"v_add_u32 v57, {WQ}, v57")
        A("s_waitcnt vmcnt(0) lgkmcnt(0)")
        WP = 128
        if not opt.get("wolate"):
            self.wo_tr(WP)
            A("s_waitcnt lgkmcnt(0)")
        A("v_lshlrev_b32 v44, 16, v42")
        A("v_and_b32 v45, 0xffff0000, v42")
        A("v_mov_b32 v46, 0")
        A("v_mov_b32 v47, 0")
        A(f"v_lshlrev_b32 v28, 2, v1")
        A(f"v_add_u32 v28, {WST}, v28")
        A("s_mov_b32 s57, 14")
        c1 = -2.0 * 0.7978845608028654 * LOG2E
        A(f"s_mov_b32 s58, {f32(c1)}")
        A(f"s_mov_b32 s56, {f32(c1 * 0.044715)}")
        self.lab("L_gate")
        A("ds_read_b32 v48, v28")
        A("ds_read_b32 v49, v28 offset:4096")
        A("ds_read_b32 v50, v28 offset:8192")
        A("v_add_u32 v28, 256, v28")
        A("s_waitcnt lgkmcnt(0)")
        A("v_lshlrev_b32 v51, 16, v48")
        A("v_and_b32 v52, 0xffff0000, v48")
        A("v_lshlrev_b32 v53, 16, v49")
        A("v_and_b32 v54, 0xffff0000, v49")
        A("v_lshlrev_b32 v55, 16, v50")
        A("v_and_b32 v56, 0xffff0000, v50")
        U = [8, 9, 10, 11]; Z = [12, 13, 14, 15]
        combos = [(44, 51, 53, 55, 46), (44, 52, 54, 56, 46), (45, 51, 53, 55, 47), (45, 52, 54, 56, 47)]
        for k, (h, w1, b1, w2, acc) in enumerate(combos):
            A(f"v_mul_f32 v{U[k]}, v{h}, v{w1}")
        for k in range(4):
            self.bf16r(f"v{U[k]}")
        for k, (h, w1, b1, w2, acc) in enumerate(combos):
            A(f"v_add_f32 v{U[k]}, v{U[k]}, v{b1}")
        for k in range(4):
            self.bf16r(f"v{U[k]}")
        for k in range(4):
            A(f"v_mul_f32 v{Z[k]}, v{U[k]}, v{U[k]}")
        for k in range(4):
            A(f"v_mul_f32 v{Z[k]}, s56, v{Z[k]}")
        for k in range(4):
            A(f"v_add_f32 v{Z[k]}, s58, v{Z[k]}")
        for k in range(4):
            A(f"v_mul_f32 v{Z[k]}, v{Z[k]}, v{U[k]}")
        for k in range(4):
            A(f"v_exp_f32 v{Z[k]}, v{Z[k]}")
        self.nop(1)
        for k in range(4):
            A(f"v_add_f32 v{Z[k]}, 1.0, v{Z[k]}")
        for k in range(4):
            A(f"v_rcp_f32 v{Z[k]}, v{Z[k]}")
        self.nop(1)
        for k in range(4):
            A(f"v_mul_f32 v{U[k]}, v{U[k]}, v{Z[k]}")
        for k in range(4):
            self.bf16r(f"v{U[k]}")
        for k, (h, w1, b1, w2, acc) in enumerate(combos):
            A(f"v_fmac_f32 v{acc}, v{U[k]}, v{w2}")
        A("s_sub_u32 s57, s57, 1")
        A("s_cmp_lg_u32 s57, 0")
        A("s_cbranch_scc1 L_gate")
        A("s_waitcnt vmcnt(0)")
        self.allreduce64("add", "v46", "v16")
        self.allreduce64("add", "v47", "v16")
        A("v_lshlrev_b32 v41, 16, v41")
        for a in (46, 47):
            self.bf16r(f"v{a}")
            A(f"v_add_f32 v{a}, v{a}, v41")
            self.bf16r(f"v{a}")
            A(f"v_mul_f32 v16, s59, v{a}")
            A("v_exp_f32 v16, -v16")
            self.nop(1)
            A("v_add_f32 v16, 1.0, v16")
            A("v_rcp_f32 v17, v16")
            self.nop(1)
            A(f"v_mul_f32 v18, v{a}, v17")
            A(f"v_fma_f32 v19, -v18, v16, v{a}")
            A("v_fma_f32 v19, v19, v17, v18")
            A("v_cmp_gt_f32 vcc, 0x7f000000, v16")
            self.nop(2)
            A(f"v_cndmask_b32 v{a}, v18, v19, vcc")
            self.bf16r(f"v{a}")
        A("v_bfrev_b32 v16, 1")
        A("v_cmp_eq_u32 vcc, 0, v46")
        A("v_cmp_eq_u32 s[52:53], 0, v47")
        self.nop(2)
        A("v_cndmask_b32 v46, v46, v16, vcc")
        A("v_cndmask_b32 v47, v47, v16, s[52:53]")
        A("s_lshl_b32 s49, s51, 1")
        A(f"s_add_u32 s49, s49, {WS_G}")
        A("v_mov_b32 v28, s49")
        A("s_mov_b64 exec, 1")
        A("global_store_dwordx2 v28, v[46:47], s[40:41] sc1")
        A("s_mov_b64 exec, -1")
        self.ts(5)
        A(f"v_mov_b32 v28, {MLF}")
        A("v_and_b32 v29, 3, v1")
        A("v_lshlrev_b32 v29, 2, v29")
        A(f"v_add_u32 v29, {ML}, v29")
        self.spin_init()
        self.lab("L_mlw")
        A("ds_read_b128 v[4:7], v28")
        for w in range(4):
            A(f"ds_read_b32 v{8+w}, v29 offset:{32*w}")
            A(f"ds_read_b32 v{12+w}, v29 offset:{32*w+16}")
        A("s_waitcnt lgkmcnt(0)")
        A("v_and_b32 v4, v4, v5")
        A("v_and_b32 v6, v6, v7")
        A("v_and_b32 v4, v4, v6")
        A("s_nop 0")
        A("v_readfirstlane_b32 s57, v4")
        A("s_nop 3")
        A("s_cmp_lg_u32 s57, 0")
        A("s_cbranch_scc1 L_mld")
        self.spin_tail("L_mlw", "L_mld", 8)
        self.lab("L_mld")
        self.ts(6)
        A("v_max3_f32 v16, v8, v9, v10")
        A("v_max_f32 v16, v16, v11")
        for w in range(4):
            A(f"v_sub_f32 v{8+w}, v{8+w}, v16")
        for w in range(4):
            A(f"v_mul_f32 v{8+w}, s59, v{8+w}")
        for w in range(4):
            A(f"v_exp_f32 v{8+w}, v{8+w}")
        self.nop(1)
        A("v_mul_f32 v17, v8, v12")
        for w in range(1, 4):
            A(f"v_fmac_f32 v17, v{8+w}, v{12+w}")
        A("s_lshl_b32 s49, s47, 5")
        A(f"s_add_u32 s49, s49, {WS_ML}")
        A("v_lshlrev_b32 v28, 3, v1")
        A("v_add_u32 v28, s49, v28")
        A("v_mov_b32 v30, 1")
        A("s_mov_b64 exec, 15")
        A("global_store_dwordx2 v28, v[16:17], s[40:41] sc1")
        A("s_mov_b64 exec, -1")
        A("v_lshlrev_b32 v28, 5, v1")
        self.spin_init()
        A("s_mov_b64 exec, 0xff")
        self.lab("L_allw")
        A("global_load_dword v4, v28, s[38:39] sc1")
        A("s_waitcnt vmcnt(0)")
        A(f"v_cmp_le_u32 vcc, {0 if 'q' in str(opt.get('skip', '')).split('+') else 32}, v4")
        A("s_nop 1")
        A("s_cmp_eq_u64 vcc, exec")
        A("s_cbranch_scc1 L_alld")
        self.spin_tail("L_allw", "L_alld", 32)
        self.lab("L_alld")
        A("s_mov_b64 exec, -1")
        self.arrive_wait("ml", None, 4, opt.get("mlsleep", 16))
        self.ts(7)
        A("s_lshl_b32 s49, s42, 10")
        A(f"s_add_u32 s49, s49, {WS_ML}")
        A("v_lshlrev_b32 v28, 3, v1")
        A("v_add_u32 v28, s49, v28")
        A("global_load_dwordx2 v[8:9], v28, s[40:41] sc1")
        A("global_load_dwordx2 v[10:11], v28, s[40:41] offset:512 sc1")
        A("s_waitcnt vmcnt(0)")
        A("v_max_f32 v16, v8, v10")
        for r in (4, 8):
            self.nop(2)
            A(f"v_max_f32_dpp v16, v16, v16 row_ror:{r} row_mask:0xf bank_mask:0xf")
        self.rows_reduce("max", "v16", "v17")
        A("v_sub_f32 v8, v8, v16")
        A("v_sub_f32 v10, v10, v16")
        A("v_mul_f32 v8, s59, v8")
        A("v_mul_f32 v10, s59, v10")
        A("v_exp_f32 v8, v8")
        A("v_exp_f32 v10, v10")
        self.nop(1)
        A("v_mul_f32 v17, v8, v9")
        A("v_fmac_f32 v17, v10, v11")
        for r in (4, 8):
            self.nop(2)
            A(f"v_add_f32_dpp v17, v17, v17 row_ror:{r} row_mask:0xf bank_mask:0xf")
        self.rows_reduce("add", "v17", "v18")
        A("v_rcp_f32 v18, v17")
        self.nop(1)
        A("v_fma_f32 v19, -v17, v18, 1.0")
        A("v_fmac_f32 v18, v19, v18")
        A("v_lshlrev_b32 v28, 2, v1")
        A(f"v_add_u32 v28, {FIN}, v28")
        A(f"v_mov_b32 v29, {FINF}")
        A("s_mov_b64 exec, 15")
        A("ds_write_b32 v28, v16")
        A("ds_write_b32 v28, v18 offset:16")
        A("s_waitcnt lgkmcnt(0)")
        A("s_mov_b64 exec, 1")
        A("ds_write_b32 v29, v30")
        A("s_mov_b64 exec, -1")
        if opt.get("wolate"):
            A(f"v_mov_b32 v28, {WOF}")
            self.spin_init()
            self.lab("L_wow")
            A("ds_read_b32 v4, v28")
            A("s_waitcnt lgkmcnt(0)")
            A("v_readfirstlane_b32 s57, v4")
            A("s_nop 3")
            A("s_cmp_lg_u32 s57, 0")
            A("s_cbranch_scc1 L_wod")
            self.spin_tail("L_wow", "L_wod", 4)
            self.lab("L_wod")
        A("v_lshrrev_b32 v33, 4, v1")
        A("v_and_b32 v34, 15, v1")
        A("v_lshlrev_b32 v28, 2, v1")
        A(f"v_add_u32 v29, {PART}, v28")
        A("v_cmp_eq_u32 s[68:69], 8, v34")
        A("v_cmp_eq_u32 s[70:71], 7, v34")
        A("v_min_u32 v35, 8, v34")
        A("v_subrev_u32 v36, 8, v34")
        self.nop(1)
        A("v_cndmask_b32 v36, v36, 8, s[70:71]")
        A("s_lshl_b32 s49, s42, 11")
        A(f"s_add_u32 s49, s49, {WS_O}")
        A("v_add_u32 v32, s49, v28")
        A("v_lshlrev_b32 v31, 5, v33")
        A("s_lshl_b32 s56, s61, 9")
        A("s_add_u32 s49, s49, s56")
        A("v_add_u32 v31, s49, v31")
        A("s_lshl_b32 s49, s60, 9")
        A(f"s_add_u32 s49, s49, {WS_SACC}")
        A("v_lshlrev_b32 v37, 7, v33")
        A("v_lshl_add_u32 v49, v35, 2, v37")
        A("v_add_u32 v49, s49, v49")
        A("v_lshl_add_u32 v50, v36, 2, v37")
        A("v_add_u32 v50, s49, v50")
        A("v_cmp_eq_u32 s[52:53], 1, v33")
        A("v_cmp_eq_u32 s[54:55], 2, v33")
        A("v_cmp_eq_u32 s[44:45], 3, v33")
        A("v_cmp_gt_u32 s[72:73], 8, v34")
        A("s_lshl_b32 s49, s60, 8")
        A(f"s_add_u32 s49, s49, {WS_G}")
        A("v_lshlrev_b32 v36, 2, v1")
        A("v_add_u32 v36, s49, v36")
        self.spin_init()
        self.lab("L_gw")
        A("global_load_dword v41, v36, s[40:41] sc1")
        A("s_waitcnt vmcnt(0)")
        A("v_cmp_eq_u32 vcc, 0, v41")
        A("s_nop 1")
        A("s_cmp_eq_u64 vcc, 0")
        A("s_cbranch_scc1 L_gd")
        self.spin_tail("L_gw", "L_gd", 16)
        self.lab("L_gd")
        A("v_lshlrev_b32 v40, 16, v40")
        self.ts(8)
        A("s_waitcnt vmcnt(0) lgkmcnt(0)")
        if opt.get("wolate"):
            A("s_mov_b64 s[76:77], s[52:53]")
            A("s_mov_b64 s[78:79], s[54:55]")
            A("v_mov_b32 v58, v29")
            self.wo_dma()
            A("v_mov_b32 v29, v58")
            A("s_mov_b64 s[52:53], s[76:77]")
            A("s_mov_b64 s[54:55], s[78:79]")
        A("s_barrier")
        self.ts(9)
        PR = 192
        for k in range(8):
            for w in range(4):
                A(f"ds_read_b32 v{PR+4*k+w}, v29 offset:{2048*w + 256*k}")
        for k in range(8):
            A(f"s_waitcnt lgkmcnt({min(15, 4*(7-k))})")
            A(f"v_add_f32 v{PR+4*k}, v{PR+4*k}, v{PR+4*k+1}")
            A(f"v_add_f32 v{PR+4*k+2}, v{PR+4*k+2}, v{PR+4*k+3}")
            A(f"v_add_f32 v{PR+4*k}, v{PR+4*k}, v{PR+4*k+2}")
            A(f"global_atomic_add_f32 v32, v{PR+4*k}, s[40:41] offset:{256*k} sc1")
        self.ts(10)
        if opt.get("wolate"):
            A("s_waitcnt vmcnt(8)")
            self.wo_tr(WP)
        self.arrive_wait("fin", "fin", 8, opt.get("fsleep", 1))
        self.ts(11)
        OR = 64; OB = 96; SD = 8
        for ks in range(4):
            for hh in range(2):
                r = OR + 8 * ks + 4 * hh
                A(f"global_load_dwordx4 v[{r}:{r+3}], v31, s[40:41] offset:{128*ks + 16*hh} sc1")
        for ks in range(4):
            A(f"s_waitcnt vmcnt({6 - 2*ks}) lgkmcnt(0)")
            for k in range(4):
                A(f"v_cvt_pk_bf16_f32 v{OB+4*ks+k}, v{OR+8*ks+2*k}, v{OR+8*ks+2*k+1}")
            self.nop(2)
            for ct in range(4):
                r = WP + 16 * ks + 4 * ct
                d = SD + 4 * ct
                c = "0" if ks == 0 else f"v[{d}:{d+3}]"
                A(f"v_mfma_f32_16x16x32_bf16 v[{d}:{d+3}], v[{OB+4*ks}:{OB+4*ks+3}], v[{r}:{r+3}], {c}")
        self.nop(6)
        A(f"v_cndmask_b32 v{SD}, v{SD}, v{SD+4}, s[52:53]")
        A(f"v_cndmask_b32 v{SD}, v{SD}, v{SD+8}, s[54:55]")
        A(f"v_cndmask_b32 v{SD}, v{SD}, v{SD+12}, s[44:45]")
        A(f"v_cndmask_b32 v9, v{SD}, 1.0, s[68:69]")
        A(f"v_cndmask_b32 v10, v{SD}, 1.0, s[70:71]")
        A("s_mov_b32 exec_lo, 0x01ff01ff")
        A("s_mov_b32 exec_hi, 0x01ff01ff")
        A("global_atomic_add_f32 v12, v49, v9, s[40:41] sc0 sc1")
        A("s_mov_b32 exec_lo, 0xff80ff80")
        A("s_mov_b32 exec_hi, 0xff80ff80")
        A("global_atomic_add_f32 v13, v50, v10, s[40:41] offset:64 sc0 sc1")
        A("s_mov_b64 exec, -1")
        A("s_waitcnt vmcnt(0)")
        self.ts(14)
        A("v_mov_b32_dpp v14, v12 row_newbcast:8 row_mask:0xf bank_mask:0xf")
        A("v_mov_b32_dpp v15, v13 row_newbcast:7 row_mask:0xf bank_mask:0xf")
        A("v_cndmask_b32 v12, v13, v12, s[72:73]")
        A("v_cndmask_b32 v14, v15, v14, s[72:73]")
        A(f"v_add_f32 v8, v{SD}, v12")
        A("v_cmp_eq_f32 vcc, 0x41f80000, v14")
        self.bf16r("v8")
        A("v_mul_f32 v8, v8, v41")
        self.bf16r("v8")
        A("v_add_f32 v8, v8, v40")
        A("v_cvt_pk_bf16_f32 v8, v8, v8")
        A("s_and_b64 exec, exec, vcc")
        A("s_cbranch_scc0 L_end")
        A("global_store_short v43, v8, s[36:37]")
        A("s_mov_b64 exec, -1")
        self.ts(12)


if __name__ == "__main__":
    out = sys.argv[1]
    opt = {}
    for a in sys.argv[2:]:
        k, _, v = a.partition("=")
        opt[k] = (int(v) if v.lstrip("-").isdigit() else v) if v else True
    open(out, "w").write(G3(**opt).gen())
```

```python
import sys, struct
from gen import G, NAME, HEADER, f32, LOG2E, SCALE
from gen2 import G2
import gen
_ts0 = gen.G.ts
def _ts(self, slot, sreg="s[74:75]", vt=("v250", "v251", "v252")):
    return _ts0(self, slot, sreg, vt)
gen.G.ts = _ts

RING = 0
WQ = 131072
PART = 147456
WST = 147456
XN = 159744
QS = 160768
ML = 161792
MLF = ML + 128
FIN = ML + 160
FINF = ML + 192
WOF = ML + 196
PREC = ML + 200
SBC = ML + 204
LDS_BYTES = 162304

WS_Q = 0
WS_ML = 8192
WS_O = 16384
WS_SYNC = 32768
WS_GFIN = 32768 + 4096
WS_TS = 65536
WS_WT = 1 << 20
WS_QP = 786432


WS_SACC = 40960
WS_G = 49152
WS_O2 = 917504
WS_MB = 851968


class G3(G2):
    def gen(self):
        A = self.A
        opt = self.opt
        NT = opt.get("nt", "nt")
        self.L.append(HEADER.rstrip("\n"))
        self.L.append(f"; @launch grid=(256,1,1) block=(320,1,1) lds={LDS_BYTES}")
        self.L.append('.amdgcn_target "amdgcn-amd-amdhsa--gfx950"')
        self.L.append(".text")
        self.L.append(f".globl {NAME}_kernel")
        self.L.append(".p2align 8")
        self.L.append(f".type {NAME}_kernel,@function")
        self.lab(f"{NAME}_kernel")
        A("s_cmp_ge_u32 s2, 256")
        A("s_cbranch_scc1 L_end")
        if opt.get("ts") or opt.get("span"):
            A("s_memrealtime s[66:67]")
        A("s_load_dwordx16 s[16:31], s[0:1], 0")
        A("s_load_dwordx8 s[32:39], s[0:1], 64")
        A("s_load_dwordx2 s[40:41], s[0:1], 96")
        A("v_lshrrev_b32 v1, 6, v0")
        if opt.get("imb", 2) or opt.get("pair"):
            A("s_and_b32 s42, s2, 6")
            A("v_readfirstlane_b32 s3, v1")
            A("s_bfe_u32 s43, s2, 0x10003")
            A("s_or_b32 s42, s42, s43")
            A("s_lshr_b32 s43, s2, 4")
            A("s_lshl_b32 s43, s43, 1")
            A("s_and_b32 s44, s2, 1")
            A("s_or_b32 s43, s43, s44")
        else:
            A("s_and_b32 s42, s2, 7")
            A("v_readfirstlane_b32 s3, v1")
            A("s_lshr_b32 s43, s2, 3")
        if opt.get("hlast"):
            A("s_nop 2")
            A("s_add_u32 s3, s3, 1")
            A("s_cmp_eq_u32 s3, 5")
            A("s_cselect_b32 s3, 0, s3")
        A("v_and_b32 v1, 63, v0")
        A("s_lshl_b32 s47, s42, 5")
        A("s_add_u32 s47, s47, s43")
        if opt.get("ts"):
            A("s_lshl_b32 s62, s2, 3")
            A("s_add_u32 s62, s62, s3")
            A("s_cmp_eq_u32 s3, 0")
            A("s_cselect_b32 s63, 0, 3")
            A("s_add_u32 s62, s62, s63")
            A("s_lshl_b32 s62, s62, 8")
            A(f"s_add_u32 s62, s62, {WS_TS}")
        A("s_cmp_eq_u32 s3, 0")
        A("s_cbranch_scc1 L_helper")
        self.stream(NT)
        self.lab("L_helper")
        self.helper()
        self.lab("L_end")
        A("s_endpgm")
        self.L.append('.section .rodata,"a"')
        self.L.append(".p2align 6")
        self.L.append(f".amdhsa_kernel {NAME}_kernel")
        for s in ("next_free_vgpr 256", "next_free_sgpr 84", "accum_offset 256", "group_segment_fixed_size 0",
                  "kernarg_size 104", "user_sgpr_count 2", "user_sgpr_kernarg_segment_ptr 1",
                  "system_sgpr_workgroup_id_x 1", "float_denorm_mode_32 3"):
            self.L.append("  .amdhsa_" + s)
        self.L.append(".end_amdhsa_kernel")
        return "\n".join(self.L) + "\n"

    def ts(self, slot, *a, **k):
        if self.opt.get("ts") == "end" and slot != 12:
            return
        return G2.ts(self, slot, *a, **k)

    def sts(self, k):
        if not self.opt.get("ts"):
            return
        self.A(f"s_memrealtime s[{68+2*k}:{69+2*k}]")

    def sts_flush(self, n):
        if not self.opt.get("ts"):
            return
        A = self.A
        A("s_waitcnt lgkmcnt(0)")
        A("v_mov_b32 v26, s62")
        A("s_mov_b64 exec, 1")
        for k in range(n):
            A(f"v_mov_b32 v24, s{68+2*k}")
            A(f"v_mov_b32 v25, s{69+2*k}")
            A(f"global_store_dwordx2 v26, v[24:25], s[40:41] offset:{8*k}")
            A("s_nop 1")
        A("v_mov_b32 v24, s66")
        A("v_mov_b32 v25, s67")
        A(f"global_store_dwordx2 v26, v[24:25], s[40:41] offset:{8*15}")
        A("s_mov_b64 exec, -1")

    def stream(self, NT):
        A = self.A
        opt = self.opt
        D = opt.get("depth", 8)
        E = opt.get("imb", 2)
        NC = 32 - E
        VOFF = 2; KRD = 6; VRD = 10; MSK = 18
        QV = 24; BQT = 40; DA = 56
        NB = opt.get("nb", 10)
        SP = 64; QT = 84; VST = 96; BT = 128; OA = 144; SC = 176
        BUF = [96 + 16 * p for p in range(10)]
        D0 = opt.get("depth0", D)
        n_d0 = opt.get("nd0", 0)
        st = {"issued": 0, "NP": 32 - E}
        A("s_sub_u32 s3, s3, 1")
        A("v_lshrrev_b32 v22, 4, v1")
        A("v_and_b32 v23, 15, v1")
        for q in range(4):
            c = 8 * (q & 1) + (q >> 1)
            A(f"v_lshl_or_b32 v{VOFF+q}, v22, 1, {c}")
            A(f"v_xor_b32 v{VOFF+q}, v{VOFF+q}, v23")
            A(f"v_lshlrev_b32 v{VOFF+q}, 4, v{VOFF+q}")
            A(f"v_lshl_or_b32 v{VOFF+q}, v22, 8, v{VOFF+q}")
        A("s_lshl_b32 s48, s3, 15")
        A("s_lshl_b32 s49, s43, 2")
        A("s_add_u32 s49, s49, s3")
        A("s_lshl_b32 s49, s49, 12")
        A("s_lshr_b32 s60, s43, 1")
        A("s_lshl_b32 s60, s60, 2")
        A("s_add_u32 s60, s60, s3")
        A("s_lshl_b32 s60, s60, 12")
        A("s_lshl_b32 s51, s42, 24")
        A("s_waitcnt lgkmcnt(0)")
        A("s_add_u32 s44, s18, s51")
        A("s_addc_u32 s45, s19, 0")
        A("s_and_b32 s45, s45, 0xffff")
        A(f"s_mov_b32 s46, {1 << 24}")
        A("s_mov_b32 s47, 0x20000")
        A("s_add_u32 s52, s20, s51")
        A("s_addc_u32 s53, s21, 0")
        A("s_and_b32 s53, s53, 0xffff")
        A(f"s_mov_b32 s54, {1 << 24}")
        A("s_mov_b32 s55, 0x20000")

        st["WF"] = opt.get("wfirst", 0)
        PW = [int(x) for x in str(opt["parw"]).split("_")] if "parw" in opt else None

        SB0 = opt.get("sb", 99)

        def softbar(i):
            if i < SB0:
                return
            self.uid += 1
            n = i - SB0 + 1
            A("s_mov_b64 exec, 1")
            A("ds_add_u32 v82, v83")
            self.lab(f"L_sb{self.uid}")
            A("ds_read_b32 v81, v82")
            A("s_sub_u32 s82, s82, 1")
            A(f"s_cbranch_scc1 L_sd{self.uid}")
            A("s_waitcnt lgkmcnt(0)")
            A("v_readfirstlane_b32 s57, v81")
            A("s_nop 3")
            A(f"s_cmp_lt_u32 s57, {4 * n}")
            A(f"s_cbranch_scc1 L_sb{self.uid}")
            self.lab(f"L_sd{self.uid}")
            A("s_mov_b64 exec, -1")

        def pace():
            i = st["issued"]
            if i >= 2 * st["NP"] or st.get("paced") == i:
                return
            dd = D0 if i < n_d0 else D
            A(f"s_waitcnt vmcnt({dd-4})")
            softbar(i)
            st["paced"] = i

        def refill(wait=True):
            i = st["issued"]
            NP = st["NP"]
            if i >= 2 * NP:
                return
            if st.get("paced") == i:
                wait = False
            p = i % NP
            srd = "s[44:47]" if i < NP else "s[52:55]"
            if p < NC:
                A(f"s_add_u32 s56, s49, {p * 524288}")
            else:
                A(f"s_add_u32 s56, s60, {NC * 524288 + (p - NC) * 262144}")
            A(f"s_add_u32 m0, s48, {(i % 8) * 4096}")
            if wait:
                dd = D0 if i < n_d0 else D
                A(f"s_waitcnt vmcnt({dd-4})")
                softbar(i)
            else:
                A("s_nop 0")
            for q in range(4):
                A(f"buffer_load_dwordx4 v{VOFF+q}, {srd}, s56 offen offset:{q*1024} {NT} lds")
            st["issued"] += 1

        n0 = (D0 if n_d0 else D) // 4
        for pp in range(n0):
            refill(wait=False)
        self.sts(0)
        assert E == 0
        A(f"v_mov_b32 v82, {SBC}")
        A("v_mov_b32 v83, 1")
        A("s_mov_b32 s82, 0x4000000")
        A("s_barrier")
        A("v_and_b32 v24, 7, v23")
        A("v_lshlrev_b32 v24, 1, v24")
        A("v_lshrrev_b32 v25, 3, v23")
        A("v_or_b32 v24, v24, v25")
        A("v_lshlrev_b32 v25, 8, v23")
        A("v_add_u32 v25, s48, v25")
        for u in range(4):
            A(f"v_lshl_or_b32 v26, v22, 2, {u}")
            A("v_xor_b32 v26, v26, v24")
            A(f"v_lshl_add_u32 v{KRD+u}, v26, 4, v25")
        A("v_lshrrev_b32 v26, 2, v1")
        A("v_and_b32 v24, 7, v26")
        A("v_lshlrev_b32 v24, 1, v24")
        A("v_lshrrev_b32 v25, 3, v26")
        A("v_or_b32 v24, v24, v25")
        A("v_bfe_u32 v27, v1, 1, 1")
        A("v_xor_b32 v24, v24, v27")
        A("v_and_b32 v27, 1, v1")
        A("v_lshlrev_b32 v27, 3, v27")
        A("v_lshl_add_u32 v25, v26, 8, v27")
        A("v_add_u32 v25, s48, v25")
        for e in range(8):
            A(f"v_xor_b32 v26, {2*e}, v24")
            A(f"v_lshl_add_u32 v{VRD+e}, v26, 4, v25")
        A("v_lshrrev_b32 v26, 2, v23")
        for t in range(4):
            A(f"v_cmp_eq_u32 vcc, {t}, v26")
            self.nop(2)
            A(f"v_cndmask_b32 v{MSK+t}, 0, -1, vcc")
        A("v_and_b32 v26, 3, v1")
        A("v_lshlrev_b32 v26, 8, v26")
        A("v_lshl_add_u32 v26, v22, 6, v26")
        A(f"v_add_u32 v23, {QS}, v26")
        A(f"s_mov_b32 s58, {f32(SCALE)}")
        A(f"s_mov_b32 s59, {f32(LOG2E)}")
        A("s_mov_b32 s61, 0xff80ff80")
        for pp in range(n0, 8):
            refill()

        def kcopy(p):
            if st["WF"]:
                pace()
            for u in range(4):
                r = BUF[p % NB] + 4 * u
                A(f"ds_read_b128 v[{r}:{r+3}], v{KRD+u} offset:{(p % 8) * 4096}")
            A("s_waitcnt lgkmcnt(0)")
            refill()

        def vcopy(p, tag):
            NP = st["NP"]
            i = NP + p
            rem = 2 * NP - 1 - i
            if rem == 0:
                self.fin_wait(tag)
            if st["issued"] >= 2 * NP and rem * 4 < D:
                A(f"s_waitcnt vmcnt({rem * 4})")
            if st["WF"]:
                pace()
            for e in range(8):
                r = VST + 4 * e + 2 * (p & 1)
                A(f"ds_read_b64_tr_b16 v[{r}:{r+1}], v{VRD+e} offset:{(i % 8) * 4096}")
            A("s_waitcnt lgkmcnt(0)")
            refill()

        for p in range(NB):
            kcopy(p)
        assert st["issued"] <= NC
        self.sts(5)
        A("s_barrier")
        self.sts(1)
        for u in range(4):
            A(f"ds_read_b128 v[{QV+4*u}:{QV+4*u+3}], v23 offset:{16*u}")
        if E:
            A("s_bitcmp1_b32 s43, 0")
            A("s_cbranch_scc1 L_slow")
        elif PW:
            A("s_bitcmp1_b32 s2, 0")
            A("s_cbranch_scc1 L_slow")

        def bqt(t):
            for k in range(16):
                A(f"v_and_b32 v{BQT+k}, v{QV+k}, v{MSK+t}")

        def kmfma(pp, src):
            t, hf = pp >> 1, pp & 1
            d = DA + 4 * hf
            for u in range(4):
                c = "0" if (t == 0 and u == 0) else f"v[{d}:{d+3}]"
                r = src + 4 * u
                A(f"v_mfma_f32_16x16x32_bf16 v[{d}:{d+3}], v[{r}:{r+3}], v[{BQT+4*u}:{BQT+4*u+3}], {c}")

        def kpost(blk, nvalid):
            self.nop(6)
            for k in range(4):
                A(f"v_cvt_pk_bf16_f32 v{QT+k}, v{DA+2*k}, v{DA+2*k+1}")
            for k in range(4):
                A(f"v_lshlrev_b32 v{QT+4+2*k}, 16, v{QT+k}")
                A(f"v_and_b32 v{QT+5+2*k}, 0xffff0000, v{QT+k}")
            for k in range(8):
                A(f"v_mul_f32 v{QT+4+k}, s58, v{QT+4+k}")
            for k in range(4):
                A(f"v_cvt_pk_bf16_f32 v{SP+4*blk+k}, v{QT+4+2*k}, v{QT+5+2*k}")
            if nvalid < 4:
                A(f"v_mov_b32 v{QT}, v{MSK}")
                for t in range(1, nvalid):
                    A(f"v_or_b32 v{QT}, v{QT}, v{MSK+t}")
                for k in range(4):
                    A(f"v_bfi_b32 v{SP+4*blk+k}, v{QT}, v{SP+4*blk+k}, s61")

        issued0 = st["issued"]

        def variant(NP, tag):
            st["NP"] = NP
            st["issued"] = issued0
            st["paced"] = -1
            A("s_waitcnt lgkmcnt(0)")
            c, k = 0, NB
            while c < NP:
                bqt((c % 8) >> 1)
                while k < c + 2:
                    kcopy(k); k += 1
                if st["WF"] >= 2 and k < NP:
                    pace()
                self.nop(2)
                kmfma(c % 8, BUF[c % NB])
                kmfma((c + 1) % 8, BUF[(c + 1) % NB])
                c += 2
                if k < NP:
                    kcopy(k); k += 1
                if c % 8 == 0 or c == NP:
                    kpost((c - 1) // 8, ((c - 1) % 8) // 2 + 1)
            self.sts(2)
            nblk = (NP + 7) // 8
            n = 8 * nblk
            for k in range(4 * nblk):
                A(f"v_lshlrev_b32 v{SC+2*k}, 16, v{SP+k}")
                A(f"v_and_b32 v{SC+2*k+1}, 0xffff0000, v{SP+k}")
            vcopy(0, tag)
            A(f"v_max_f32 v24, v{SC}, v{SC+1}")
            A(f"v_max_f32 v25, v{SC+2}, v{SC+3}")
            for k in range(4, n, 4):
                A(f"v_max3_f32 v24, v24, v{SC+k}, v{SC+k+1}")
                A(f"v_max3_f32 v25, v25, v{SC+k+2}, v{SC+k+3}")
            A("v_max_f32 v24, v24, v25")
            for r in (4, 8):
                self.nop(2)
                A(f"v_max_f32_dpp v24, v24, v24 row_ror:{r} row_mask:0xf bank_mask:0xf")
            self.rows_reduce("max", "v24", "v25")
            for k in range(n):
                A(f"v_sub_f32 v{SC+k}, v{SC+k}, v24")
            for k in range(n):
                A(f"v_mul_f32 v{SC+k}, s59, v{SC+k}")
            for k in range(n):
                A(f"v_exp_f32 v{SC+k}, v{SC+k}")
            vcopy(1, tag)
            for k in range(4 * nblk):
                A(f"v_cvt_pk_bf16_f32 v{SP+k}, v{SC+2*k}, v{SC+2*k+1}")
            m = n
            while m > 1:
                h = (m + 1) // 2
                for k in range(m - h):
                    A(f"v_add_f32 v{SC+k}, v{SC+k}, v{SC+k+h}")
                m = h
            A(f"v_mov_b32 v25, v{SC}")
            for r in (4, 8):
                self.nop(2)
                A(f"v_add_f32_dpp v25, v25, v25 row_ror:{r} row_mask:0xf bank_mask:0xf")
            self.rows_reduce("add", "v25", "v26")
            A("v_mov_b32 v22, v24")
            A("s_lshl_b32 s57, s3, 5")
            A(f"s_add_u32 s57, s57, {ML}")
            A("v_lshl_add_u32 v26, v1, 2, s57")
            A("s_lshl_b32 s57, s3, 2")
            A(f"s_add_u32 s57, s57, {MLF}")
            A("v_mov_b32 v27, s57")
            A("v_mov_b32 v28, 1")
            A("s_mov_b64 exec, 15")
            A("ds_write_b32 v26, v24")
            A("ds_write_b32 v26, v25 offset:16")
            A("s_waitcnt lgkmcnt(0)")
            A("s_mov_b64 exec, 1")
            A("ds_write_b32 v27, v28")
            A("s_mov_b64 exec, -1")
            NU = NP // 2

            def bt(un):
                for k in range(4):
                    A(f"v_and_b32 v{BT+4*(un%2)+k}, v{SP+4*(un//4)+k}, v{MSK+un%4}")
            bt(0)
            self.nop(2)
            for un in range(NU):
                bb = BT + 4 * (un % 2)
                if st["WF"] >= 2:
                    pace()
                for e in range(8):
                    o = OA + 4 * e
                    cc = "0" if un == 0 else f"v[{o}:{o+3}]"
                    A(f"v_mfma_f32_16x16x32_bf16 v[{o}:{o+3}], v[{VST+4*e}:{VST+4*e+3}], v[{bb}:{bb+3}], {cc}")
                if opt.get("wolate") and un == NU - opt.get("wolate"):
                    A(f"v_mov_b32 v27, {WOF}")
                    A("v_mov_b32 v28, 1")
                    A("ds_write_b32 v27, v28")
                if un == NU - opt.get("pre", 2):
                    A(f"v_mov_b32 v27, {PREC}")
                    A("v_mov_b32 v28, 1")
                    A("s_mov_b64 exec, 1")
                    A("ds_add_u32 v27, v28")
                    A("s_mov_b64 exec, -1")
                if un + 1 < NU:
                    bt(un + 1)
                    vcopy(2 * un + 2, tag)
                    vcopy(2 * un + 3, tag)
            assert st["issued"] == 2 * NP

        if PW:
            st["WF"] = PW[0]
        variant(32 + E, "f")
        if E or PW:
            A("s_branch L_sepi")
            self.lab("L_slow")
            if PW:
                st["WF"] = PW[1]
            variant(32 - E, "s")
            self.lab("L_sepi")
        self.sts(3)
        self.nop(4)
        for k in range(32):
            A(f"v_mul_f32 v{OA+k}, v24, v{OA+k}")
        for r in (4, 8):
            for k in range(32):
                A(f"v_add_f32_dpp v{OA+k}, v{OA+k}, v{OA+k} row_ror:{r} row_mask:0xf bank_mask:0xf")
        A("s_mov_b32 exec_lo, 0x000f000f")
        A("s_mov_b32 exec_hi, 0x000f000f")
        for e in range(8):
            A(f"ds_write_b128 v26, v[{OA+4*e}:{OA+4*e+3}] offset:{64*e}")
        A("s_mov_b64 exec, -1")
        A("s_waitcnt lgkmcnt(0)")
        A("s_barrier")
        m8 = "s[62:63]" if not opt.get("ts") else "s[80:81]"
        for k in range(2):
            for w in range(4):
                A(f"ds_read_b32 v{40+4*k+w}, v29 offset:{2048*w + 128*k}")
        for k in range(2):
            A(f"s_waitcnt lgkmcnt({4*(1-k)})")
            A(f"v_add_f32 v{40+4*k}, v{40+4*k}, v{41+4*k}")
            A(f"v_add_f32 v{42+4*k}, v{42+4*k}, v{43+4*k}")
            A(f"v_add_f32 v{40+4*k}, v{40+4*k}, v{42+4*k}")
            A(f"v_cndmask_b32 v{41+4*k}, v{40+4*k}, 1.0, {m8}")
            A(f"v_cndmask_b32 v{42+4*k}, v{40+4*k}, 1.0, s[64:65]")
        A("s_mov_b32 exec_lo, 0x01ff01ff")
        A("s_mov_b32 exec_hi, 0x01ff01ff")
        for k in range(2):
            A(f"global_atomic_add_f32 v32, v{41+4*k}, s[40:41] offset:{256*k} sc1")
        A("s_mov_b32 exec_lo, 0xff80ff80")
        A("s_mov_b32 exec_hi, 0xff80ff80")
        for k in range(2):
            A(f"global_atomic_add_f32 v33, v{42+4*k}, s[40:41] offset:{2048 + 256*k} sc1")
        A("s_mov_b64 exec, -1")
        self.sts(4)
        self.sts_flush(6)
        A("s_endpgm")

    def wo_dma(self):
        A = self.A
        opt = self.opt
        A("s_mov_b32 s52, s24")
        A("s_and_b32 s53, s25, 0xffff")
        A(f"s_mov_b32 s54, {4 << 20}")
        A("s_mov_b32 s55, 0x20000")
        A("v_lshrrev_b32 v28, 3, v1")
        A("v_lshlrev_b32 v28, 10, v28")
        A("v_and_b32 v29, 7, v1")
        A("v_lshl_or_b32 v28, v29, 4, v28")
        A("s_lshl_b32 s56, s42, 19")
        A("s_lshl_b32 s49, s61, 17")
        A("s_add_u32 s56, s56, s49")
        A("s_lshl_b32 s49, s60, 7")
        A("s_add_u32 s56, s56, s49")
        st = len(self.L)
        for k in range(16):
            A(f"s_mov_b32 m0, {WQ + 1024*k}")
            A("s_nop 0")
            A(f"buffer_load_dwordx4 v28, s[52:55], s56 offen nt lds")
            A("s_add_u32 s56, s56, 8192")
        self.skipmem("wo", st)

    def wo_tr(self, WP):
        A = self.A
        for ks in range(4):
            for ct in range(4):
                r = WP + 16 * ks + 4 * ct
                A(f"ds_read_b64_tr_b16 v[{r}:{r+1}], v57 offset:{4096*ks + 32*ct}")
                A(f"ds_read_b64_tr_b16 v[{r+2}:{r+3}], v57 offset:{4096*ks + 32*ct + 512}")

    def skipmem(self, tag, start):
        sk = str(self.opt.get("skip", "")).split("+")
        if tag not in sk:
            return
        for i in range(start, len(self.L)):
            t = self.L[i].strip()
            if (t.startswith("global_") or t.startswith("buffer_")) and "v252" not in t:
                self.L[i] = "  s_nop 0"

    def arrive_wait(self, name, dbg_off, mb_off, sleep):
        if name in str(self.opt.get("skip", "")).split("+"):
            self.A("s_lshl_b32 s49, s42, 9")
            self.A(f"s_add_u32 s49, s49, {WS_SYNC}")
            self.A("v_mov_b32 v51, s49")
            self.spin_init()
            return
        self.arrive_wait2(name, dbg_off, mb_off, sleep)

    def arrive_wait2(self, name, dbg_off, mb_off, sleep):
        A = self.A
        if dbg_off is None:
            A("s_lshl_b32 s49, s42, 9")
            A(f"s_add_u32 s49, s49, {WS_SYNC}")
            A("v_mov_b32 v51, s49")
        A("s_waitcnt vmcnt(0)")
        A("s_mov_b64 exec, 1")
        if dbg_off == "fin":
            A(f"global_atomic_add v4, v51, v30, s[40:41] offset:4 sc0 sc1")
        elif dbg_off is None:
            A(f"global_atomic_add v4, v51, v30, s[40:41] sc0 sc1")
        else:
            A(f"global_atomic_add v4, v3, v30, s[38:39] offset:{dbg_off} sc0 sc1")
        self.spin_init()
        A("s_waitcnt vmcnt(0)")
        A("v_readfirstlane_b32 s57, v4")
        A("s_nop 3")
        A("s_and_b32 s57, s57, 31")
        A("s_cmp_lg_u32 s57, 31")
        A(f"s_cbranch_scc1 L_aw_{name}")
        gm = self.opt.get("gomode", "store")
        if gm == "atomic":
            A("s_mov_b32 exec_lo, -1")
            A(f"global_atomic_add v38, v30, s[40:41] offset:{mb_off} sc1")
        elif gm == "sector" and name == "fin":
            mb_off = 64
            A("s_mov_b64 exec, -1")
            A("global_store_dwordx4 v59, v[60:63], s[40:41] offset:64 sc1")
            A("global_store_dwordx4 v59, v[60:63], s[40:41] offset:2112 sc1")
        else:
            A("s_mov_b32 exec_lo, -1")
            A(f"global_store_dword v38, v30, s[40:41] offset:{mb_off} sc1")
        A(f"s_branch L_ad_{name}")
        self.lab(f"L_aw_{name}")
        A(f"global_load_dword v4, v39, s[40:41] offset:{mb_off} sc1")
        A("s_waitcnt vmcnt(0)")
        A("v_readfirstlane_b32 s57, v4")
        A("s_nop 3")
        A("s_cmp_lg_u32 s57, 0")
        A(f"s_cbranch_scc1 L_ad_{name}")
        self.spin_tail(f"L_aw_{name}", f"L_ad_{name}", sleep)
        self.lab(f"L_ad_{name}")
        A("s_mov_b64 exec, -1")

    def fin_wait(self, tag=''):
        A = self.A
        A(f"v_mov_b32 v27, {FINF}")
        A("v_and_b32 v26, 3, v1")
        A(f"v_lshlrev_b32 v26, 2, v26")
        A(f"v_add_u32 v26, {FIN}, v26")
        self.spin_init()
        self.lab("L_finw" + tag)
        A("ds_read_b32 v28, v27")
        A("ds_read_b32 v24, v26")
        A("ds_read_b32 v25, v26 offset:16")
        A("s_waitcnt lgkmcnt(0)")
        A("v_readfirstlane_b32 s57, v28")
        A("s_nop 3")
        A("s_cmp_lg_u32 s57, 0")
        A("s_cbranch_scc1 L_find" + tag)
        self.spin_tail("L_finw" + tag, "L_find" + tag, 1)
        self.lab("L_find" + tag)
        A("v_sub_f32 v24, v22, v24")
        A("v_mul_f32 v24, s59, v24")
        A("v_exp_f32 v24, v24")
        self.nop(1)
        A("v_mul_f32 v24, v24, v25")
        A("v_and_b32 v26, 3, v1")
        A("v_lshlrev_b32 v26, 9, v26")
        A("v_lshrrev_b32 v27, 4, v1")
        A("v_lshl_add_u32 v26, v27, 4, v26")
        A("s_lshl_b32 s57, s3, 11")
        A(f"s_add_u32 s57, s57, {PART}")
        A("v_add_u32 v26, s57, v26")
        A("v_and_b32 v34, 15, v1")
        A("v_and_b32 v28, 7, v1")
        A("v_lshl_add_u32 v28, v27, 3, v28")
        A("v_lshrrev_b32 v29, 3, v34")
        A("v_lshl_add_u32 v28, v29, 8, v28")
        A("v_lshlrev_b32 v29, 2, v28")
        A("s_lshl_b32 s57, s3, 8")
        A(f"s_add_u32 s57, s57, {PART}")
        A("v_add_u32 v29, s57, v29")
        A("v_cmp_eq_u32 s[62:63], 8, v34" if not self.opt.get("ts") else "v_cmp_eq_u32 s[80:81], 8, v34")
        A("v_cmp_eq_u32 s[64:65], 7, v34")
        A("v_min_u32 v35, 8, v34")
        A("v_subrev_u32 v36, 8, v34")
        self.nop(1)
        A("v_cndmask_b32 v36, v36, 8, s[64:65]")
        A("v_lshlrev_b32 v37, 6, v27")
        A("s_lshl_b32 s57, s42, 12")
        A("s_lshl_b32 s56, s3, 9")
        A("s_add_u32 s57, s57, s56")
        A(f"s_add_u32 s57, s57, {WS_O2}")
        A("v_lshl_add_u32 v32, v35, 2, v37")
        A("v_add_u32 v32, s57, v32")
        A("v_lshl_add_u32 v33, v36, 2, v37")
        A("v_add_u32 v33, s57, v33")

    def helper(self):
        A = self.A
        opt = self.opt
        X = 8; T = 16; XP = 24
        tsn = (1 if opt.get("ts") else 0) if opt.get("ts") != "end" else 0
        if opt.get("nohelp"):
            A("s_waitcnt lgkmcnt(0)")
            self.ts_entry()
            A(f"v_mov_b32 v29, {FINF}")
            A("v_mov_b32 v30, 1")
            A("ds_write_b32 v29, v30")
            A("s_waitcnt lgkmcnt(0)")
            A("s_barrier")
            A("s_barrier")
            A("s_endpgm")
        A("v_lshlrev_b32 v28, 2, v1")
        A(f"v_add_u32 v28, {MLF}, v28")
        A("v_mov_b32 v32, 0")
        A("s_mov_b64 exec, 0xffffff")
        A("ds_write_b32 v28, v32")
        A("s_mov_b64 exec, -1")
        A("v_lshlrev_b32 v2, 4, v1")
        A("s_lshr_b32 s60, s43, 2")
        A("s_and_b32 s61, s43, 3")
        A("s_lshl_b32 s51, s60, 7")
        A("s_lshl_b32 s49, s42, 4")
        A("s_add_u32 s51, s51, s49")
        A("s_lshl_b32 s49, s61, 2")
        A("s_add_u32 s51, s51, s49")
        A("v_lshrrev_b32 v3, 3, v1")
        A("v_lshlrev_b32 v3, 13, v3")
        A("v_and_b32 v4, 7, v1")
        A("v_lshl_or_b32 v3, v4, 4, v3")
        A("s_lshl_b32 s48, s42, 10")
        A("s_lshl_b32 s49, s43, 5")
        A("s_add_u32 s48, s48, s49")
        A("s_and_b32 s44, s43, 7")
        A("s_lshr_b32 s45, s43, 3")
        A("s_lshl_b32 s56, s45, 20")
        A("s_lshl_b32 s49, s42, 10")
        A("s_add_u32 s56, s56, s49")
        A("s_lshl_b32 s49, s44, 7")
        A("s_add_u32 s56, s56, s49")
        A("s_waitcnt lgkmcnt(0)")
        A("global_load_dwordx4 v[24:27], v2, s[16:17]")
        A("s_mov_b32 s52, s22")
        A("s_and_b32 s53, s23, 0xffff")
        A(f"s_mov_b32 s54, {4 << 20}")
        A("s_mov_b32 s55, 0x20000")
        st = len(self.L)
        for k in range(16):
            A(f"s_mov_b32 m0, {WQ + 1024*k}")
            A("s_nop 0")
            A(f"buffer_load_dwordx4 v3, s[52:55], s56 offen nt lds")
            A("s_add_u32 s56, s56, 65536")
        self.skipmem("wq", st)
        A("s_barrier")
        if opt.get("ts") != "end":
            self.ts_entry()
        self.ts(0)
        A("s_lshl_b32 s49, s47, 7")
        A(f"s_add_u32 s49, s49, {WS_O2}")
        A("v_add_u32 v28, s49, v2")
        for i in range(4):
            A(f"v_mov_b32 v{32+i}, 0")
        A("s_mov_b64 exec, 0xff")
        A("global_store_dwordx4 v28, v[32:35], s[40:41] sc1")
        A("s_lshl_b32 s49, s51, 1")
        A(f"s_add_u32 s49, s49, {WS_G}")
        A("v_mov_b32 v28, s49")
        A("s_mov_b64 exec, 1")
        A("global_store_dwordx2 v28, v[32:33], s[40:41] sc1")
        A("s_mov_b64 exec, -1")
        A("s_lshl_b32 s46, s47, 7")
        A(f"s_add_u32 s46, s46, {WS_MB}")
        A("v_add_u32 v28, s46, v2")
        A("s_lshl_b32 s49, s42, 9")
        A(f"s_add_u32 s49, s49, {WS_SYNC}")
        A("v_mov_b32 v29, s49")
        A("v_cmp_eq_u32 vcc, 8, v1")
        self.nop(2)
        A("v_cndmask_b32 v28, v28, v29, vcc")
        A("s_movk_i32 s56, 0xff")
        A("s_cmp_eq_u32 s43, 0")
        A("s_cselect_b32 exec_lo, 0x1ff, s56")
        A("s_mov_b32 exec_hi, 0")
        A("global_store_dwordx4 v28, v[32:35], s[40:41] sc1")
        A("s_mov_b64 exec, -1")
        A("s_or_b32 s49, s42, s61")
        A("s_cmp_lg_u32 s49, 0")
        A("s_cbranch_scc1 L_nozs")
        A("s_lshl_b32 s49, s60, 9")
        A(f"s_add_u32 s49, s49, {WS_SACC}")
        A("v_add_u32 v28, s49, v2")
        A("s_mov_b32 exec_hi, 0")
        A("global_store_dwordx4 v28, v[32:35], s[40:41] sc1")
        A("s_mov_b64 exec, -1")
        self.lab("L_nozs")
        A(f"s_waitcnt vmcnt({(19 + 2*tsn) if not opt.get('skip') else 0})")
        self.ts(13)
        for i in range(4):
            A(f"v_lshlrev_b32 v{X+2*i}, 16, v{XP+i}")
            A(f"v_and_b32 v{X+2*i+1}, 0xffff0000, v{XP+i}")
        self.layernorm(X, T, XP)
        A(f"v_add_u32 v28, {XN}, v2")
        A(f"ds_write_b128 v28, v[{XP}:{XP+3}]")
        A("v_lshrrev_b32 v29, 4, v1")
        A("v_lshlrev_b32 v30, 4, v29")
        A("s_lshl_b32 s49, s45, 8")
        A(f"s_add_u32 s49, s49, {XN}")
        A("v_add_u32 v30, s49, v30")
        A("v_bfe_u32 v31, v1, 2, 2")
        A("v_lshl_add_u32 v31, v29, 3, v31")
        A("v_lshlrev_b32 v31, 7, v31")
        A("v_and_b32 v28, 3, v1")
        A("v_lshl_add_u32 v31, v28, 3, v31")
        A(f"v_add_u32 v31, {WQ}, v31")
        A("v_and_b32 v28, 15, v1")
        A("v_lshlrev_b32 v28, 6, v28")
        A("v_lshl_add_u32 v29, v29, 4, v28")
        A("s_lshl_b32 s49, s42, 13")
        A("s_lshl_b32 s56, s45, 11")
        A("s_add_u32 s49, s49, s56")
        A("s_lshl_b32 s56, s44, 8")
        A("s_add_u32 s49, s49, s56")
        A(f"s_add_u32 s49, s49, {WS_QP}")
        A("v_add_u32 v29, s49, v29")
        A("v_and_b32 v28, 15, v1")
        A("s_waitcnt lgkmcnt(0)")
        XO = 64; WO = 128; QD = 32
        for ks in range(4):
            A(f"ds_read_b128 v[{XO+4*ks}:{XO+4*ks+3}], v30 offset:{64*ks}")
        A("s_waitcnt vmcnt(0)")
        self.ts(1)
        for ks in range(4):
            for ct in range(4):
                r = WO + 16 * ks + 4 * ct
                A(f"ds_read_b64_tr_b16 v[{r}:{r+1}], v31 offset:{4096*ks + 32*ct}")
                A(f"ds_read_b64_tr_b16 v[{r+2}:{r+3}], v31 offset:{4096*ks + 32*ct + 512}")
            A("s_waitcnt lgkmcnt(0)")
            for ct in range(4):
                r = WO + 16 * ks + 4 * ct
                d = QD + 4 * ct
                c = "0" if ks == 0 else f"v[{d}:{d+3}]"
                A(f"v_mfma_f32_16x16x32_bf16 v[{d}:{d+3}], v[{r}:{r+3}], v[{XO+4*ks}:{XO+4*ks+3}], {c}")
        A("v_cmp_eq_u32 s[52:53], 1, v28")
        A("v_cmp_eq_u32 s[54:55], 2, v28")
        A("v_cmp_eq_u32 vcc, 3, v28")
        self.nop(6)
        for r in range(4):
            A(f"v_cndmask_b32 v{QD+r}, v{QD+r}, v{QD+4+r}, s[52:53]")
        for r in range(4):
            A(f"v_cndmask_b32 v{QD+r}, v{QD+r}, v{QD+8+r}, s[54:55]")
        for r in range(4):
            A(f"v_cndmask_b32 v{QD+r}, v{QD+r}, v{QD+12+r}, vcc")
        A("s_mov_b32 exec_lo, 0x000f000f")
        A("s_mov_b32 exec_hi, 0x000f000f")
        A(f"global_store_dwordx4 v29, v[{QD}:{QD+3}], s[40:41] sc1")
        A("s_mov_b64 exec, -1")
        A("s_waitcnt vmcnt(0)")
        A("s_lshl_b32 s49, s42, 5")
        A("v_mov_b32 v3, s49")
        A("v_mov_b32 v30, 1")
        A("s_lshl_b32 s49, s42, 12")
        A(f"s_add_u32 s49, s49, {WS_MB}")
        A("v_lshlrev_b32 v38, 7, v1")
        A("v_add_u32 v38, s49, v38")
        A("v_mov_b32 v39, s46")
        self.ts(2)
        self.arrive_wait("q", 0, 0, opt.get("qsleep", 2))
        if opt.get("ts") and opt.get("ts") != "end":
            A("s_mov_b64 exec, 1")
            A("v_mov_b32 v250, s50")
            A("v_mov_b32 v251, 0")
            A("v_mov_b32 v252, s62")
            A("global_store_dwordx2 v252, v[250:251], s[40:41] offset:128")
            A("s_mov_b64 exec, -1")
        self.ts(3)
        A("s_lshl_b32 s49, s42, 13")
        A(f"s_add_u32 s49, s49, {WS_QP}")
        A("v_lshlrev_b32 v28, 5, v1")
        A("v_add_u32 v28, s49, v28")
        A("v_add_u32 v29, 4096, v28")
        st = len(self.L)
        for rb in range(4):
            for hh in range(2):
                r = 64 + 8 * rb + 4 * hh
                A(f"global_load_dwordx4 v[{r}:{r+3}], v{28 + rb // 2}, s[40:41] offset:{2048*(rb%2) + 16*hh} sc1 {opt.get('qldf', '')}")
        self.skipmem("qld", st)
        A(f"v_add_u32 v28, {QS}, v2")
        A("s_waitcnt vmcnt(0)")
        for k in range(8):
            A(f"v_add_f32 v{64+k}, v{64+k}, v{72+k}")
            A(f"v_add_f32 v{80+k}, v{80+k}, v{88+k}")
        for k in range(8):
            A(f"v_add_f32 v{64+k}, v{64+k}, v{80+k}")
        for k in range(4):
            A(f"v_cvt_pk_bf16_f32 v{32+k}, v{64+2*k}, v{65+2*k}")
        A("ds_write_b128 v28, v[32:35]")
        A("s_waitcnt lgkmcnt(0)")
        A("s_barrier")
        self.ts(4)
        if opt.get("span"):
            A("s_memrealtime s[68:69]")
        A(f"s_mov_b32 s59, {f32(LOG2E)}")
        if not opt.get("wolate"):
            self.wo_dma()
        st = len(self.L)
        for a, (lo, base) in enumerate(((28, WST), (30, WST + 4096), (32, WST + 8192))):
            A(f"s_mov_b32 s52, s{lo}")
            A(f"s_and_b32 s53, s{lo+1}, 0xffff")
            A("s_mov_b32 s54, 3584")
            A("s_mov_b32 s55, 0x20000")
            A(f"s_mov_b32 m0, {base}")
            A("s_nop 0")
            for q in range(4):
                A(f"buffer_load_dwordx4 v2, s[52:55], 0 offen offset:{1024*q} lds")
        A("s_lshl_b32 s49, s60, 7")
        A("v_lshlrev_b32 v43, 1, v1")
        A("v_add_u32 v43, s49, v43")
        A("global_load_ushort v40, v43, s[16:17]")
        A("v_mov_b32 v29, 0")
        A("global_load_ushort v41, v29, s[34:35]")
        self.skipmem("w1", st)
        self.layernorm(X, T, XP)
        A(f"v_add_u32 v28, {XN}, v2")
        A(f"ds_write_b128 v28, v[{XP}:{XP+3}]")
        A(f"v_mov_b32 v28, s51")
        A(f"v_add_u32 v28, {XN}, v28")
        A("s_waitcnt lgkmcnt(0)")
        A("ds_read_b32 v42, v28")
        A("v_lshrrev_b32 v29, 4, v1")
        A("v_bfe_u32 v57, v1, 2, 2")
        A("v_lshl_add_u32 v57, v29, 3, v57")
        A("v_lshlrev_b32 v57, 7, v57")
        A("v_and_b32 v28, 3, v1")
        A("v_lshl_add_u32 v57, v28, 3, v57")
        A(f"v_add_u32 v57, {WQ}, v57")
        A("s_waitcnt vmcnt(0) lgkmcnt(0)")
        WP = 128
        if not opt.get("wolate"):
            self.wo_tr(WP)
            A("s_waitcnt lgkmcnt(0)")
        A("v_lshlrev_b32 v44, 16, v42")
        A("v_and_b32 v45, 0xffff0000, v42")
        A("v_mov_b32 v46, 0")
        A("v_mov_b32 v47, 0")
        A(f"v_lshlrev_b32 v28, 2, v1")
        A(f"v_add_u32 v28, {WST}, v28")
        A("s_mov_b32 s57, 14")
        c1 = -2.0 * 0.7978845608028654 * LOG2E
        A(f"s_mov_b32 s58, {f32(c1)}")
        A(f"s_mov_b32 s56, {f32(c1 * 0.044715)}")
        self.lab("L_gate")
        A("ds_read_b32 v48, v28")
        A("ds_read_b32 v49, v28 offset:4096")
        A("ds_read_b32 v50, v28 offset:8192")
        A("v_add_u32 v28, 256, v28")
        A("s_waitcnt lgkmcnt(0)")
        A("v_lshlrev_b32 v51, 16, v48")
        A("v_and_b32 v52, 0xffff0000, v48")
        A("v_lshlrev_b32 v53, 16, v49")
        A("v_and_b32 v54, 0xffff0000, v49")
        A("v_lshlrev_b32 v55, 16, v50")
        A("v_and_b32 v56, 0xffff0000, v50")
        U = [8, 9, 10, 11]; Z = [12, 13, 14, 15]
        combos = [(44, 51, 53, 55, 46), (44, 52, 54, 56, 46), (45, 51, 53, 55, 47), (45, 52, 54, 56, 47)]
        for k, (h, w1, b1, w2, acc) in enumerate(combos):
            A(f"v_mul_f32 v{U[k]}, v{h}, v{w1}")
        for k in range(4):
            self.bf16r(f"v{U[k]}")
        for k, (h, w1, b1, w2, acc) in enumerate(combos):
            A(f"v_add_f32 v{U[k]}, v{U[k]}, v{b1}")
        for k in range(4):
            self.bf16r(f"v{U[k]}")
        for k in range(4):
            A(f"v_mul_f32 v{Z[k]}, v{U[k]}, v{U[k]}")
        for k in range(4):
            A(f"v_mul_f32 v{Z[k]}, s56, v{Z[k]}")
        for k in range(4):
            A(f"v_add_f32 v{Z[k]}, s58, v{Z[k]}")
        for k in range(4):
            A(f"v_mul_f32 v{Z[k]}, v{Z[k]}, v{U[k]}")
        for k in range(4):
            A(f"v_exp_f32 v{Z[k]}, v{Z[k]}")
        self.nop(1)
        for k in range(4):
            A(f"v_add_f32 v{Z[k]}, 1.0, v{Z[k]}")
        for k in range(4):
            A(f"v_rcp_f32 v{Z[k]}, v{Z[k]}")
        self.nop(1)
        for k in range(4):
            A(f"v_mul_f32 v{U[k]}, v{U[k]}, v{Z[k]}")
        for k in range(4):
            self.bf16r(f"v{U[k]}")
        for k, (h, w1, b1, w2, acc) in enumerate(combos):
            A(f"v_fmac_f32 v{acc}, v{U[k]}, v{w2}")
        A("s_sub_u32 s57, s57, 1")
        A("s_cmp_lg_u32 s57, 0")
        A("s_cbranch_scc1 L_gate")
        A("s_waitcnt vmcnt(0)")
        self.allreduce64("add", "v46", "v16")
        self.allreduce64("add", "v47", "v16")
        A("v_lshlrev_b32 v41, 16, v41")
        for a in (46, 47):
            self.bf16r(f"v{a}")
            A(f"v_add_f32 v{a}, v{a}, v41")
            self.bf16r(f"v{a}")
            A(f"v_mul_f32 v16, s59, v{a}")
            A("v_exp_f32 v16, -v16")
            self.nop(1)
            A("v_add_f32 v16, 1.0, v16")
            A("v_rcp_f32 v17, v16")
            self.nop(1)
            A(f"v_mul_f32 v18, v{a}, v17")
            A(f"v_fma_f32 v19, -v18, v16, v{a}")
            A("v_fma_f32 v19, v19, v17, v18")
            A("v_cmp_gt_f32 vcc, 0x7f000000, v16")
            self.nop(2)
            A(f"v_cndmask_b32 v{a}, v18, v19, vcc")
            self.bf16r(f"v{a}")
        A("v_bfrev_b32 v16, 1")
        A("v_cmp_eq_u32 vcc, 0, v46")
        A("v_cmp_eq_u32 s[52:53], 0, v47")
        self.nop(2)
        A("v_cndmask_b32 v46, v46, v16, vcc")
        A("v_cndmask_b32 v47, v47, v16, s[52:53]")
        A("s_lshl_b32 s49, s51, 1")
        A(f"s_add_u32 s49, s49, {WS_G}")
        A("v_mov_b32 v28, s49")
        A("s_mov_b64 exec, 1")
        A("global_store_dwordx2 v28, v[46:47], s[40:41] sc1")
        A("s_mov_b64 exec, -1")
        self.ts(5)
        A(f"v_mov_b32 v28, {MLF}")
        A("v_and_b32 v29, 3, v1")
        A("v_lshlrev_b32 v29, 2, v29")
        A(f"v_add_u32 v29, {ML}, v29")
        self.spin_init()
        self.lab("L_mlw")
        A("ds_read_b128 v[4:7], v28")
        for w in range(4):
            A(f"ds_read_b32 v{8+w}, v29 offset:{32*w}")
            A(f"ds_read_b32 v{12+w}, v29 offset:{32*w+16}")
        A("s_waitcnt lgkmcnt(0)")
        A("v_and_b32 v4, v4, v5")
        A("v_and_b32 v6, v6, v7")
        A("v_and_b32 v4, v4, v6")
        A("s_nop 0")
        A("v_readfirstlane_b32 s57, v4")
        A("s_nop 3")
        A("s_cmp_lg_u32 s57, 0")
        A("s_cbranch_scc1 L_mld")
        self.spin_tail("L_mlw", "L_mld", 8)
        self.lab("L_mld")
        self.ts(6)
        A("v_max3_f32 v16, v8, v9, v10")
        A("v_max_f32 v16, v16, v11")
        for w in range(4):
            A(f"v_sub_f32 v{8+w}, v{8+w}, v16")
        for w in range(4):
            A(f"v_mul_f32 v{8+w}, s59, v{8+w}")
        for w in range(4):
            A(f"v_exp_f32 v{8+w}, v{8+w}")
        self.nop(1)
        A("v_mul_f32 v17, v8, v12")
        for w in range(1, 4):
            A(f"v_fmac_f32 v17, v{8+w}, v{12+w}")
        A("s_lshl_b32 s49, s47, 5")
        A(f"s_add_u32 s49, s49, {WS_ML}")
        A("v_lshlrev_b32 v28, 3, v1")
        A("v_add_u32 v28, s49, v28")
        A("v_mov_b32 v30, 1")
        A("s_mov_b64 exec, 15")
        A("global_store_dwordx2 v28, v[16:17], s[40:41] sc1")
        A("s_mov_b64 exec, -1")
        A("v_lshlrev_b32 v28, 5, v1")
        self.spin_init()
        A("s_mov_b64 exec, 0xff")
        self.lab("L_allw")
        A("global_load_dword v4, v28, s[38:39] sc1")
        A("s_waitcnt vmcnt(0)")
        A(f"v_cmp_le_u32 vcc, {0 if 'q' in str(opt.get('skip', '')).split('+') else 32}, v4")
        A("s_nop 1")
        A("s_cmp_eq_u64 vcc, exec")
        A("s_cbranch_scc1 L_alld")
        self.spin_tail("L_allw", "L_alld", 32)
        self.lab("L_alld")
        A("s_mov_b64 exec, -1")
        self.arrive_wait("ml", None, 4, opt.get("mlsleep", 16))
        self.ts(7)
        A("s_lshl_b32 s49, s42, 10")
        A(f"s_add_u32 s49, s49, {WS_ML}")
        A("v_lshlrev_b32 v28, 3, v1")
        A("v_add_u32 v28, s49, v28")
        A("global_load_dwordx2 v[8:9], v28, s[40:41] sc1")
        A("global_load_dwordx2 v[10:11], v28, s[40:41] offset:512 sc1")
        A("s_waitcnt vmcnt(0)")
        A("v_max_f32 v16, v8, v10")
        for r in (4, 8):
            self.nop(2)
            A(f"v_max_f32_dpp v16, v16, v16 row_ror:{r} row_mask:0xf bank_mask:0xf")
        self.rows_reduce("max", "v16", "v17")
        A("v_sub_f32 v8, v8, v16")
        A("v_sub_f32 v10, v10, v16")
        A("v_mul_f32 v8, s59, v8")
        A("v_mul_f32 v10, s59, v10")
        A("v_exp_f32 v8, v8")
        A("v_exp_f32 v10, v10")
        self.nop(1)
        A("v_mul_f32 v17, v8, v9")
        A("v_fmac_f32 v17, v10, v11")
        for r in (4, 8):
            self.nop(2)
            A(f"v_add_f32_dpp v17, v17, v17 row_ror:{r} row_mask:0xf bank_mask:0xf")
        self.rows_reduce("add", "v17", "v18")
        A("v_rcp_f32 v18, v17")
        self.nop(1)
        A("v_fma_f32 v19, -v17, v18, 1.0")
        A("v_fmac_f32 v18, v19, v18")
        A("v_lshlrev_b32 v28, 2, v1")
        A(f"v_add_u32 v28, {FIN}, v28")
        A(f"v_mov_b32 v29, {FINF}")
        A("s_mov_b64 exec, 15")
        A("ds_write_b32 v28, v16")
        A("ds_write_b32 v28, v18 offset:16")
        A("s_waitcnt lgkmcnt(0)")
        A("s_mov_b64 exec, 1")
        A("ds_write_b32 v29, v30")
        A("s_mov_b64 exec, -1")
        A("v_lshrrev_b32 v59, 2, v1")
        A("v_lshlrev_b32 v59, 7, v59")
        A("v_and_b32 v60, 3, v1")
        A("v_lshl_add_u32 v59, v60, 4, v59")
        A("s_lshl_b32 s49, s42, 12")
        A(f"s_add_u32 s49, s49, {WS_MB}")
        A("v_add_u32 v59, s49, v59")
        for i in range(4):
            A(f"v_mov_b32 v{60+i}, 1")
        A("v_lshrrev_b32 v33, 4, v1")
        A("v_and_b32 v34, 15, v1")
        A("v_and_b32 v28, 7, v1")
        A("v_lshl_add_u32 v28, v33, 3, v28")
        A("v_lshrrev_b32 v29, 3, v34")
        A("v_lshl_add_u32 v28, v29, 8, v28")
        A("v_lshlrev_b32 v29, 2, v28")
        A(f"v_add_u32 v29, {PART}, v29")
        A("v_cmp_eq_u32 s[68:69], 8, v34")
        A("v_cmp_eq_u32 s[70:71], 7, v34")
        A("v_min_u32 v35, 8, v34")
        A("v_subrev_u32 v36, 8, v34")
        self.nop(1)
        A("v_cndmask_b32 v36, v36, 8, s[70:71]")
        A("v_lshlrev_b32 v37, 6, v33")
        A("s_lshl_b32 s49, s42, 12")
        A(f"s_add_u32 s49, s49, {WS_O2}")
        A("v_lshl_add_u32 v32, v35, 2, v37")
        A("v_add_u32 v32, s49, v32")
        A("v_lshl_add_u32 v48, v36, 2, v37")
        A("v_add_u32 v48, s49, v48")
        A("v_add_u32 v48, 2048, v48")
        A("v_and_b32 v31, 3, v1")
        A("v_lshl_add_u32 v31, v31, 4, v37")
        A("s_lshl_b32 s56, s61, 10")
        A("s_add_u32 s49, s49, s56")
        A("v_add_u32 v31, s49, v31")
        A("s_lshl_b32 s49, s60, 9")
        A(f"s_add_u32 s49, s49, {WS_SACC}")
        A("v_lshlrev_b32 v37, 7, v33")
        A("v_lshl_add_u32 v49, v35, 2, v37")
        A("v_add_u32 v49, s49, v49")
        A("v_lshl_add_u32 v50, v36, 2, v37")
        A("v_add_u32 v50, s49, v50")
        A("v_cmp_eq_u32 s[52:53], 1, v33")
        A("v_cmp_eq_u32 s[54:55], 2, v33")
        A("v_cmp_eq_u32 s[44:45], 3, v33")
        A("v_cmp_gt_u32 s[72:73], 8, v34")
        A("s_lshl_b32 s49, s60, 8")
        A(f"s_add_u32 s49, s49, {WS_G}")
        A("v_lshlrev_b32 v36, 2, v1")
        A("v_add_u32 v36, s49, v36")
        self.spin_init()
        self.lab("L_gw")
        A("global_load_dword v41, v36, s[40:41] sc1")
        A("s_waitcnt vmcnt(0)")
        A("v_cmp_eq_u32 vcc, 0, v41")
        A("s_nop 1")
        A("s_cmp_eq_u64 vcc, 0")
        A("s_cbranch_scc1 L_gd")
        self.spin_tail("L_gw", "L_gd", 16)
        self.lab("L_gd")
        A("v_lshlrev_b32 v40, 16, v40")
        self.ts(8)
        A("s_waitcnt vmcnt(0) lgkmcnt(0)")
        if opt.get("wolate") and not opt.get("onetrig"):
            A(f"v_mov_b32 v28, {WOF}")
            self.spin_init()
            self.lab("L_wow")
            A("ds_read_b32 v4, v28")
            A("s_waitcnt lgkmcnt(0)")
            A("v_readfirstlane_b32 s57, v4")
            A("s_nop 3")
            A("s_cmp_lg_u32 s57, 0")
            A("s_cbranch_scc1 L_wod")
            self.spin_tail("L_wow", "L_wod", 4)
            self.lab("L_wod")
        if opt.get("wolate") and not opt.get("onetrig"):
            A("s_mov_b64 s[76:77], s[52:53]")
            A("s_mov_b64 s[78:79], s[54:55]")
            A("v_mov_b32 v58, v29")
            self.wo_dma()
            A("v_mov_b32 v29, v58")
            A("s_mov_b64 s[52:53], s[76:77]")
            A("s_mov_b64 s[54:55], s[78:79]")
        A(f"v_mov_b32 v28, {PREC}")
        A("s_lshl_b32 s49, s42, 9")
        A(f"s_add_u32 s49, s49, {WS_SYNC + 4}")
        A("s_mov_b32 s58, 1")
        self.spin_init()
        self.lab("L_prw")
        A("ds_read_b32 v4, v28")
        A("s_waitcnt lgkmcnt(0)")
        A("v_readfirstlane_b32 s57, v4")
        A("s_nop 3")
        A("s_cmp_ge_u32 s57, 4")
        A("s_cbranch_scc1 L_prd")
        self.spin_tail("L_prw", "L_prd", 1)
        self.lab("L_prd")
        A("s_atomic_add s58, s[40:41], s49 glc")
        if opt.get("onetrig"):
            A("s_mov_b64 s[76:77], s[52:53]")
            A("s_mov_b64 s[78:79], s[54:55]")
            self.wo_dma()
            A("s_mov_b64 s[52:53], s[76:77]")
            A("s_mov_b64 s[54:55], s[78:79]")
        A("s_waitcnt lgkmcnt(0)")
        A("s_and_b32 s58, s58, 31")
        A("s_cmp_lg_u32 s58, 31")
        A("s_cbranch_scc1 L_nogo")
        A("s_mov_b32 exec_hi, 0")
        A("global_store_dword v38, v30, s[40:41] offset:8 sc1")
        A("s_mov_b64 exec, -1")
        self.lab("L_nogo")
        A("s_barrier")
        self.ts(9)
        A("s_waitcnt vmcnt(0)")
        self.wo_tr(WP)
        A("s_mov_b64 exec, 1")
        self.spin_init()
        A("s_cmp_eq_u32 s58, 31")
        A("s_cbranch_scc1 L_ad_fin")
        self.lab("L_aw_fin")
        A("global_load_dword v4, v39, s[40:41] offset:8 sc1")
        A("s_waitcnt vmcnt(0)")
        A("v_readfirstlane_b32 s57, v4")
        A("s_nop 3")
        A("s_cmp_lg_u32 s57, 0")
        A("s_cbranch_scc1 L_ad_fin")
        self.spin_tail("L_aw_fin", "L_ad_fin", opt.get("fsleep", 1))
        self.lab("L_ad_fin")
        OR = 64; OQ = 80; OB = 112; SD = 8
        A("s_mov_b32 s56, 0x00040004")
        A("s_mov_b32 s57, 0x00040004")
        A("s_mov_b32 exec_lo, 0x00070007")
        A("s_mov_b32 exec_hi, 0x00070007")
        self.spin_init()
        self.lab("L_ow")
        for ks in range(4):
            A(f"global_load_dwordx4 v[{OR+4*ks}:{OR+4*ks+3}], v31, s[40:41] offset:{256*ks} sc1")
        A("s_waitcnt vmcnt(0)")
        A(f"v_min3_f32 v4, v{OR}, v{OR+4}, v{OR+8}")
        A(f"v_min_f32 v4, v4, v{OR+12}")
        A("v_cmp_eq_f32 vcc, 0x42000000, v4")
        A("s_nop 1")
        A("s_and_b64 vcc, vcc, s[56:57]")
        A("s_cmp_eq_u64 vcc, s[56:57]")
        A("s_cbranch_scc1 L_od")
        self.spin_tail("L_ow", "L_od", opt.get("osleep", 1))
        self.lab("L_od")
        A("s_mov_b64 exec, -1")
        self.ts(11)
        for ks in range(4):
            A(f"v_cvt_pk_bf16_f32 v{OQ+2*ks}, v{OR+4*ks}, v{OR+4*ks+1}")
            A(f"v_cvt_pk_bf16_f32 v{OQ+2*ks+1}, v{OR+4*ks+2}, v{OR+4*ks+3}")
        self.nop(1)
        for ks in range(4):
            for hh in range(2):
                for k in range(2):
                    A(f"v_mov_b32_dpp v{OB+4*ks+2*hh+k}, v{OQ+2*ks+k} row_newbcast:{hh} row_mask:0xf bank_mask:0xf")
        A("s_waitcnt lgkmcnt(0)")
        self.nop(2)
        for ks in range(4):
            for ct in range(4):
                r = WP + 16 * ks + 4 * ct
                d = SD + 4 * ct
                c = "0" if ks == 0 else f"v[{d}:{d+3}]"
                A(f"v_mfma_f32_16x16x32_bf16 v[{d}:{d+3}], v[{OB+4*ks}:{OB+4*ks+3}], v[{r}:{r+3}], {c}")
        self.nop(6)
        A(f"v_cndmask_b32 v{SD}, v{SD}, v{SD+4}, s[52:53]")
        A(f"v_cndmask_b32 v{SD}, v{SD}, v{SD+8}, s[54:55]")
        A(f"v_cndmask_b32 v{SD}, v{SD}, v{SD+12}, s[44:45]")
        A(f"v_cndmask_b32 v9, v{SD}, 1.0, s[68:69]")
        A(f"v_cndmask_b32 v10, v{SD}, 1.0, s[70:71]")
        A("s_mov_b32 exec_lo, 0x01ff01ff")
        A("s_mov_b32 exec_hi, 0x01ff01ff")
        A("global_atomic_add_f32 v12, v49, v9, s[40:41] sc0 sc1")
        A("s_mov_b32 exec_lo, 0xff80ff80")
        A("s_mov_b32 exec_hi, 0xff80ff80")
        A("global_atomic_add_f32 v13, v50, v10, s[40:41] offset:64 sc0 sc1")
        A("s_mov_b64 exec, -1")
        A("s_waitcnt vmcnt(0)")
        self.ts(14)
        A("v_mov_b32_dpp v14, v12 row_newbcast:8 row_mask:0xf bank_mask:0xf")
        A("v_mov_b32_dpp v15, v13 row_newbcast:7 row_mask:0xf bank_mask:0xf")
        A("v_cndmask_b32 v12, v13, v12, s[72:73]")
        A("v_cndmask_b32 v14, v15, v14, s[72:73]")
        A(f"v_add_f32 v8, v{SD}, v12")
        A("v_cmp_eq_f32 vcc, 0x41f80000, v14")
        self.bf16r("v8")
        A("v_mul_f32 v8, v8, v41")
        self.bf16r("v8")
        A("v_add_f32 v8, v8, v40")
        A("v_cvt_pk_bf16_f32 v8, v8, v8")
        A("s_and_b64 exec, exec, vcc")
        A("s_cbranch_scc0 L_end")
        A("global_store_short v43, v8, s[36:37]")
        A("s_mov_b64 exec, -1")
        self.ts(12)


if __name__ == "__main__":
    out = sys.argv[1]
    opt = {}
    for a in sys.argv[2:]:
        k, _, v = a.partition("=")
        opt[k] = (int(v) if v.lstrip("-").isdigit() else v) if v else True
    open(out, "w").write(G3(**opt).gen())
```

```python
import sys, struct
from gen import G, NAME, HEADER, f32, LOG2E, SCALE
from gen2 import G2
import gen
_ts0 = gen.G.ts
def _ts(self, slot, sreg="s[74:75]", vt=("v250", "v251", "v252")):
    return _ts0(self, slot, sreg, vt)
gen.G.ts = _ts

RING = 0
WQ = 131072
PART = 147456
WST = 147456
XN = 159744
QS = 160768
ML = 161792
MLF = ML + 128
FIN = ML + 160
FINF = ML + 192
WOF = ML + 196
PREC = ML + 200
SBC = ML + 208
MODE = ML + 212
LDS_BYTES = 162304

WS_Q = 0
WS_ML = 8192
WS_O = 16384
WS_SYNC = 32768
WS_GFIN = 32768 + 4096
WS_TS = 65536
WS_WT = 1 << 20
WS_QP = 786432


WS_SACC = 40960
WS_G = 49152
WS_O2 = 917504
WS_MB = 851968


class G3(G2):
    def gen(self):
        A = self.A
        opt = self.opt
        NT = opt.get("nt", "nt")
        self.L.append(HEADER.rstrip("\n"))
        self.L.append(f"; @launch grid=(256,1,1) block=(320,1,1) lds={LDS_BYTES}")
        self.L.append('.amdgcn_target "amdgcn-amd-amdhsa--gfx950"')
        self.L.append(".text")
        self.L.append(f".globl {NAME}_kernel")
        self.L.append(".p2align 8")
        self.L.append(f".type {NAME}_kernel,@function")
        self.lab(f"{NAME}_kernel")
        A("s_cmp_ge_u32 s2, 256")
        A("s_cbranch_scc1 L_end")
        if opt.get("ts") or opt.get("span"):
            A("s_memrealtime s[66:67]")
        A("s_load_dwordx16 s[16:31], s[0:1], 0")
        A("s_load_dwordx8 s[32:39], s[0:1], 64")
        A("s_load_dwordx2 s[40:41], s[0:1], 96")
        A("v_lshrrev_b32 v1, 6, v0")
        if opt.get("imb", 2) or opt.get("pair"):
            A("s_and_b32 s42, s2, 6")
            A("v_readfirstlane_b32 s3, v1")
            A("s_bfe_u32 s43, s2, 0x10003")
            A("s_or_b32 s42, s42, s43")
            A("s_lshr_b32 s43, s2, 4")
            A("s_lshl_b32 s43, s43, 1")
            A("s_and_b32 s44, s2, 1")
            A("s_or_b32 s43, s43, s44")
        else:
            A("s_and_b32 s42, s2, 7")
            A("v_readfirstlane_b32 s3, v1")
            A("s_lshr_b32 s43, s2, 3")
        if opt.get("hlast"):
            A("s_nop 2")
            A("s_add_u32 s3, s3, 1")
            A("s_cmp_eq_u32 s3, 5")
            A("s_cselect_b32 s3, 0, s3")
        A("v_and_b32 v1, 63, v0")
        A("s_lshl_b32 s47, s42, 5")
        A("s_add_u32 s47, s47, s43")
        if opt.get("ts"):
            A("s_lshl_b32 s62, s2, 3")
            A("s_add_u32 s62, s62, s3")
            A("s_cmp_eq_u32 s3, 0")
            A("s_cselect_b32 s63, 0, 3")
            A("s_add_u32 s62, s62, s63")
            A("s_lshl_b32 s62, s62, 8")
            A(f"s_add_u32 s62, s62, {WS_TS}")
        A("s_cmp_eq_u32 s3, 0")
        A("s_cbranch_scc1 L_helper")
        self.stream(NT)
        self.lab("L_helper")
        self.helper()
        self.lab("L_end")
        A("s_endpgm")
        self.L.append('.section .rodata,"a"')
        self.L.append(".p2align 6")
        self.L.append(f".amdhsa_kernel {NAME}_kernel")
        for s in ("next_free_vgpr 256", "next_free_sgpr 84", "accum_offset 256", "group_segment_fixed_size 0",
                  "kernarg_size 104", "user_sgpr_count 2", "user_sgpr_kernarg_segment_ptr 1",
                  "system_sgpr_workgroup_id_x 1", "float_denorm_mode_32 3"):
            self.L.append("  .amdhsa_" + s)
        self.L.append(".end_amdhsa_kernel")
        return "\n".join(self.L) + "\n"

    def ts(self, slot, *a, **k):
        if self.opt.get("ts") == "end" and slot != 12:
            return
        return G2.ts(self, slot, *a, **k)

    def sts(self, k):
        if not self.opt.get("ts"):
            return
        self.A(f"s_memrealtime s[{68+2*k}:{69+2*k}]")

    def sts_flush(self, n):
        if not self.opt.get("ts"):
            return
        A = self.A
        A("s_waitcnt lgkmcnt(0)")
        A("v_mov_b32 v26, s62")
        A("s_mov_b64 exec, 1")
        for k in range(n):
            A(f"v_mov_b32 v24, s{68+2*k}")
            A(f"v_mov_b32 v25, s{69+2*k}")
            A(f"global_store_dwordx2 v26, v[24:25], s[40:41] offset:{8*k}")
            A("s_nop 1")
        A("v_mov_b32 v24, s66")
        A("v_mov_b32 v25, s67")
        A(f"global_store_dwordx2 v26, v[24:25], s[40:41] offset:{8*15}")
        A("s_mov_b64 exec, -1")

    def stream(self, NT):
        A = self.A
        opt = self.opt
        D = opt.get("depth", 8)
        E = opt.get("imb", 2)
        NC = 32 - E
        VOFF = 2; KRD = 6; VRD = 10; MSK = 18
        QV = 24; BQT = 40; DA = 56
        NB = opt.get("nb", 10)
        SP = 64; QT = 84; VST = 96; BT = 128; OA = 144; SC = 176
        BUF = [96 + 16 * p for p in range(10)]
        D0 = opt.get("depth0", D)
        n_d0 = opt.get("nd0", 0)
        st = {"issued": 0, "NP": 32 - E}
        A("s_sub_u32 s3, s3, 1")
        A("v_lshrrev_b32 v22, 4, v1")
        A("v_and_b32 v23, 15, v1")
        for q in range(4):
            c = 8 * (q & 1) + (q >> 1)
            A(f"v_lshl_or_b32 v{VOFF+q}, v22, 1, {c}")
            A(f"v_xor_b32 v{VOFF+q}, v{VOFF+q}, v23")
            A(f"v_lshlrev_b32 v{VOFF+q}, 4, v{VOFF+q}")
            A(f"v_lshl_or_b32 v{VOFF+q}, v22, 8, v{VOFF+q}")
        A("s_lshl_b32 s48, s3, 15")
        A("s_lshl_b32 s49, s43, 2")
        A("s_add_u32 s49, s49, s3")
        A("s_lshl_b32 s49, s49, 12")
        if opt.get("rot"):
            A(f"s_mul_i32 s60, s42, {opt.get('rot') * 1024}")
            A("s_add_u32 s49, s49, s60")
            if opt.get("jsh"):
                A(f"s_lshr_b32 s60, s43, {opt.get('jsh')}")
                A(f"s_lshl_b32 s60, s60, {19 + opt.get('jsh')}")
                A("s_add_u32 s49, s49, s60")
        A("s_lshr_b32 s60, s43, 1")
        A("s_lshl_b32 s60, s60, 2")
        A("s_add_u32 s60, s60, s3")
        A("s_lshl_b32 s60, s60, 12")
        A("s_lshl_b32 s51, s42, 24")
        A("s_waitcnt lgkmcnt(0)")
        A("s_add_u32 s44, s18, s51")
        A("s_addc_u32 s45, s19, 0")
        A("s_and_b32 s45, s45, 0xffff")
        A(f"s_mov_b32 s46, {1 << 24}")
        A("s_mov_b32 s47, 0x20000")
        A("s_add_u32 s52, s20, s51")
        A("s_addc_u32 s53, s21, 0")
        A("s_and_b32 s53, s53, 0xffff")
        A(f"s_mov_b32 s54, {1 << 24}")
        A("s_mov_b32 s55, 0x20000")

        st["WF"] = opt.get("wfirst", 0)
        PW = [int(x) for x in str(opt["parw"]).split("_")] if "parw" in opt else None

        def depth_of(i):
            if i < n_d0:
                return D0
            if i >= 64 - opt.get("tailn", 0):
                return opt.get("dtail", 12)
            ev = opt.get("every", 0)
            if ev and i % ev == ev - 1:
                return opt.get("dlow", 7)
            return D

        def pwait(i):
            dd = depth_of(i)
            gd = opt.get("gdepth", 12)
            if opt.get("greedy") and i >= 40 and dd < gd:
                self.uid += 1
                A(f"s_waitcnt vmcnt({gd-4})")
                A("s_cmp_lg_u32 s83, 0")
                A(f"s_cbranch_scc1 L_gr{self.uid}")
                A(f"s_waitcnt vmcnt({dd-4})")
                self.lab(f"L_gr{self.uid}")
            else:
                A(f"s_waitcnt vmcnt({dd-4})")

        SB0 = opt.get("sb", 99)

        def softbar(i):
            if i < SB0 or (i >= 64 - opt.get("tailn", 0) and not opt.get("tailsb")):
                return
            self.uid += 1
            n = i - SB0 + 1
            A("s_mov_b64 exec, 1")
            if opt.get("sbrtn"):
                A("ds_add_rtn_u32 v80, v82, v83")
                A("s_waitcnt lgkmcnt(0)")
                A("v_readfirstlane_b32 s57, v80")
                A("s_nop 3")
                A(f"s_cmp_ge_u32 s57, {4 * n - 1}")
                A(f"s_cbranch_scc1 L_sd{self.uid}")
            else:
                A("ds_add_u32 v82, v83")
            self.lab(f"L_sb{self.uid}")
            A("ds_read_b32 v80, v82")
            A("s_sub_u32 s82, s82, 1")
            A(f"s_cbranch_scc1 L_sd{self.uid}")
            A("s_waitcnt lgkmcnt(0)")
            A("v_readfirstlane_b32 s57, v80")
            A("s_nop 3")
            A(f"s_cmp_lt_u32 s57, {4 * n}")
            A(f"s_cbranch_scc1 L_sb{self.uid}")
            self.lab(f"L_sd{self.uid}")
            A("s_mov_b64 exec, -1")

        def pace():
            i = st["issued"]
            if i >= 2 * st["NP"] or st.get("paced") == i:
                return
            pwait(i)
            if not opt.get("sblate"):
                softbar(i)
            st["paced"] = i

        def refill(wait=True):
            i = st["issued"]
            NP = st["NP"]
            if i >= 2 * NP:
                return
            if st.get("paced") == i:
                wait = False
            p = i % NP
            srd = "s[44:47]" if i < NP else "s[52:55]"
            if p < NC:
                A(f"s_add_u32 s56, s49, {p * 524288}")
                if opt.get("rot"):
                    A("s_and_b32 s56, s56, 0xffffff")
            else:
                A(f"s_add_u32 s56, s60, {NC * 524288 + (p - NC) * 262144}")
            A(f"s_add_u32 m0, s48, {(i % 8) * 4096}")
            if wait:
                pwait(i)
                softbar(i)
            elif opt.get("sblate") and st.get("paced") == i:
                softbar(i)
                A("s_nop 0")
            else:
                A("s_nop 0")
            for q in range(4):
                A(f"buffer_load_dwordx4 v{VOFF+q}, {srd}, s56 offen offset:{q*1024} {NT} lds")
            st["issued"] += 1

        n0 = (D0 if n_d0 else D) // 4
        for pp in range(n0):
            refill(wait=False)
        self.sts(0)
        assert E == 0
        A(f"v_mov_b32 v82, {SBC}")
        A("v_mov_b32 v83, 1")
        A("s_mov_b32 s82, 0x4000000")
        A("s_mov_b32 s83, 0")
        A("s_barrier")
        A("v_and_b32 v24, 7, v23")
        A("v_lshlrev_b32 v24, 1, v24")
        A("v_lshrrev_b32 v25, 3, v23")
        A("v_or_b32 v24, v24, v25")
        A("v_lshlrev_b32 v25, 8, v23")
        A("v_add_u32 v25, s48, v25")
        for u in range(4):
            A(f"v_lshl_or_b32 v26, v22, 2, {u}")
            A("v_xor_b32 v26, v26, v24")
            A(f"v_lshl_add_u32 v{KRD+u}, v26, 4, v25")
        A("v_lshrrev_b32 v26, 2, v1")
        A("v_and_b32 v24, 7, v26")
        A("v_lshlrev_b32 v24, 1, v24")
        A("v_lshrrev_b32 v25, 3, v26")
        A("v_or_b32 v24, v24, v25")
        A("v_bfe_u32 v27, v1, 1, 1")
        A("v_xor_b32 v24, v24, v27")
        A("v_and_b32 v27, 1, v1")
        A("v_lshlrev_b32 v27, 3, v27")
        A("v_lshl_add_u32 v25, v26, 8, v27")
        A("v_add_u32 v25, s48, v25")
        for e in range(8):
            A(f"v_xor_b32 v26, {2*e}, v24")
            A(f"v_lshl_add_u32 v{VRD+e}, v26, 4, v25")
        A("v_lshrrev_b32 v26, 2, v23")
        for t in range(4):
            A(f"v_cmp_eq_u32 vcc, {t}, v26")
            self.nop(2)
            A(f"v_cndmask_b32 v{MSK+t}, 0, -1, vcc")
        A("v_and_b32 v26, 3, v1")
        A("v_lshlrev_b32 v26, 8, v26")
        A("v_lshl_add_u32 v26, v22, 6, v26")
        A(f"v_add_u32 v23, {QS}, v26")
        A(f"s_mov_b32 s58, {f32(SCALE)}")
        A(f"s_mov_b32 s59, {f32(LOG2E)}")
        A("s_mov_b32 s61, 0xff80ff80")
        for pp in range(n0, 8):
            refill()

        def kcopy(p):
            if st["WF"]:
                pace()
            for u in range(4):
                r = BUF[p % NB] + 4 * u
                A(f"ds_read_b128 v[{r}:{r+3}], v{KRD+u} offset:{(p % 8) * 4096}")
            A("s_waitcnt lgkmcnt(0)")
            refill()

        def vcopy(p, tag):
            NP = st["NP"]
            i = NP + p
            rem = 2 * NP - 1 - i
            if rem == 0:
                self.fin_wait(tag)
            if st["issued"] >= 2 * NP and rem * 4 < max(D, opt.get("dtail", 12) if opt.get("tailn") else 0, opt.get("gdepth", 12) if opt.get("greedy") else 0):
                A(f"s_waitcnt vmcnt({rem * 4})")
            if st["WF"]:
                pace()
            for e in range(8):
                r = VST + 4 * e + 2 * (p & 1)
                A(f"ds_read_b64_tr_b16 v[{r}:{r+1}], v{VRD+e} offset:{(i % 8) * 4096}")
            A("s_waitcnt lgkmcnt(0)")
            refill()

        for p in range(NB):
            kcopy(p)
        assert st["issued"] <= NC
        self.sts(5)
        A("s_barrier")
        self.sts(1)
        for u in range(4):
            A(f"ds_read_b128 v[{QV+4*u}:{QV+4*u+3}], v23 offset:{16*u}")
        if E:
            A("s_bitcmp1_b32 s43, 0")
            A("s_cbranch_scc1 L_slow")
        elif PW:
            A("s_bitcmp1_b32 s2, 0")
            A("s_cbranch_scc1 L_slow")

        def bqt(t):
            for k in range(16):
                A(f"v_and_b32 v{BQT+k}, v{QV+k}, v{MSK+t}")

        def kmfma(pp, src):
            t, hf = pp >> 1, pp & 1
            d = DA + 4 * hf
            for u in range(4):
                c = "0" if (t == 0 and u == 0) else f"v[{d}:{d+3}]"
                r = src + 4 * u
                A(f"v_mfma_f32_16x16x32_bf16 v[{d}:{d+3}], v[{r}:{r+3}], v[{BQT+4*u}:{BQT+4*u+3}], {c}")

        def kpost(blk, nvalid):
            self.nop(6)
            for k in range(4):
                A(f"v_cvt_pk_bf16_f32 v{QT+k}, v{DA+2*k}, v{DA+2*k+1}")
            for k in range(4):
                A(f"v_lshlrev_b32 v{QT+4+2*k}, 16, v{QT+k}")
                A(f"v_and_b32 v{QT+5+2*k}, 0xffff0000, v{QT+k}")
            for k in range(8):
                A(f"v_mul_f32 v{QT+4+k}, s58, v{QT+4+k}")
            for k in range(4):
                A(f"v_cvt_pk_bf16_f32 v{SP+4*blk+k}, v{QT+4+2*k}, v{QT+5+2*k}")
            if nvalid < 4:
                A(f"v_mov_b32 v{QT}, v{MSK}")
                for t in range(1, nvalid):
                    A(f"v_or_b32 v{QT}, v{QT}, v{MSK+t}")
                for k in range(4):
                    A(f"v_bfi_b32 v{SP+4*blk+k}, v{QT}, v{SP+4*blk+k}, s61")

        issued0 = st["issued"]

        def variant(NP, tag):
            st["NP"] = NP
            st["issued"] = issued0
            st["paced"] = -1
            A("s_waitcnt lgkmcnt(0)")
            c, k = 0, NB
            while c < NP:
                if st["WF"] >= 3:
                    pace()
                bqt((c % 8) >> 1)
                while k < c + 2:
                    kcopy(k); k += 1
                if st["WF"] >= 2 and k < NP:
                    pace()
                self.nop(2)
                kmfma(c % 8, BUF[c % NB])
                kmfma((c + 1) % 8, BUF[(c + 1) % NB])
                c += 2
                if k < NP:
                    kcopy(k); k += 1
                if c % 8 == 0 or c == NP:
                    if st["WF"] >= 3:
                        pace()
                    kpost((c - 1) // 8, ((c - 1) % 8) // 2 + 1)
            self.sts(2)
            nblk = (NP + 7) // 8
            n = 8 * nblk
            for k in range(4 * nblk):
                A(f"v_lshlrev_b32 v{SC+2*k}, 16, v{SP+k}")
                A(f"v_and_b32 v{SC+2*k+1}, 0xffff0000, v{SP+k}")
            vcopy(0, tag)
            A(f"v_max_f32 v24, v{SC}, v{SC+1}")
            A(f"v_max_f32 v25, v{SC+2}, v{SC+3}")
            for k in range(4, n, 4):
                A(f"v_max3_f32 v24, v24, v{SC+k}, v{SC+k+1}")
                A(f"v_max3_f32 v25, v25, v{SC+k+2}, v{SC+k+3}")
            A("v_max_f32 v24, v24, v25")
            for r in (4, 8):
                self.nop(2)
                A(f"v_max_f32_dpp v24, v24, v24 row_ror:{r} row_mask:0xf bank_mask:0xf")
            self.rows_reduce("max", "v24", "v25")
            for k in range(n):
                A(f"v_sub_f32 v{SC+k}, v{SC+k}, v24")
            for k in range(n):
                A(f"v_mul_f32 v{SC+k}, s59, v{SC+k}")
            for k in range(n):
                A(f"v_exp_f32 v{SC+k}, v{SC+k}")
            vcopy(1, tag)
            for k in range(4 * nblk):
                A(f"v_cvt_pk_bf16_f32 v{SP+k}, v{SC+2*k}, v{SC+2*k+1}")
            m = n
            while m > 1:
                h = (m + 1) // 2
                for k in range(m - h):
                    A(f"v_add_f32 v{SC+k}, v{SC+k}, v{SC+k+h}")
                m = h
            A(f"v_mov_b32 v25, v{SC}")
            for r in (4, 8):
                self.nop(2)
                A(f"v_add_f32_dpp v25, v25, v25 row_ror:{r} row_mask:0xf bank_mask:0xf")
            self.rows_reduce("add", "v25", "v26")
            A("v_mov_b32 v22, v24")
            A("s_lshl_b32 s57, s3, 5")
            A(f"s_add_u32 s57, s57, {ML}")
            A("v_lshl_add_u32 v26, v1, 2, s57")
            A("s_lshl_b32 s57, s3, 2")
            A(f"s_add_u32 s57, s57, {MLF}")
            A("v_mov_b32 v27, s57")
            A("v_mov_b32 v28, 1")
            A("s_mov_b64 exec, 15")
            A("ds_write_b32 v26, v24")
            A("ds_write_b32 v26, v25 offset:16")
            A("s_waitcnt lgkmcnt(0)")
            A("s_mov_b64 exec, 1")
            A("ds_write_b32 v27, v28")
            A("s_mov_b64 exec, -1")
            NU = NP // 2

            def bt(un):
                for k in range(4):
                    A(f"v_and_b32 v{BT+4*(un%2)+k}, v{SP+4*(un//4)+k}, v{MSK+un%4}")
            bt(0)
            self.nop(2)
            for un in range(NU):
                bb = BT + 4 * (un % 2)
                if st["WF"] >= 2:
                    pace()
                for e in range(8):
                    o = OA + 4 * e
                    cc = "0" if un == 0 else f"v[{o}:{o+3}]"
                    A(f"v_mfma_f32_16x16x32_bf16 v[{o}:{o+3}], v[{VST+4*e}:{VST+4*e+3}], v[{bb}:{bb+3}], {cc}")
                if opt.get("wolate") and un == NU - opt.get("wolate"):
                    A(f"v_mov_b32 v27, {WOF}")
                    A("v_mov_b32 v28, 1")
                    A("ds_write_b32 v27, v28")
                if un == NU - opt.get("pre", 2):
                    A(f"v_mov_b32 v27, {PREC}")
                    A("v_mov_b32 v28, 1")
                    A("s_mov_b64 exec, 1")
                    A("ds_add_u32 v27, v28")
                    A("s_mov_b64 exec, -1")
                if un + 1 < NU:
                    bt(un + 1)
                    vcopy(2 * un + 2, tag)
                    vcopy(2 * un + 3, tag)
            assert st["issued"] == 2 * NP

        if PW:
            st["WF"] = PW[0]
        variant(32 + E, "f")
        if E or PW:
            A("s_branch L_sepi")
            self.lab("L_slow")
            if PW:
                st["WF"] = PW[1]
            variant(32 - E, "s")
            self.lab("L_sepi")
        self.sts(3)
        self.nop(4)
        for k in range(32):
            A(f"v_mul_f32 v{OA+k}, v24, v{OA+k}")
        for r in (4, 8):
            for k in range(32):
                A(f"v_add_f32_dpp v{OA+k}, v{OA+k}, v{OA+k} row_ror:{r} row_mask:0xf bank_mask:0xf")
        A("s_mov_b32 exec_lo, 0x000f000f")
        A("s_mov_b32 exec_hi, 0x000f000f")
        for e in range(8):
            A(f"ds_write_b128 v26, v[{OA+4*e}:{OA+4*e+3}] offset:{64*e}")
        A("s_mov_b64 exec, -1")
        A("s_waitcnt lgkmcnt(0)")
        A("s_barrier")
        m8 = "s[62:63]" if not opt.get("ts") else "s[80:81]"
        for k in range(2):
            for w in range(4):
                A(f"ds_read_b32 v{40+4*k+w}, v29 offset:{2048*w + 128*k}")
        for k in range(2):
            A(f"s_waitcnt lgkmcnt({4*(1-k)})")
            A(f"v_add_f32 v{40+4*k}, v{40+4*k}, v{41+4*k}")
            A(f"v_add_f32 v{42+4*k}, v{42+4*k}, v{43+4*k}")
            A(f"v_add_f32 v{40+4*k}, v{40+4*k}, v{42+4*k}")
            A(f"v_cndmask_b32 v{41+4*k}, v{40+4*k}, 1.0, {m8}")
            A(f"v_cndmask_b32 v{42+4*k}, v{40+4*k}, 1.0, s[64:65]")
        A("s_mov_b32 exec_lo, 0x01ff01ff")
        A("s_mov_b32 exec_hi, 0x01ff01ff")
        for k in range(2):
            A(f"global_atomic_add_f32 v32, v{41+4*k}, s[40:41] offset:{256*k} sc1")
        A("s_mov_b32 exec_lo, 0xff80ff80")
        A("s_mov_b32 exec_hi, 0xff80ff80")
        for k in range(2):
            A(f"global_atomic_add_f32 v33, v{42+4*k}, s[40:41] offset:{2048 + 256*k} sc1")
        A("s_mov_b64 exec, -1")
        self.sts(4)
        self.sts_flush(6)
        A("s_endpgm")

    def wo_dma(self):
        A = self.A
        opt = self.opt
        A("s_mov_b32 s52, s24")
        A("s_and_b32 s53, s25, 0xffff")
        A(f"s_mov_b32 s54, {4 << 20}")
        A("s_mov_b32 s55, 0x20000")
        A("v_lshrrev_b32 v28, 3, v1")
        A("v_lshlrev_b32 v28, 10, v28")
        A("v_and_b32 v29, 7, v1")
        A("v_lshl_or_b32 v28, v29, 4, v28")
        A("s_lshl_b32 s56, s42, 19")
        A("s_lshl_b32 s49, s61, 17")
        A("s_add_u32 s56, s56, s49")
        A("s_lshl_b32 s49, s60, 7")
        A("s_add_u32 s56, s56, s49")
        st = len(self.L)
        for k in range(16):
            A(f"s_mov_b32 m0, {WQ + 1024*k}")
            A("s_nop 0")
            A(f"buffer_load_dwordx4 v28, s[52:55], s56 offen nt lds")
            A("s_add_u32 s56, s56, 8192")
        self.skipmem("wo", st)

    def wo_tr(self, WP):
        A = self.A
        for ks in range(4):
            for ct in range(4):
                r = WP + 16 * ks + 4 * ct
                A(f"ds_read_b64_tr_b16 v[{r}:{r+1}], v57 offset:{4096*ks + 32*ct}")
                A(f"ds_read_b64_tr_b16 v[{r+2}:{r+3}], v57 offset:{4096*ks + 32*ct + 512}")

    def skipmem(self, tag, start):
        sk = str(self.opt.get("skip", "")).split("+")
        if tag not in sk:
            return
        for i in range(start, len(self.L)):
            t = self.L[i].strip()
            if (t.startswith("global_") or t.startswith("buffer_")) and "v252" not in t:
                self.L[i] = "  s_nop 0"

    def arrive_wait(self, name, dbg_off, mb_off, sleep):
        if name in str(self.opt.get("skip", "")).split("+"):
            self.A("s_lshl_b32 s49, s42, 9")
            self.A(f"s_add_u32 s49, s49, {WS_SYNC}")
            self.A("v_mov_b32 v51, s49")
            self.spin_init()
            return
        self.arrive_wait2(name, dbg_off, mb_off, sleep)

    def arrive_wait2(self, name, dbg_off, mb_off, sleep):
        A = self.A
        if dbg_off is None:
            A("s_lshl_b32 s49, s42, 9")
            A(f"s_add_u32 s49, s49, {WS_SYNC}")
            A("v_mov_b32 v51, s49")
        A("s_waitcnt vmcnt(0)")
        A("s_mov_b64 exec, 1")
        if dbg_off == "fin":
            A(f"global_atomic_add v4, v51, v30, s[40:41] offset:4 sc0 sc1")
        elif dbg_off is None:
            A(f"global_atomic_add v4, v51, v30, s[40:41] sc0 sc1")
        else:
            A(f"global_atomic_add v4, v3, v30, s[38:39] offset:{dbg_off} sc0 sc1")
        self.spin_init()
        A("s_waitcnt vmcnt(0)")
        A("v_readfirstlane_b32 s57, v4")
        A("s_nop 3")
        A("s_and_b32 s57, s57, 31")
        if name == "ml" and self.opt.get("greedy"):
            A(f"s_cmp_lt_u32 s57, {self.opt.get('greedy')}")
            A("s_cbranch_scc1 L_nogr")
            A(f"v_mov_b32 v28, {MODE}")
            A("ds_write_b32 v28, v30")
            self.lab("L_nogr")
        A("s_cmp_lg_u32 s57, 31")
        A(f"s_cbranch_scc1 L_aw_{name}")
        gm = self.opt.get("gomode", "store")
        if gm == "atomic":
            A("s_mov_b32 exec_lo, -1")
            A(f"global_atomic_add v38, v30, s[40:41] offset:{mb_off} sc1")
        elif gm == "sector" and name == "fin":
            mb_off = 64
            A("s_mov_b64 exec, -1")
            A("global_store_dwordx4 v59, v[60:63], s[40:41] offset:64 sc1")
            A("global_store_dwordx4 v59, v[60:63], s[40:41] offset:2112 sc1")
        else:
            A("s_mov_b32 exec_lo, -1")
            A(f"global_store_dword v38, v30, s[40:41] offset:{mb_off} sc1")
        A(f"s_branch L_ad_{name}")
        self.lab(f"L_aw_{name}")
        A(f"global_load_dword v4, v39, s[40:41] offset:{mb_off} sc1")
        A("s_waitcnt vmcnt(0)")
        A("v_readfirstlane_b32 s57, v4")
        A("s_nop 3")
        A("s_cmp_lg_u32 s57, 0")
        A(f"s_cbranch_scc1 L_ad_{name}")
        self.spin_tail(f"L_aw_{name}", f"L_ad_{name}", sleep)
        self.lab(f"L_ad_{name}")
        A("s_mov_b64 exec, -1")

    def fin_wait(self, tag=''):
        A = self.A
        A(f"v_mov_b32 v27, {FINF}")
        A("v_and_b32 v26, 3, v1")
        A(f"v_lshlrev_b32 v26, 2, v26")
        A(f"v_add_u32 v26, {FIN}, v26")
        self.spin_init()
        self.lab("L_finw" + tag)
        A("ds_read_b32 v28, v27")
        A("ds_read_b32 v24, v26")
        A("ds_read_b32 v25, v26 offset:16")
        A("s_waitcnt lgkmcnt(0)")
        A("v_readfirstlane_b32 s57, v28")
        A("s_nop 3")
        A("s_cmp_lg_u32 s57, 0")
        A("s_cbranch_scc1 L_find" + tag)
        self.spin_tail("L_finw" + tag, "L_find" + tag, 1)
        self.lab("L_find" + tag)
        A("v_sub_f32 v24, v22, v24")
        A("v_mul_f32 v24, s59, v24")
        A("v_exp_f32 v24, v24")
        self.nop(1)
        A("v_mul_f32 v24, v24, v25")
        A("v_and_b32 v26, 3, v1")
        A("v_lshlrev_b32 v26, 9, v26")
        A("v_lshrrev_b32 v27, 4, v1")
        A("v_lshl_add_u32 v26, v27, 4, v26")
        A("s_lshl_b32 s57, s3, 11")
        A(f"s_add_u32 s57, s57, {PART}")
        A("v_add_u32 v26, s57, v26")
        A("v_and_b32 v34, 15, v1")
        A("v_and_b32 v28, 7, v1")
        A("v_lshl_add_u32 v28, v27, 3, v28")
        A("v_lshrrev_b32 v29, 3, v34")
        A("v_lshl_add_u32 v28, v29, 8, v28")
        A("v_lshlrev_b32 v29, 2, v28")
        A("s_lshl_b32 s57, s3, 8")
        A(f"s_add_u32 s57, s57, {PART}")
        A("v_add_u32 v29, s57, v29")
        A("v_cmp_eq_u32 s[62:63], 8, v34" if not self.opt.get("ts") else "v_cmp_eq_u32 s[80:81], 8, v34")
        A("v_cmp_eq_u32 s[64:65], 7, v34")
        A("v_min_u32 v35, 8, v34")
        A("v_subrev_u32 v36, 8, v34")
        self.nop(1)
        A("v_cndmask_b32 v36, v36, 8, s[64:65]")
        A("v_lshlrev_b32 v37, 6, v27")
        A("s_lshl_b32 s57, s42, 12")
        A("s_lshl_b32 s56, s3, 9")
        A("s_add_u32 s57, s57, s56")
        A(f"s_add_u32 s57, s57, {WS_O2}")
        A("v_lshl_add_u32 v32, v35, 2, v37")
        A("v_add_u32 v32, s57, v32")
        A("v_lshl_add_u32 v33, v36, 2, v37")
        A("v_add_u32 v33, s57, v33")

    def helper(self):
        A = self.A
        opt = self.opt
        X = 8; T = 16; XP = 24
        tsn = (1 if opt.get("ts") else 0) if opt.get("ts") != "end" else 0
        if opt.get("nohelp"):
            A("s_waitcnt lgkmcnt(0)")
            self.ts_entry()
            A(f"v_mov_b32 v29, {FINF}")
            A("v_mov_b32 v30, 1")
            A("ds_write_b32 v29, v30")
            A("s_waitcnt lgkmcnt(0)")
            A("s_barrier")
            A("s_barrier")
            A("s_endpgm")
        A("v_lshlrev_b32 v28, 2, v1")
        A(f"v_add_u32 v28, {MLF}, v28")
        A("v_mov_b32 v32, 0")
        A("s_mov_b64 exec, 0xffffff")
        A("ds_write_b32 v28, v32")
        A("s_mov_b64 exec, -1")
        A("v_lshlrev_b32 v2, 4, v1")
        A("s_lshr_b32 s60, s43, 2")
        A("s_and_b32 s61, s43, 3")
        A("s_lshl_b32 s51, s60, 7")
        A("s_lshl_b32 s49, s42, 4")
        A("s_add_u32 s51, s51, s49")
        A("s_lshl_b32 s49, s61, 2")
        A("s_add_u32 s51, s51, s49")
        A("v_lshrrev_b32 v3, 3, v1")
        A("v_lshlrev_b32 v3, 13, v3")
        A("v_and_b32 v4, 7, v1")
        A("v_lshl_or_b32 v3, v4, 4, v3")
        A("s_lshl_b32 s48, s42, 10")
        A("s_lshl_b32 s49, s43, 5")
        A("s_add_u32 s48, s48, s49")
        A("s_and_b32 s44, s43, 7")
        A("s_lshr_b32 s45, s43, 3")
        A("s_lshl_b32 s56, s45, 20")
        A("s_lshl_b32 s49, s42, 10")
        A("s_add_u32 s56, s56, s49")
        A("s_lshl_b32 s49, s44, 7")
        A("s_add_u32 s56, s56, s49")
        A("s_waitcnt lgkmcnt(0)")
        A("global_load_dwordx4 v[24:27], v2, s[16:17]")
        A("s_mov_b32 s52, s22")
        A("s_and_b32 s53, s23, 0xffff")
        A(f"s_mov_b32 s54, {4 << 20}")
        A("s_mov_b32 s55, 0x20000")
        st = len(self.L)
        for k in range(16):
            A(f"s_mov_b32 m0, {WQ + 1024*k}")
            A("s_nop 0")
            A(f"buffer_load_dwordx4 v3, s[52:55], s56 offen nt lds")
            A("s_add_u32 s56, s56, 65536")
        self.skipmem("wq", st)
        A("s_barrier")
        if opt.get("ts") != "end":
            self.ts_entry()
        self.ts(0)
        A("s_lshl_b32 s49, s47, 7")
        A(f"s_add_u32 s49, s49, {WS_O2}")
        A("v_add_u32 v28, s49, v2")
        for i in range(4):
            A(f"v_mov_b32 v{32+i}, 0")
        A("s_mov_b64 exec, 0xff")
        A("global_store_dwordx4 v28, v[32:35], s[40:41] sc1")
        A("s_lshl_b32 s49, s51, 1")
        A(f"s_add_u32 s49, s49, {WS_G}")
        A("v_mov_b32 v28, s49")
        A("s_mov_b64 exec, 1")
        A("global_store_dwordx2 v28, v[32:33], s[40:41] sc1")
        A("s_mov_b64 exec, -1")
        A("s_lshl_b32 s46, s47, 7")
        A(f"s_add_u32 s46, s46, {WS_MB}")
        A("v_add_u32 v28, s46, v2")
        A("s_lshl_b32 s49, s42, 9")
        A(f"s_add_u32 s49, s49, {WS_SYNC}")
        A("v_mov_b32 v29, s49")
        A("v_cmp_eq_u32 vcc, 8, v1")
        self.nop(2)
        A("v_cndmask_b32 v28, v28, v29, vcc")
        A("s_movk_i32 s56, 0xff")
        A("s_cmp_eq_u32 s43, 0")
        A("s_cselect_b32 exec_lo, 0x1ff, s56")
        A("s_mov_b32 exec_hi, 0")
        A("global_store_dwordx4 v28, v[32:35], s[40:41] sc1")
        A("s_mov_b64 exec, -1")
        A("s_or_b32 s49, s42, s61")
        A("s_cmp_lg_u32 s49, 0")
        A("s_cbranch_scc1 L_nozs")
        A("s_lshl_b32 s49, s60, 9")
        A(f"s_add_u32 s49, s49, {WS_SACC}")
        A("v_add_u32 v28, s49, v2")
        A("s_mov_b32 exec_hi, 0")
        A("global_store_dwordx4 v28, v[32:35], s[40:41] sc1")
        A("s_mov_b64 exec, -1")
        self.lab("L_nozs")
        A(f"s_waitcnt vmcnt({(19 + 2*tsn) if not opt.get('skip') else 0})")
        self.ts(13)
        for i in range(4):
            A(f"v_lshlrev_b32 v{X+2*i}, 16, v{XP+i}")
            A(f"v_and_b32 v{X+2*i+1}, 0xffff0000, v{XP+i}")
        self.layernorm(X, T, XP)
        A(f"v_add_u32 v28, {XN}, v2")
        A(f"ds_write_b128 v28, v[{XP}:{XP+3}]")
        A("v_lshrrev_b32 v29, 4, v1")
        A("v_lshlrev_b32 v30, 4, v29")
        A("s_lshl_b32 s49, s45, 8")
        A(f"s_add_u32 s49, s49, {XN}")
        A("v_add_u32 v30, s49, v30")
        A("v_bfe_u32 v31, v1, 2, 2")
        A("v_lshl_add_u32 v31, v29, 3, v31")
        A("v_lshlrev_b32 v31, 7, v31")
        A("v_and_b32 v28, 3, v1")
        A("v_lshl_add_u32 v31, v28, 3, v31")
        A(f"v_add_u32 v31, {WQ}, v31")
        A("v_and_b32 v28, 15, v1")
        A("v_lshlrev_b32 v28, 6, v28")
        A("v_lshl_add_u32 v29, v29, 4, v28")
        A("s_lshl_b32 s49, s42, 13")
        A("s_lshl_b32 s56, s45, 11")
        A("s_add_u32 s49, s49, s56")
        A("s_lshl_b32 s56, s44, 8")
        A("s_add_u32 s49, s49, s56")
        A(f"s_add_u32 s49, s49, {WS_QP}")
        A("v_add_u32 v29, s49, v29")
        A("v_and_b32 v28, 15, v1")
        A("s_waitcnt lgkmcnt(0)")
        XO = 64; WO = 128; QD = 32
        for ks in range(4):
            A(f"ds_read_b128 v[{XO+4*ks}:{XO+4*ks+3}], v30 offset:{64*ks}")
        A("s_waitcnt vmcnt(0)")
        self.ts(1)
        for ks in range(4):
            for ct in range(4):
                r = WO + 16 * ks + 4 * ct
                A(f"ds_read_b64_tr_b16 v[{r}:{r+1}], v31 offset:{4096*ks + 32*ct}")
                A(f"ds_read_b64_tr_b16 v[{r+2}:{r+3}], v31 offset:{4096*ks + 32*ct + 512}")
            A("s_waitcnt lgkmcnt(0)")
            for ct in range(4):
                r = WO + 16 * ks + 4 * ct
                d = QD + 4 * ct
                c = "0" if ks == 0 else f"v[{d}:{d+3}]"
                A(f"v_mfma_f32_16x16x32_bf16 v[{d}:{d+3}], v[{r}:{r+3}], v[{XO+4*ks}:{XO+4*ks+3}], {c}")
        A("v_cmp_eq_u32 s[52:53], 1, v28")
        A("v_cmp_eq_u32 s[54:55], 2, v28")
        A("v_cmp_eq_u32 vcc, 3, v28")
        self.nop(6)
        for r in range(4):
            A(f"v_cndmask_b32 v{QD+r}, v{QD+r}, v{QD+4+r}, s[52:53]")
        for r in range(4):
            A(f"v_cndmask_b32 v{QD+r}, v{QD+r}, v{QD+8+r}, s[54:55]")
        for r in range(4):
            A(f"v_cndmask_b32 v{QD+r}, v{QD+r}, v{QD+12+r}, vcc")
        A("s_mov_b32 exec_lo, 0x000f000f")
        A("s_mov_b32 exec_hi, 0x000f000f")
        A(f"global_store_dwordx4 v29, v[{QD}:{QD+3}], s[40:41] sc1")
        A("s_mov_b64 exec, -1")
        A("s_waitcnt vmcnt(0)")
        A("s_lshl_b32 s49, s42, 5")
        A("v_mov_b32 v3, s49")
        A("v_mov_b32 v30, 1")
        A("s_lshl_b32 s49, s42, 12")
        A(f"s_add_u32 s49, s49, {WS_MB}")
        A("v_lshlrev_b32 v38, 7, v1")
        A("v_add_u32 v38, s49, v38")
        A("v_mov_b32 v39, s46")
        self.ts(2)
        self.arrive_wait("q", 0, 0, opt.get("qsleep", 2))
        if opt.get("ts") and opt.get("ts") != "end":
            A("s_mov_b64 exec, 1")
            A("v_mov_b32 v250, s50")
            A("v_mov_b32 v251, 0")
            A("v_mov_b32 v252, s62")
            A("global_store_dwordx2 v252, v[250:251], s[40:41] offset:128")
            A("s_mov_b64 exec, -1")
        self.ts(3)
        A("s_lshl_b32 s49, s42, 13")
        A(f"s_add_u32 s49, s49, {WS_QP}")
        A("v_lshlrev_b32 v28, 5, v1")
        A("v_add_u32 v28, s49, v28")
        A("v_add_u32 v29, 4096, v28")
        st = len(self.L)
        for rb in range(4):
            for hh in range(2):
                r = 64 + 8 * rb + 4 * hh
                A(f"global_load_dwordx4 v[{r}:{r+3}], v{28 + rb // 2}, s[40:41] offset:{2048*(rb%2) + 16*hh} sc1 {opt.get('qldf', '')}")
        self.skipmem("qld", st)
        A(f"v_add_u32 v28, {QS}, v2")
        A("s_waitcnt vmcnt(0)")
        for k in range(8):
            A(f"v_add_f32 v{64+k}, v{64+k}, v{72+k}")
            A(f"v_add_f32 v{80+k}, v{80+k}, v{88+k}")
        for k in range(8):
            A(f"v_add_f32 v{64+k}, v{64+k}, v{80+k}")
        for k in range(4):
            A(f"v_cvt_pk_bf16_f32 v{32+k}, v{64+2*k}, v{65+2*k}")
        A("ds_write_b128 v28, v[32:35]")
        A("s_waitcnt lgkmcnt(0)")
        A("s_barrier")
        self.ts(4)
        if opt.get("span"):
            A("s_memrealtime s[68:69]")
        A(f"s_mov_b32 s59, {f32(LOG2E)}")
        if not opt.get("wolate"):
            self.wo_dma()
        st = len(self.L)
        for a, (lo, base) in enumerate(((28, WST), (30, WST + 4096), (32, WST + 8192))):
            A(f"s_mov_b32 s52, s{lo}")
            A(f"s_and_b32 s53, s{lo+1}, 0xffff")
            A("s_mov_b32 s54, 3584")
            A("s_mov_b32 s55, 0x20000")
            A(f"s_mov_b32 m0, {base}")
            A("s_nop 0")
            for q in range(4):
                A(f"buffer_load_dwordx4 v2, s[52:55], 0 offen offset:{1024*q} lds")
        A("s_lshl_b32 s49, s60, 7")
        A("v_lshlrev_b32 v43, 1, v1")
        A("v_add_u32 v43, s49, v43")
        A("global_load_ushort v40, v43, s[16:17]")
        A("v_mov_b32 v29, 0")
        A("global_load_ushort v41, v29, s[34:35]")
        self.skipmem("w1", st)
        self.layernorm(X, T, XP)
        A(f"v_add_u32 v28, {XN}, v2")
        A(f"ds_write_b128 v28, v[{XP}:{XP+3}]")
        A(f"v_mov_b32 v28, s51")
        A(f"v_add_u32 v28, {XN}, v28")
        A("s_waitcnt lgkmcnt(0)")
        A("ds_read_b32 v42, v28")
        A("v_lshrrev_b32 v29, 4, v1")
        A("v_bfe_u32 v57, v1, 2, 2")
        A("v_lshl_add_u32 v57, v29, 3, v57")
        A("v_lshlrev_b32 v57, 7, v57")
        A("v_and_b32 v28, 3, v1")
        A("v_lshl_add_u32 v57, v28, 3, v57")
        A(f"v_add_u32 v57, {WQ}, v57")
        A("s_waitcnt vmcnt(0) lgkmcnt(0)")
        WP = 128
        if not opt.get("wolate"):
            self.wo_tr(WP)
            A("s_waitcnt lgkmcnt(0)")
        A("v_lshlrev_b32 v44, 16, v42")
        A("v_and_b32 v45, 0xffff0000, v42")
        A("v_mov_b32 v46, 0")
        A("v_mov_b32 v47, 0")
        A(f"v_lshlrev_b32 v28, 2, v1")
        A(f"v_add_u32 v28, {WST}, v28")
        A("s_mov_b32 s57, 14")
        c1 = -2.0 * 0.7978845608028654 * LOG2E
        A(f"s_mov_b32 s58, {f32(c1)}")
        A(f"s_mov_b32 s56, {f32(c1 * 0.044715)}")
        self.lab("L_gate")
        A("ds_read_b32 v48, v28")
        A("ds_read_b32 v49, v28 offset:4096")
        A("ds_read_b32 v50, v28 offset:8192")
        A("v_add_u32 v28, 256, v28")
        A("s_waitcnt lgkmcnt(0)")
        A("v_lshlrev_b32 v51, 16, v48")
        A("v_and_b32 v52, 0xffff0000, v48")
        A("v_lshlrev_b32 v53, 16, v49")
        A("v_and_b32 v54, 0xffff0000, v49")
        A("v_lshlrev_b32 v55, 16, v50")
        A("v_and_b32 v56, 0xffff0000, v50")
        U = [8, 9, 10, 11]; Z = [12, 13, 14, 15]
        combos = [(44, 51, 53, 55, 46), (44, 52, 54, 56, 46), (45, 51, 53, 55, 47), (45, 52, 54, 56, 47)]
        for k, (h, w1, b1, w2, acc) in enumerate(combos):
            A(f"v_mul_f32 v{U[k]}, v{h}, v{w1}")
        for k in range(4):
            self.bf16r(f"v{U[k]}")
        for k, (h, w1, b1, w2, acc) in enumerate(combos):
            A(f"v_add_f32 v{U[k]}, v{U[k]}, v{b1}")
        for k in range(4):
            self.bf16r(f"v{U[k]}")
        for k in range(4):
            A(f"v_mul_f32 v{Z[k]}, v{U[k]}, v{U[k]}")
        for k in range(4):
            A(f"v_mul_f32 v{Z[k]}, s56, v{Z[k]}")
        for k in range(4):
            A(f"v_add_f32 v{Z[k]}, s58, v{Z[k]}")
        for k in range(4):
            A(f"v_mul_f32 v{Z[k]}, v{Z[k]}, v{U[k]}")
        for k in range(4):
            A(f"v_exp_f32 v{Z[k]}, v{Z[k]}")
        self.nop(1)
        for k in range(4):
            A(f"v_add_f32 v{Z[k]}, 1.0, v{Z[k]}")
        for k in range(4):
            A(f"v_rcp_f32 v{Z[k]}, v{Z[k]}")
        self.nop(1)
        for k in range(4):
            A(f"v_mul_f32 v{U[k]}, v{U[k]}, v{Z[k]}")
        for k in range(4):
            self.bf16r(f"v{U[k]}")
        for k, (h, w1, b1, w2, acc) in enumerate(combos):
            A(f"v_fmac_f32 v{acc}, v{U[k]}, v{w2}")
        A("s_sub_u32 s57, s57, 1")
        A("s_cmp_lg_u32 s57, 0")
        A("s_cbranch_scc1 L_gate")
        A("s_waitcnt vmcnt(0)")
        self.allreduce64("add", "v46", "v16")
        self.allreduce64("add", "v47", "v16")
        A("v_lshlrev_b32 v41, 16, v41")
        for a in (46, 47):
            self.bf16r(f"v{a}")
            A(f"v_add_f32 v{a}, v{a}, v41")
            self.bf16r(f"v{a}")
            A(f"v_mul_f32 v16, s59, v{a}")
            A("v_exp_f32 v16, -v16")
            self.nop(1)
            A("v_add_f32 v16, 1.0, v16")
            A("v_rcp_f32 v17, v16")
            self.nop(1)
            A(f"v_mul_f32 v18, v{a}, v17")
            A(f"v_fma_f32 v19, -v18, v16, v{a}")
            A("v_fma_f32 v19, v19, v17, v18")
            A("v_cmp_gt_f32 vcc, 0x7f000000, v16")
            self.nop(2)
            A(f"v_cndmask_b32 v{a}, v18, v19, vcc")
            self.bf16r(f"v{a}")
        A("v_bfrev_b32 v16, 1")
        A("v_cmp_eq_u32 vcc, 0, v46")
        A("v_cmp_eq_u32 s[52:53], 0, v47")
        self.nop(2)
        A("v_cndmask_b32 v46, v46, v16, vcc")
        A("v_cndmask_b32 v47, v47, v16, s[52:53]")
        A("s_lshl_b32 s49, s51, 1")
        A(f"s_add_u32 s49, s49, {WS_G}")
        A("v_mov_b32 v28, s49")
        A("s_mov_b64 exec, 1")
        A("global_store_dwordx2 v28, v[46:47], s[40:41] sc1")
        A("s_mov_b64 exec, -1")
        A("v_lshlrev_b32 v28, 5, v1")
        self.spin_init()
        A("s_mov_b64 exec, 0xff")
        self.lab("L_allw")
        A("global_load_dword v4, v28, s[38:39] sc1")
        A("s_waitcnt vmcnt(0)")
        A(f"v_cmp_le_u32 vcc, {0 if 'q' in str(opt.get('skip', '')).split('+') else 32}, v4")
        A("s_nop 1")
        A("s_cmp_eq_u64 vcc, exec")
        A("s_cbranch_scc1 L_alld")
        self.spin_tail("L_allw", "L_alld", 32)
        self.lab("L_alld")
        A("s_mov_b64 exec, -1")
        self.ts(5)
        A(f"v_mov_b32 v28, {MLF}")
        A("v_and_b32 v29, 3, v1")
        A("v_lshlrev_b32 v29, 2, v29")
        A(f"v_add_u32 v29, {ML}, v29")
        self.spin_init()
        self.lab("L_mlw")
        A("ds_read_b128 v[4:7], v28")
        for w in range(4):
            A(f"ds_read_b32 v{8+w}, v29 offset:{32*w}")
            A(f"ds_read_b32 v{12+w}, v29 offset:{32*w+16}")
        A("s_waitcnt lgkmcnt(0)")
        A("v_and_b32 v4, v4, v5")
        A("v_and_b32 v6, v6, v7")
        A("v_and_b32 v4, v4, v6")
        A("s_nop 0")
        A("v_readfirstlane_b32 s57, v4")
        A("s_nop 3")
        A("s_cmp_lg_u32 s57, 0")
        A("s_cbranch_scc1 L_mld")
        self.spin_tail("L_mlw", "L_mld", 8)
        self.lab("L_mld")
        self.ts(6)
        A("v_max3_f32 v16, v8, v9, v10")
        A("v_max_f32 v16, v16, v11")
        for w in range(4):
            A(f"v_sub_f32 v{8+w}, v{8+w}, v16")
        for w in range(4):
            A(f"v_mul_f32 v{8+w}, s59, v{8+w}")
        for w in range(4):
            A(f"v_exp_f32 v{8+w}, v{8+w}")
        self.nop(1)
        A("v_mul_f32 v17, v8, v12")
        for w in range(1, 4):
            A(f"v_fmac_f32 v17, v{8+w}, v{12+w}")
        A("s_lshl_b32 s49, s47, 5")
        A(f"s_add_u32 s49, s49, {WS_ML}")
        A("v_lshlrev_b32 v28, 3, v1")
        A("v_add_u32 v28, s49, v28")
        A("v_mov_b32 v30, 1")
        A("s_mov_b64 exec, 15")
        A("global_store_dwordx2 v28, v[16:17], s[40:41] sc1")
        A("s_mov_b64 exec, -1")
        self.arrive_wait("ml", None, 4, opt.get("mlsleep", 16))
        self.ts(7)
        A("s_lshl_b32 s49, s42, 10")
        A(f"s_add_u32 s49, s49, {WS_ML}")
        A("v_lshlrev_b32 v28, 3, v1")
        A("v_add_u32 v28, s49, v28")
        A("global_load_dwordx2 v[8:9], v28, s[40:41] sc1")
        A("global_load_dwordx2 v[10:11], v28, s[40:41] offset:512 sc1")
        A("s_waitcnt vmcnt(0)")
        A("v_max_f32 v16, v8, v10")
        for r in (4, 8):
            self.nop(2)
            A(f"v_max_f32_dpp v16, v16, v16 row_ror:{r} row_mask:0xf bank_mask:0xf")
        self.rows_reduce("max", "v16", "v17")
        A("v_sub_f32 v8, v8, v16")
        A("v_sub_f32 v10, v10, v16")
        A("v_mul_f32 v8, s59, v8")
        A("v_mul_f32 v10, s59, v10")
        A("v_exp_f32 v8, v8")
        A("v_exp_f32 v10, v10")
        self.nop(1)
        A("v_mul_f32 v17, v8, v9")
        A("v_fmac_f32 v17, v10, v11")
        for r in (4, 8):
            self.nop(2)
            A(f"v_add_f32_dpp v17, v17, v17 row_ror:{r} row_mask:0xf bank_mask:0xf")
        self.rows_reduce("add", "v17", "v18")
        A("v_rcp_f32 v18, v17")
        self.nop(1)
        A("v_fma_f32 v19, -v17, v18, 1.0")
        A("v_fmac_f32 v18, v19, v18")
        A("v_lshlrev_b32 v28, 2, v1")
        A(f"v_add_u32 v28, {FIN}, v28")
        A(f"v_mov_b32 v29, {FINF}")
        A("s_mov_b64 exec, 15")
        A("ds_write_b32 v28, v16")
        A("ds_write_b32 v28, v18 offset:16")
        A("s_waitcnt lgkmcnt(0)")
        A("s_mov_b64 exec, 1")
        A("ds_write_b32 v29, v30")
        A("s_mov_b64 exec, -1")
        A("v_lshrrev_b32 v59, 2, v1")
        A("v_lshlrev_b32 v59, 7, v59")
        A("v_and_b32 v60, 3, v1")
        A("v_lshl_add_u32 v59, v60, 4, v59")
        A("s_lshl_b32 s49, s42, 12")
        A(f"s_add_u32 s49, s49, {WS_MB}")
        A("v_add_u32 v59, s49, v59")
        for i in range(4):
            A(f"v_mov_b32 v{60+i}, 1")
        A("v_lshrrev_b32 v33, 4, v1")
        A("v_and_b32 v34, 15, v1")
        A("v_and_b32 v28, 7, v1")
        A("v_lshl_add_u32 v28, v33, 3, v28")
        A("v_lshrrev_b32 v29, 3, v34")
        A("v_lshl_add_u32 v28, v29, 8, v28")
        A("v_lshlrev_b32 v29, 2, v28")
        A(f"v_add_u32 v29, {PART}, v29")
        A("v_cmp_eq_u32 s[68:69], 8, v34")
        A("v_cmp_eq_u32 s[70:71], 7, v34")
        A("v_min_u32 v35, 8, v34")
        A("v_subrev_u32 v36, 8, v34")
        self.nop(1)
        A("v_cndmask_b32 v36, v36, 8, s[70:71]")
        A("v_lshlrev_b32 v37, 6, v33")
        A("s_lshl_b32 s49, s42, 12")
        A(f"s_add_u32 s49, s49, {WS_O2}")
        A("v_lshl_add_u32 v32, v35, 2, v37")
        A("v_add_u32 v32, s49, v32")
        A("v_lshl_add_u32 v48, v36, 2, v37")
        A("v_add_u32 v48, s49, v48")
        A("v_add_u32 v48, 2048, v48")
        A("v_and_b32 v31, 3, v1")
        A("v_lshl_add_u32 v31, v31, 4, v37")
        A("s_lshl_b32 s56, s61, 10")
        A("s_add_u32 s49, s49, s56")
        A("v_add_u32 v31, s49, v31")
        A("s_lshl_b32 s49, s60, 9")
        A(f"s_add_u32 s49, s49, {WS_SACC}")
        A("v_lshlrev_b32 v37, 7, v33")
        A("v_lshl_add_u32 v49, v35, 2, v37")
        A("v_add_u32 v49, s49, v49")
        A("v_lshl_add_u32 v50, v36, 2, v37")
        A("v_add_u32 v50, s49, v50")
        A("v_cmp_eq_u32 s[52:53], 1, v33")
        A("v_cmp_eq_u32 s[54:55], 2, v33")
        A("v_cmp_eq_u32 s[44:45], 3, v33")
        A("v_cmp_gt_u32 s[72:73], 8, v34")
        A("s_lshl_b32 s49, s60, 8")
        A(f"s_add_u32 s49, s49, {WS_G}")
        A("v_lshlrev_b32 v36, 2, v1")
        A("v_add_u32 v36, s49, v36")
        self.spin_init()
        self.lab("L_gw")
        A("global_load_dword v41, v36, s[40:41] sc1")
        A("s_waitcnt vmcnt(0)")
        A("v_cmp_eq_u32 vcc, 0, v41")
        A("s_nop 1")
        A("s_cmp_eq_u64 vcc, 0")
        A("s_cbranch_scc1 L_gd")
        self.spin_tail("L_gw", "L_gd", 16)
        self.lab("L_gd")
        A("v_lshlrev_b32 v40, 16, v40")
        self.ts(8)
        A("s_waitcnt vmcnt(0) lgkmcnt(0)")
        if opt.get("wolate") and not opt.get("onetrig"):
            A(f"v_mov_b32 v28, {WOF}")
            self.spin_init()
            self.lab("L_wow")
            A("ds_read_b32 v4, v28")
            A("s_waitcnt lgkmcnt(0)")
            A("v_readfirstlane_b32 s57, v4")
            A("s_nop 3")
            A("s_cmp_lg_u32 s57, 0")
            A("s_cbranch_scc1 L_wod")
            self.spin_tail("L_wow", "L_wod", 4)
            self.lab("L_wod")
        if opt.get("wolate") and not opt.get("onetrig"):
            A("s_mov_b64 s[76:77], s[52:53]")
            A("s_mov_b64 s[78:79], s[54:55]")
            A("v_mov_b32 v58, v29")
            self.wo_dma()
            A("v_mov_b32 v29, v58")
            A("s_mov_b64 s[52:53], s[76:77]")
            A("s_mov_b64 s[54:55], s[78:79]")
        A(f"v_mov_b32 v28, {PREC}")
        A("s_lshl_b32 s49, s42, 9")
        A(f"s_add_u32 s49, s49, {WS_SYNC + 4}")
        A("s_mov_b32 s58, 1")
        self.spin_init()
        self.lab("L_prw")
        A("ds_read_b32 v4, v28")
        A("s_waitcnt lgkmcnt(0)")
        A("v_readfirstlane_b32 s57, v4")
        A("s_nop 3")
        A("s_cmp_ge_u32 s57, 4")
        A("s_cbranch_scc1 L_prd")
        self.spin_tail("L_prw", "L_prd", 1)
        self.lab("L_prd")
        A("s_atomic_add s58, s[40:41], s49 glc")
        if opt.get("onetrig"):
            A("s_mov_b64 s[76:77], s[52:53]")
            A("s_mov_b64 s[78:79], s[54:55]")
            self.wo_dma()
            A("s_mov_b64 s[52:53], s[76:77]")
            A("s_mov_b64 s[54:55], s[78:79]")
        A("s_waitcnt lgkmcnt(0)")
        A("s_and_b32 s58, s58, 31")
        A("s_cmp_lg_u32 s58, 31")
        A("s_cbranch_scc1 L_nogo")
        A("s_mov_b32 exec_hi, 0")
        A("global_store_dword v38, v30, s[40:41] offset:8 sc1")
        A("s_mov_b64 exec, -1")
        self.lab("L_nogo")
        A("s_barrier")
        self.ts(9)
        A("s_waitcnt vmcnt(0)")
        self.wo_tr(WP)
        A("s_mov_b64 exec, 1")
        self.spin_init()
        A("s_cmp_eq_u32 s58, 31")
        A("s_cbranch_scc1 L_ad_fin")
        self.lab("L_aw_fin")
        A("global_load_dword v4, v39, s[40:41] offset:8 sc1")
        A("s_waitcnt vmcnt(0)")
        A("v_readfirstlane_b32 s57, v4")
        A("s_nop 3")
        A("s_cmp_lg_u32 s57, 0")
        A("s_cbranch_scc1 L_ad_fin")
        self.spin_tail("L_aw_fin", "L_ad_fin", opt.get("fsleep", 1))
        self.lab("L_ad_fin")
        OR = 64; OQ = 80; OB = 112; SD = 8
        A("s_mov_b32 s56, 0x00040004")
        A("s_mov_b32 s57, 0x00040004")
        A("s_mov_b32 exec_lo, 0x00070007")
        A("s_mov_b32 exec_hi, 0x00070007")
        self.spin_init()
        self.lab("L_ow")
        for ks in range(4):
            A(f"global_load_dwordx4 v[{OR+4*ks}:{OR+4*ks+3}], v31, s[40:41] offset:{256*ks} sc1")
        A("s_waitcnt vmcnt(0)")
        A(f"v_min3_f32 v4, v{OR}, v{OR+4}, v{OR+8}")
        A(f"v_min_f32 v4, v4, v{OR+12}")
        A("v_cmp_eq_f32 vcc, 0x42000000, v4")
        A("s_nop 1")
        A("s_and_b64 vcc, vcc, s[56:57]")
        A("s_cmp_eq_u64 vcc, s[56:57]")
        A("s_cbranch_scc1 L_od")
        self.spin_tail("L_ow", "L_od", opt.get("osleep", 1))
        self.lab("L_od")
        A("s_mov_b64 exec, -1")
        self.ts(11)
        for ks in range(4):
            A(f"v_cvt_pk_bf16_f32 v{OQ+2*ks}, v{OR+4*ks}, v{OR+4*ks+1}")
            A(f"v_cvt_pk_bf16_f32 v{OQ+2*ks+1}, v{OR+4*ks+2}, v{OR+4*ks+3}")
        self.nop(1)
        for ks in range(4):
            for hh in range(2):
                for k in range(2):
                    A(f"v_mov_b32_dpp v{OB+4*ks+2*hh+k}, v{OQ+2*ks+k} row_newbcast:{hh} row_mask:0xf bank_mask:0xf")
        A("s_waitcnt lgkmcnt(0)")
        self.nop(2)
        for ks in range(4):
            for ct in range(4):
                r = WP + 16 * ks + 4 * ct
                d = SD + 4 * ct
                c = "0" if ks == 0 else f"v[{d}:{d+3}]"
                A(f"v_mfma_f32_16x16x32_bf16 v[{d}:{d+3}], v[{OB+4*ks}:{OB+4*ks+3}], v[{r}:{r+3}], {c}")
        self.nop(6)
        A(f"v_cndmask_b32 v{SD}, v{SD}, v{SD+4}, s[52:53]")
        A(f"v_cndmask_b32 v{SD}, v{SD}, v{SD+8}, s[54:55]")
        A(f"v_cndmask_b32 v{SD}, v{SD}, v{SD+12}, s[44:45]")
        A(f"v_cndmask_b32 v9, v{SD}, 1.0, s[68:69]")
        A(f"v_cndmask_b32 v10, v{SD}, 1.0, s[70:71]")
        A("s_mov_b32 exec_lo, 0x01ff01ff")
        A("s_mov_b32 exec_hi, 0x01ff01ff")
        A("global_atomic_add_f32 v12, v49, v9, s[40:41] sc0 sc1")
        A("s_mov_b32 exec_lo, 0xff80ff80")
        A("s_mov_b32 exec_hi, 0xff80ff80")
        A("global_atomic_add_f32 v13, v50, v10, s[40:41] offset:64 sc0 sc1")
        A("s_mov_b64 exec, -1")
        A("s_waitcnt vmcnt(0)")
        self.ts(14)
        A("v_mov_b32_dpp v14, v12 row_newbcast:8 row_mask:0xf bank_mask:0xf")
        A("v_mov_b32_dpp v15, v13 row_newbcast:7 row_mask:0xf bank_mask:0xf")
        A("v_cndmask_b32 v12, v13, v12, s[72:73]")
        A("v_cndmask_b32 v14, v15, v14, s[72:73]")
        A(f"v_add_f32 v8, v{SD}, v12")
        A("v_cmp_eq_f32 vcc, 0x41f80000, v14")
        self.bf16r("v8")
        A("v_mul_f32 v8, v8, v41")
        self.bf16r("v8")
        A("v_add_f32 v8, v8, v40")
        A("v_cvt_pk_bf16_f32 v8, v8, v8")
        A("s_and_b64 exec, exec, vcc")
        A("s_cbranch_scc0 L_end")
        A("global_store_short v43, v8, s[36:37]")
        A("s_mov_b64 exec, -1")
        self.ts(12)


if __name__ == "__main__":
    out = sys.argv[1]
    opt = {}
    for a in sys.argv[2:]:
        k, _, v = a.partition("=")
        opt[k] = (int(v) if v.lstrip("-").isdigit() else v) if v else True
    open(out, "w").write(G3(**opt).gen())
```
